```python
import torch

def _softmax(x, axis=-1):
    return torch.softmax(x, dim=axis)

def _gelu(x):
    return torch.nn.functional.gelu(x, approximate='tanh')

def _silu(x):
    return torch.nn.functional.silu(x)

def _sigmoid(x):
    return torch.sigmoid(x)

def _layernorm(x, axis=-1, eps=1e-05):
    m = x.mean(dim=axis, keepdim=True)
    v = x.var(dim=axis, keepdim=True, unbiased=False)
    return (x - m) / torch.sqrt(v + eps)

def _scatter_add(tgt, idx, src, axis=0):
    return tgt.clone().index_add_(axis, idx, src)

def _segment_sum(src, seg, n):
    out = torch.zeros((n,) + src.shape[1:], dtype=src.dtype)
    return out.index_add_(0, seg, src)

def _pad(x, pw):
    flat = tuple((v for pair in reversed(pw) for v in pair))
    return torch.nn.functional.pad(x, flat)
kernel_name = 'adaLN_cond__memory_aug_recurrent_mem_tr__mixer_s_mlp__prompt'

def setup_inputs():

    _w = lambda a: (lambda t: t.to(torch.bfloat16) if t.is_floating_point() else t)(torch.as_tensor(a))

    def _A_setup():
        B, S, Dm = (1, 2048, 640)
        H, Dh = (32, 128)
        M, seg = (8, 32)
        seg = min(seg, S)
        S = S // seg * seg
        return {'x': _w((lambda *s: torch.randn(*s, dtype=torch.bfloat16) * 0.05)(B, S, Dm)), 'mem0': _w((lambda *s: torch.randn(*s, dtype=torch.bfloat16) * 0.4)(B, M, Dm)), 'Wq': _w((lambda *s: torch.randn(*s, dtype=torch.bfloat16) * 3.2)(Dm, H, Dh) * Dm ** (-0.5)), 'Wk': _w((lambda *s: torch.randn(*s, dtype=torch.bfloat16) * 3.2)(Dm, H, Dh) * Dm ** (-0.5)), 'Wv': _w((lambda *s: torch.randn(*s, dtype=torch.bfloat16) * 0.4)(Dm, H, Dh) * Dm ** (-0.5)), 'Wo': _w((lambda *s: torch.randn(*s, dtype=torch.bfloat16) * 0.4)(H, Dh, Dm) * (H * Dh) ** (-0.5)), 'seg_len': seg}
    _A_in = _A_setup()

    def _B_setup():
        B, S, D, F = (1, 2048, 640, 1728)
        return {'x': _w((lambda *s: torch.randn(*s, dtype=torch.bfloat16) * 0.05)(B, S, D)), 'w1': _w((lambda *s: torch.randn(*s, dtype=torch.bfloat16) * 3.2)(D, D) * D ** (-0.5)), 'w2': _w((lambda *s: torch.randn(*s, dtype=torch.bfloat16) * 3.2)(D, D) * D ** (-0.5)), 'w3': _w((lambda *s: torch.randn(*s, dtype=torch.bfloat16) * 3.2)(D, F) * D ** (-0.5)), 'w4': _w((lambda *s: torch.randn(*s, dtype=torch.bfloat16) * 3.2)(F, D) * F ** (-0.5))}
    _B_in = _B_setup()
    return {'A_x': _A_in['x'], 'A_mem0': _A_in['mem0'], 'A_Wq': _A_in['Wq'], 'A_Wk': _A_in['Wk'], 'A_Wv': _A_in['Wv'], 'A_Wo': _A_in['Wo'], 'A_seg_len': _A_in['seg_len'], 'B_x': _B_in['x'], 'B_w1': _B_in['w1'], 'B_w2': _B_in['w2'], 'B_w3': _B_in['w3'], 'B_w4': _B_in['w4'], 'c': _w((lambda *s: torch.randn(*s, dtype=torch.bfloat16) * 0.1)(1, 640) * 8.0), 'w_mod': _w((lambda *s: torch.randn(*s, dtype=torch.bfloat16) * 0.1)(640, 6 * 640) * 640 ** (-0.5) * 8.0)}

def reference(A_x, A_mem0, A_Wq, A_Wk, A_Wv, A_Wo, A_seg_len, B_x, B_w1, B_w2, B_w3, B_w4, c, w_mod):

    def _A_ref(x, mem0, Wq, Wk, Wv, Wo, seg_len):
        B, S, Dm = x.shape
        H, Dh = (Wq.shape[1], Wq.shape[2])
        M = mem0.shape[1]
        scale = Dh ** (-0.5)
        n_seg = S // seg_len
        L = M + seg_len
        idx = torch.arange(L)
        mask = (idx[:, None] < M) | (idx[:, None] >= idx[None, :])
        mem = mem0
        outs = []
        for s in range(n_seg):
            xs = x[:, s * seg_len:(s + 1) * seg_len, :].clone()
            h = torch.concatenate([mem, xs], axis=1)
            q = torch.einsum('btd,dhe->bhte', h, Wq)
            k = torch.einsum('btd,dhe->bhte', h, Wk)
            v = torch.einsum('btd,dhe->bhte', h, Wv)
            scores = torch.einsum('bhqe,bhke->bhqk', q, k) * scale
            scores = torch.where(mask[None, None], scores, -1000000000.0)
            p = _softmax(scores, axis=-1)
            o = torch.einsum('bhqk,bhke->bhqe', p, v)
            o = torch.einsum('bhte,hed->btd', o, Wo)
            mem = o[:, :M, :].clone()
            outs.append(o[:, M:, :])
        return torch.concatenate(outs, axis=1)

    def _B_ref(x, w1, w2, w3, w4):
        B, S, D = x.shape
        h = _gelu(_layernorm(x, axis=-1) @ w1)
        c = D // 4
        g0 = _pad(h[:, :, 0 * c:1 * c], ((0, 0), (1, 0), (0, 0)))[:, :S, :]
        g1 = _pad(h[:, :, 1 * c:2 * c], ((0, 0), (0, 1), (0, 0)))[:, 1:, :]
        g2 = _pad(h[:, :, 2 * c:3 * c], ((0, 0), (2, 0), (0, 0)))[:, :S, :]
        g3 = _pad(h[:, :, 3 * c:], ((0, 0), (0, 2), (0, 0)))[:, 2:, :]
        hs = torch.concatenate([g0, g1, g2, g3], axis=-1) @ w2
        x1 = x + hs
        h2 = _gelu(_layernorm(x1, axis=-1) @ w3) @ w4
        return x1 + h2
    x = A_x
    mod = (_silu(c) @ w_mod).reshape(c.shape[0], 6, 1, -1)
    sa, ca, ga, sb, cb, gb = (mod[:, 0].clone(), mod[:, 1].clone(), mod[:, 2].clone(), mod[:, 3].clone(), mod[:, 4].clone(), mod[:, 5].clone())
    h = _layernorm(x, axis=-1) * (1 + ca) + sa
    x = x + ga * _A_ref(h, A_mem0, A_Wq, A_Wk, A_Wv, A_Wo, A_seg_len)
    h = _layernorm(x, axis=-1) * (1 + cb) + sb
    x = x + gb * _B_ref(h, B_w1, B_w2, B_w3, B_w4)
    return x
```

```python
import re

TRANS = ('v_exp_f32', 'v_log_f32', 'v_rcp_f32', 'v_rsq_f32', 'v_sqrt_f32', 'v_sin_f32', 'v_cos_f32')
_REG = re.compile(r'^-?\|?(?:abs\()?([vas])(?:(\d+)|\[(\d+):(\d+)\])\)?\|?$')


def regs_of(op):
    op = op.strip()
    if op == 'vcc':
        return {('s', 'vcc')}
    if op == 'exec':
        return {('s', 'exec')}
    if op == 'm0':
        return {('s', 'm0')}
    m = _REG.match(op)
    if not m:
        return set()
    k = m.group(1)
    if m.group(2) is not None:
        return {(k, int(m.group(2)))}
    return {(k, i) for i in range(int(m.group(3)), int(m.group(4)) + 1)}


def split_ops(s):
    out, depth, cur = [], 0, ''
    for ch in s:
        if ch in '[(':
            depth += 1
        if ch in '])':
            depth -= 1
        if ch == ',' and depth == 0:
            out.append(cur.strip())
            cur = ''
        else:
            cur += ch
    if cur.strip():
        out.append(cur.strip())
    return out


class Ins:
    __slots__ = ('text', 'mn', 'ops', 'mods', 'kind', 'rd', 'wr', 'a', 'b', 'c', 'd', 'passes', 'label',
                 'target', 'states', 'dpp', 'cnt', 'wide_store', 'data', 'sdwa', 'lds_dma')

    def __init__(self, text):
        self.text = text
        self.label = None
        self.target = None
        self.rd, self.wr = set(), set()
        self.a = self.b = self.c = self.d = set()
        self.passes = 0
        self.states = 1
        self.dpp = False
        self.cnt = None
        self.wide_store = False
        self.data = set()
        self.sdwa = False
        self.lds_dma = False
        t = text.split(';')[0].strip()
        if t.endswith(':'):
            self.kind, self.label, self.mn, self.ops, self.states = 'label', t[:-1], '', [], 0
            return
        if not t or t.startswith('.'):
            self.kind, self.mn, self.ops, self.states = 'dir', '', [], 0
            return
        parts = t.split(None, 1)
        self.mn = mn = parts[0]
        rest = parts[1] if len(parts) > 1 else ''
        ops = split_ops(rest)
        mods = ''
        if ops:
            last = ops[-1].split(None, 1)
            if len(last) > 1 and not mn.startswith('s_waitcnt') and not mn.startswith('s_getreg'):
                ops[-1], mods = last[0], last[1]
        self.ops, self.mods = ops, mods
        R = [regs_of(o) for o in ops]
        allr = set().union(*R) if R else set()
        if mn.startswith('v_mfma'):
            self.kind = 'mfma'
            self.d, self.a, self.b, self.c = R[0], R[1], R[2], R[3]
            self.wr, self.rd = R[0], R[1] | R[2] | R[3]
            self.passes = 8 if '32x32' in mn else 4
        elif mn.startswith('v_smfmac'):
            self.kind = 'mfma'
            self.d, self.a, self.b, self.c = R[0], R[1] | R[3], R[2], R[0]
            self.wr, self.rd = R[0], allr
            self.passes = 8 if '32x32' in mn else 4
        elif mn.startswith('v_'):
            self.kind = 'valu'
            self.dpp = '_dpp' in mn
            self.sdwa = '_sdwa' in mn and 'dst_sel:DWORD' not in mods
            if mn.startswith('v_permlane') and 'swap' in mn:
                self.wr, self.rd = allr, allr
            elif mn.startswith(('v_add_co', 'v_sub_co', 'v_addc_co')):
                self.wr, self.rd = R[0] | R[1], set().union(*R[2:])
            elif mn == 'v_nop':
                pass
            else:
                self.wr = R[0]
                self.rd = set().union(*R[1:]) if len(R) > 1 else set()
                if mn.startswith(('v_fmac', 'v_dot2c', 'v_writelane')) or self.dpp or self.sdwa:
                    self.rd = self.rd | R[0]
        elif mn.startswith('ds_'):
            self.kind, self.cnt = 'ds', 'lgkm'
            if mn.startswith(('ds_read', 'ds_bpermute', 'ds_permute', 'ds_swizzle')):
                self.wr, self.rd = R[0], set().union(*R[1:])
            else:
                self.rd = allr
        elif mn.startswith('buffer_'):
            self.kind, self.cnt = 'vmem', 'vm'
            words = mods.split()
            if mn in ('buffer_inv', 'buffer_wbl2'):
                pass
            elif 'lds' in words:
                self.rd, self.lds_dma = allr | {('s', 'm0')}, True
            elif mn.startswith('buffer_load'):
                self.wr, self.rd = R[0], set().union(*R[1:])
            elif mn.startswith('buffer_atomic'):
                self.rd = allr
                if 'sc0' in words:
                    self.wr = R[0]
            else:
                self.rd, self.data = allr, R[0]
                self.wide_store = mn.endswith(('x3', 'x4'))
        elif mn.startswith(('s_load', 's_memtime', 's_memrealtime')):
            self.kind, self.cnt = 'smem', 'smem'
            self.wr, self.rd = R[0], set().union(*R[1:]) if len(R) > 1 else set()
        elif mn.startswith('s_'):
            self.kind = 'salu'
            if mn == 's_nop':
                self.states = int(ops[0], 0) + 1
            elif mn.startswith(('s_cbranch', 's_branch')):
                self.target = ops[0]
            elif mn.startswith(('s_cmp', 's_bitcmp', 's_waitcnt', 's_barrier', 's_endpgm', 's_sleep', 's_setprio')):
                self.rd = allr
            elif 'saveexec' in mn:
                self.wr, self.rd = R[0] | {('s', 'exec')}, R[1] | {('s', 'exec')}
            else:
                self.wr = R[0] if R else set()
                self.rd = set().union(*R[1:]) if len(R) > 1 else set()
        else:
            raise ValueError('unknown instruction: ' + text)


def vec(s):
    return {r for r in s if r[0] in 'va'}


def sca(s):
    return {r for r in s if r[0] == 's'}


def need_states(p, c):
    n = 0
    if p.kind == 'valu':
        pv, ps = vec(p.wr), sca(p.wr)
        if c.kind == 'mfma' and pv & c.rd:
            n = max(n, 2)
        if c.kind == 'valu':
            if c.dpp and pv & c.rd:
                n = max(n, 2)
            if c.mn.startswith('v_permlane') and pv & c.rd:
                n = max(n, 2)
            if c.mn.startswith(('v_readlane', 'v_readfirstlane')) and pv & c.rd:
                n = max(n, 1)
            if p.mn.startswith(TRANS) and pv & c.rd:
                n = max(n, 1)
            if p.sdwa and pv & (c.rd | c.wr):
                n = max(n, 1)
            if ps & c.rd:
                n = max(n, 4 if c.mn.startswith(('v_readlane', 'v_writelane')) else 2)
        if c.kind == 'vmem' and ps & c.rd:
            n = max(n, 5)
        if ('s', 'exec') in ps and c.kind in ('valu', 'mfma'):
            n = max(n, 5)
    elif p.kind == 'mfma':
        far = {4: 8, 8: 12}[p.passes]
        if c.kind == 'mfma':
            if p.d & (c.a | c.b):
                n = max(n, far)
            if p.d & c.c and not (p.d == c.c and p.mn == c.mn):
                n = max(n, far - 2)
            if p.d & c.d and not (p.d & c.c):
                n = max(n, far - 2)
        elif c.kind in ('valu', 'vmem', 'ds'):
            if p.d & (c.rd | c.wr):
                n = max(n, far)
            if c.kind == 'valu' and p.c & c.wr:
                n = max(n, {4: 3, 8: 7}[p.passes])
    elif p.kind == 'vmem' and p.wide_store:
        if p.data & c.wr:
            n = max(n, 2 if c.kind in ('valu', 'mfma') else 1)
    elif p.kind == 'salu':
        if ('s', 'm0') in p.wr and c.lds_dma:
            n = max(n, 1)
    return n


MAXD = 13


def elapsed(p, mid):
    now, free = 1, (2 if '16x16x16' in p.mn else p.passes)
    for states, passes in mid:
        if passes:
            now = max(now, free)
            free = now + passes
        now += states
    return now - 1


class Asm:
    def __init__(self):
        self.ins = []
        self.uid = 0

    def __call__(self, text):
        for line in text.split('\n'):
            line = line.strip()
            if line:
                self.ins.append(Ins(line))
        return self

    def label(self, base):
        self.uid += 1
        return '%s_%d' % (base, self.uid)

    def _preds(self):
        ins = self.ins
        lab = {x.label: i for i, x in enumerate(ins) if x.kind == 'label'}
        preds = [[] for _ in ins]
        for i, x in enumerate(ins):
            if x.target is not None:
                preds[lab[x.target]].append(i)
            if i + 1 < len(ins) and x.mn not in ('s_branch', 's_endpgm'):
                preds[i + 1].append(i)
        return lab, preds

    def pad_hazards(self):
        added = 0
        while True:
            _, preds = self._preds()
            ins = self.ins
            fix = {}
            for i, c in enumerate(ins):
                if c.kind in ('label', 'dir') or (c.kind == 'salu' and not c.rd):
                    continue
                worst = 0
                stack = [(j, ()) for j in preds[i]]
                seen = set()
                while stack:
                    j, mid = stack.pop()
                    dist = sum(x[0] for x in mid)
                    if (j, mid) in seen or dist >= MAXD:
                        continue
                    seen.add((j, mid))
                    p = ins[j]
                    if p.kind not in ('label', 'dir'):
                        n = need_states(p, c)
                        if n > dist:
                            worst = max(worst, n - elapsed(p, mid))
                    step = ((p.states, 2 if '16x16x16' in p.mn else p.passes),) if p.states else ()
                    for k in preds[j]:
                        stack.append((k, step + mid))
                if worst > 0:
                    fix[i] = worst
            if not fix:
                return added
            first = True
            out = []
            last_fixed = -100
            for i, x in enumerate(ins):
                if i in fix and (i - last_fixed > MAXD or first):
                    out.append(Ins('s_nop %d' % (fix[i] - 1)))
                    added += 1
                    last_fixed = i
                    first = False
                out.append(x)
            self.ins = out

    def check_waits(self, entry_labels):
        ins = self.ins
        lab, _ = self._preds()
        problems = set()
        for e in entry_labels:
            seen = set()
            stack = [(lab[e], (), (), frozenset())]
            steps = 0
            while stack:
                pc, vm, lg, sm = stack.pop()
                while pc < len(ins):
                    x = ins[pc]
                    if x.kind == 'label':
                        key = (pc, vm, lg, sm)
                        if key in seen:
                            break
                        seen.add(key)
                    steps += 1
                    if steps > 20000000:
                        raise RuntimeError('wait check too long')
                    if x.mn == 's_waitcnt':
                        t = ' '.join(x.ops)
                        m = re.search(r'vmcnt\((\d+)\)', t)
                        if m:
                            n = int(m.group(1))
                            vm = vm[len(vm) - n:] if 0 < n < len(vm) else (() if n == 0 else vm)
                            if 'racy-ok' in x.text:
                                vm = tuple(frozenset(('racy', r) for r in d) for d in vm)
                        m = re.search(r'lgkmcnt\((\d+)\)', t)
                        if m:
                            n = int(m.group(1))
                            if n == 0:
                                lg, sm = (), frozenset()
                            elif not sm and n < len(lg):
                                lg = lg[len(lg) - n:]
                    elif x.kind not in ('label', 'dir'):
                        touch = x.rd | x.wr
                        for q, name in ((vm, 'vm'), (lg, 'lgkm')):
                            for d in q:
                                hit = d & (x.rd if x.cnt == name else touch)
                                if x.cnt != name:
                                    hit = hit or d & {('racy', r) for r in x.wr}
                                if hit:
                                    problems.add((pc, name, x.text))
                        if sm & touch and '; race' not in x.text:
                            problems.add((pc, 'smem', x.text))
                        if x.cnt == 'vm':
                            vm = (vm + (frozenset(x.wr),))[-70:]
                            while vm and not vm[0]:
                                vm = vm[1:]
                        elif x.cnt == 'lgkm':
                            lg = (lg + (frozenset(x.wr),))[-40:]
                            while lg and not lg[0]:
                                lg = lg[1:]
                        elif x.cnt == 'smem':
                            sm = sm | x.wr
                    if x.mn == 's_endpgm':
                        break
                    if x.target is not None:
                        if x.mn == 's_branch':
                            pc = lab[x.target]
                            continue
                        stack.append((lab[x.target], vm, lg, sm))
                    pc += 1
        return sorted(problems)

    def text(self):
        out = []
        for x in self.ins:
            out.append(x.text if x.kind in ('label', 'dir') else ' ' + x.text)
        return '\n'.join(out) + '\n'


def v(i, n=1):
    return 'v%d' % i if n == 1 else 'v[%d:%d]' % (i, i + n - 1)


def a(i, n=1):
    return 'a%d' % i if n == 1 else 'a[%d:%d]' % (i, i + n - 1)


def s(i, n=1):
    return 's%d' % i if n == 1 else 's[%d:%d]' % (i, i + n - 1)


def u(i, n=1):
    if i >= 256:
        return a(i - 256, n)
    assert i + n <= 256
    return v(i, n)


def interleave(main, fill, every=1, start=0):
    out, k = [], 0
    for i, m in enumerate(main):
        out.append(m)
        if i >= start and (i - start) % every == every - 1 and k < len(fill):
            out.append(fill[k])
            k += 1
    out.extend(fill[k:])
    return out
```

```python
from asmlib import Asm, v, a, s, u

S, D, H, DH, M, SEG, NSEG, F = 2048, 640, 32, 128, 8, 32, 64, 1728

WS_BYTES = 268435456
ACT = S * D * 2
WS_FLAG = 0x0
FLAG_BYTES = 0x20000
WS_MOD = 0x20000
WS_STAMP = 0x28000
WS_PART = 0x40000
WS_MEMO = 0x100000
WS_MEMX = 0x1A0000
WS_KM = 0x240000
WS_VM = 0x640000
WS_H = 0xA40000
WS_XA = WS_H + ACT
WS_H2 = WS_XA + ACT
WS_HN = WS_H2 + ACT
WS_T = WS_HN + ACT
WS_X1 = WS_T + ACT
WS_U = 0x1A00000
WS_Q = 0x2200000
WS_K = 0x3200000
WS_V = 0x4200000
WS_O = 0x5200000
assert WS_X1 + ACT <= WS_U and WS_U + S * F * 2 <= WS_Q

PTR = {n: 32 + 2 * i for i, n in enumerate(
    ['x', 'mem0', 'wq', 'wk', 'wv', 'wo', 'seglen', 'bx', 'w1', 'w2', 'w3', 'w4', 'c', 'wmod', 'out', 'dbg', 'ws'])}
NBYTES = {'x': ACT, 'mem0': M * D * 2, 'wq': D * 4096 * 2, 'wk': D * 4096 * 2, 'wv': D * 4096 * 2,
          'wo': D * 4096 * 2, 'w1': D * D * 2, 'w2': D * D * 2, 'w3': D * F * 2, 'w4': D * F * 2,
          'c': D * 2, 'wmod': D * 6 * D * 2, 'out': ACT, 'dbg': 256, 'ws': WS_BYTES}
SRD_WS, SRD_A, SRD_B, SRD_C, SRD_D, SRD_DBG = 8, 12, 16, 20, 24, 28
sWAVE, sTEAM, sHEAD, sFAST, sWIDX = 66, 67, 68, 69, 70
SPIN_LIMIT = 1 << 21


def srd(n):
    return s(n, 4)


def build_srd(A, dst, name):
    p = PTR[name]
    A('s_mov_b32 %s, %s' % (s(dst), s(p)))
    A('s_and_b32 %s, %s, 0xffff' % (s(dst + 1), s(p + 1)))
    A('s_mov_b32 %s, 0x%x' % (s(dst + 2), NBYTES[name]))
    A('s_mov_b32 %s, 0x20000' % s(dst + 3))


def kernel_entry(A, name, nwg):
    A('.p2align 8')
    A('%s:' % name)
    A('s_cmp_ge_u32 s2, %d' % nwg)
    A('s_cbranch_scc1 %s_exit' % name)
    A('s_load_dwordx16 s[32:47], s[0:1], 0')
    A('s_load_dwordx16 s[48:63], s[0:1], 64')
    A('s_load_dwordx2 s[64:65], s[0:1], 128')
    A('v_lshrrev_b32 v1, 6, v0')
    A('s_nop 0')
    A('v_readfirstlane_b32 %s, v1' % s(sWAVE))
    A('s_waitcnt lgkmcnt(0)')
    build_srd(A, SRD_WS, 'ws')
    build_srd(A, SRD_DBG, 'dbg')
    for r in (SRD_A, SRD_B, SRD_C, SRD_D):
        build_srd(A, r, 'ws')


def kernel_exit(A, name):
    A('%s_exit:' % name)
    A('s_endpgm')


def descriptor(name, vgpr=512, accum=256):
    return '\n'.join([
        '.amdhsa_kernel %s' % name,
        '  .amdhsa_next_free_vgpr %d' % vgpr,
        '  .amdhsa_next_free_sgpr 102',
        '  .amdhsa_accum_offset %d' % accum,
        '  .amdhsa_group_segment_fixed_size 0',
        '  .amdhsa_kernarg_size 136',
        '  .amdhsa_user_sgpr_count 2',
        '  .amdhsa_user_sgpr_kernarg_segment_ptr 1',
        '  .amdhsa_system_sgpr_workgroup_id_x 1',
        '  .amdhsa_float_denorm_mode_32 3',
        '.end_amdhsa_kernel', ''])


def spin_guard(A, cnt, back, bail):
    A('s_add_u32 %s, %s, 1' % (s(cnt), s(cnt)))
    A('s_cmp_lt_u32 %s, 0x%x' % (s(cnt), SPIN_LIMIT))
    A('s_cbranch_scc1 %s' % back)
    A('s_branch %s' % bail)


def f2u(x):
    import struct
    return struct.unpack('<I', struct.pack('<f', x))[0]
```

```python
import math
from common import *
from asmlib import interleave

L_MEMT = 0
L_OX = 0
L_QT = 10240
L_KT = L_QT + 2304
L_TCH = L_KT + 2304
L_KX = 16384
L_WL = L_KX + 16384
L_END = L_WL + 131072
assert L_TCH + 512 <= L_KX and L_END <= 163840

vKXR, vIDX, vAR, vBL, vQW, vQR, vLIN, vOXW, vSEL, vPST, vTCH, vMST, vML4, vML2, vVX, vPUB = range(16)
VX, VXN = 16, 24
ACCV, ACCQ, ACCK = 32, 36, 40
AST = 44
BST = 56
T0 = 72
WREG = 80

sSTEP, sTAG, sSPIN, sMO, sMX, sMOW, sMXW, sKVK, sPUB, sT, sPT0, sPT1, sPT2, sPL, sRED, sOWN, sLATE, sFLG = range(72, 90)
sEXM = 90
sST = 92
sSTAMP = 44
sKVOK, sKXM, sPUBV, sPLP, sKVV, sTOF = 96, 97, 100, 101, 3, 4
sSCL = 98

OPT = {}
SCL = 128 ** -0.5 * math.log2(math.e)


def smf(acc, areg, breg):
    return 'v_smfmac_f32_16x16x64_bf16 %s, %s, %s, %s' % (v(acc, 4), v(areg, 4), u(breg, 8), v(vIDX))


class Rec:
    def __init__(self, A, cls, fast, hooks, stamps=False):
        self.A, self.cls, self.fast, self.hooks, self.stamps = A, cls, fast, hooks, stamps
        self.ntile = 3 if cls == 0 else 2
        klds = (3, 7) if cls == 0 else ()
        self.a_ops = []
        for c in range(10):
            if c in klds:
                self.a_ops.append(('k', c))
            self.a_ops.append(('v', c))
        self.d_ops = [(0, 0), (0, 1), (0, 2), (1, 3)] + ([(2, 0), (2, 1)] if cls == 0 else [])
        self.lds_ops = self.a_ops + self.d_ops
        self.nlds = len(self.lds_ops)
        self.slots = [BST, BST + 8, T0] if cls == 0 else [BST, BST + 8]
        self.d_slots = [VX, AST, T0]
        r = WREG
        self.w, self.wo = {}, {}
        for m in 'qkv':
            for c in range(20):
                if (m, c) not in self.lds_ops:
                    self.w[m, c] = r
                    r += 8
        for t in range(self.ntile):
            for c in range(4):
                if (t, c) not in self.lds_ops:
                    self.wo[t, c] = r
                    r += 8
        assert r == 512
        self.tag = 'rec%d%s' % (cls, 'f' if fast else 's')

    def stamp(self, k, step=40):
        if not self.stamps or not (OPT.get('smask', 0xffff) >> k) & 1:
            return
        A = self.A
        skip = A.label('nostamp')
        A('s_cmp_lg_u32 %s, %d' % (s(sSTEP), step))
        A('s_cbranch_scc1 %s' % skip)
        A('s_memtime %s' % s(sST, 2))
        A('s_waitcnt lgkmcnt(0)')
        A('s_mov_b32 %s, %s' % (s(sSTAMP + k), s(sST)))
        A('%s:' % skip)

    def trace(self, reg):
        if not OPT.get('trace', 0):
            return
        A = self.A
        A('s_memrealtime %s' % s(sST, 2))
        A('s_waitcnt lgkmcnt(0)')
        A('s_mov_b32 m0, %s' % s(sSTEP))
        A('s_nop 0')
        A('v_writelane_b32 v%d, %s, m0' % (reg, s(sST)))

    def load_weights(self):
        A = self.A
        vW, vWo = T0, T0 + 1
        A('v_and_b32 v%d, 15, v0' % (T0 + 2))
        A('v_bfe_u32 v%d, v0, 4, 1' % (T0 + 3))
        A('v_bfe_u32 v%d, v0, 5, 1' % (T0 + 4))
        A('v_lshl_add_u32 v%d, v%d, 1, v%d' % (vW, T0 + 3, T0 + 4))
        A('v_lshlrev_b32 v%d, 13, v%d' % (vW, vW))
        A('v_lshl_add_u32 v%d, v%d, 2, v%d' % (vW, T0 + 2, vW))
        A('s_lshl_b32 %s, %s, 6' % (s(sT), s(sWAVE)))
        A('v_add_u32 v%d, %s, v%d' % (vW, s(sT), vW))
        A('v_bfe_u32 v%d, v0, 4, 2' % vWo)
        A('v_mul_u32_u24 v%d, 5120, v%d' % (vWo, vWo))
        A('v_lshl_add_u32 v%d, v%d, 2, v%d' % (vWo, T0 + 2, vWo))
        A('s_lshl_b32 %s, %s, 8' % (s(sT), s(sHEAD)))
        A('s_mul_i32 %s, %s, %d' % (s(sOWN), s(sTEAM), 320 * 8192))
        A('s_sub_u32 %s, %d, %s' % (s(sLATE), 320 * 8192, s(sOWN)))
        A('s_add_u32 %s, %s, %s' % (s(sOWN), s(sOWN), s(sT)))
        A('s_add_u32 %s, %s, %s' % (s(sLATE), s(sLATE), s(sT)))

        def proj(srd_n, c, dst):
            base = sOWN if c < 10 else sLATE
            for r in range(8):
                off = (32 * (c % 10) + 16 * (r >> 2) + 4 * (r & 3)) * 8192
                A('s_add_u32 %s, %s, 0x%x' % (s(sT), s(base), off))
                A('buffer_load_dword %s, v%d, %s, %s offen' % (u(dst + r), vW, srd(srd_n), s(sT)))

        if self.cls == 0:
            A('s_mul_i32 %s, %s, 3' % (s(sPT0), s(sWAVE)))
        else:
            A('s_lshl_b32 %s, %s, 1' % (s(sPT0), s(sWAVE)))
            A('s_add_u32 %s, %s, 2' % (s(sPT0), s(sPT0)))
        A('s_mul_i32 %s, %s, %d' % (s(sPT1), s(sHEAD), 128 * 1280))
        A('s_mul_i32 %s, %s, 640' % (s(sT), s(sTEAM)))
        A('s_add_u32 %s, %s, %s' % (s(sPT1), s(sPT1), s(sT)))
        A('s_lshl_b32 %s, %s, 6' % (s(sT), s(sPT0)))
        A('s_add_u32 %s, %s, %s' % (s(sPT1), s(sPT1), s(sT)))

        def load(op, dst):
            if op[0] in ('q', 'k', 'v'):
                return proj({'q': SRD_A, 'k': SRD_B, 'v': SRD_C}[op[0]], op[1], dst)
            t, c = op
            for r in range(8):
                if r % 4 == 0:
                    A('s_add_u32 %s, %s, %d' % (s(sT), s(sPT1), (32 * c + 4 * r) * 1280 + 64 * t))
                A('buffer_load_dword %s, v%d, %s, %s offen offset:%d'
                  % (u(dst + r), vWo, srd(SRD_D), s(sT), (r & 3) * 1280))
        for i, op in enumerate(self.lds_ops):
            load(op, 256 + 8 * i)
        for i in range(self.nlds):
            A('s_waitcnt vmcnt(%d)' % min(63, 8 * (self.nlds - 1 - i)))
            A('ds_write_b128 v%d, %s offset:%d' % (vBL, u(256 + 8 * i, 4), i * 2048))
            A('ds_write_b128 v%d, %s offset:%d' % (vBL, u(260 + 8 * i, 4), i * 2048 + 1024))
        A('s_waitcnt lgkmcnt(0)')
        for op, r in sorted(self.w.items(), key=lambda x: (x[0][1], x[0][0])):
            load(op, r)
        for op, r in self.wo.items():
            load(op, r)
        A('v_add_u32 v%d, %d, v%d' % (vKXR, L_KX, vLIN))
        A('s_mul_i32 %s, %s, %d' % (s(sT), s(sTEAM), 40 * 4096))
        A('s_lshl_b32 %s, %s, 14' % (s(sPT0), s(sPT0)))
        A('s_add_u32 %s, %s, %s' % (s(sPT0), s(sPT0), s(sT)))
        A('s_lshl_b32 %s, %s, 7' % (s(sT), s(sHEAD)))
        A('s_add_u32 %s, %s, %s' % (s(sPT0), s(sPT0), s(sT)))
        A('s_add_u32 %s, %s, 0x%x' % (s(sPT0), s(sPT0), WS_PART))
        A('s_add_u32 %s, %s, 0x4000' % (s(sPT1), s(sPT0)))
        A('s_add_u32 %s, %s, 0x8000' % (s(sPT2), s(sPT0)))

    def a_read(self, c, r):
        return 'ds_read_b128 %s, v%d offset:%d' % (v(r, 4), vAR, L_MEMT + c * 512)

    def w_reads(self, i, r):
        return ['ds_read_b128 %s, v%d offset:%d' % (v(r, 4), vBL, i * 2048),
                'ds_read_b128 %s, v%d offset:%d' % (v(r + 4, 4), vBL, i * 2048 + 1024)]

    def b_reads(self, i):
        return self.w_reads(i, self.slots[i % len(self.slots)]) if i < len(self.a_ops) else []

    def d_reads(self, i):
        return self.w_reads(len(self.a_ops) + i, self.d_slots[i % 3]) if i < len(self.d_ops) else []

    def b_first(self):
        for i in range(len(self.slots)):
            for x in self.b_reads(i):
                self.A(x)

    def mem_issue(self, soff, R):
        A = self.A
        A('buffer_load_dwordx4 %s, v%d, %s, %s offen sc1' % (v(R[0], 4), vML4, srd(SRD_WS), s(soff)))
        A('buffer_load_dwordx4 %s, v%d, %s, %s offen offset:1024 sc1' % (v(R[1], 4), vML4, srd(SRD_WS), s(soff)))
        A('buffer_load_dwordx2 %s, v%d, %s, %s offen sc1' % (v(R[2], 2), vML2, srd(SRD_WS), s(soff)))

    def mem_check(self, R):
        A, t, w = self.A, VXN + 6, VXN + 7
        x = [R[0] + i for i in range(4)] + [R[1] + i for i in range(4)] + [R[2], R[2] + 1]
        A('v_max3_u32 v%d, v%d, v%d, v%d' % (t, x[0], x[1], x[2]))
        A('v_max3_u32 v%d, v%d, v%d, v%d' % (w, x[3], x[4], x[5]))
        A('v_max3_u32 v%d, v%d, v%d, v%d' % (t, t, x[6], x[7]))
        A('v_max3_u32 v%d, v%d, v%d, v%d' % (w, w, x[8], x[9]))
        A('v_max_u32 v%d, v%d, v%d' % (t, t, w))
        A('v_cmp_eq_u32 vcc, -1, v%d' % t)

    def mem_write(self, R, lds_off):
        A = self.A
        A('ds_write_b128 v%d, %s offset:%d' % (vML4, v(R[0], 4), lds_off))
        A('ds_write_b128 v%d, %s offset:%d' % (vML4, v(R[1], 4), lds_off + 1024))
        A('ds_write_b64 v%d, %s offset:%d' % (vML2, v(R[2], 2), lds_off))

    OWN = (AST, AST + 4, AST + 8)
    LATE = (T0, T0 + 4, VXN)

    def retry_loop(self, name, issue, nloads, check, finish, back):
        def body(bail):
            A = self.A
            loop = A.label(name + '_loop')
            depth = OPT.get('depth', 2)
            A('s_mov_b64 exec, vcc')
            for _ in range(depth - 1):
                issue()
            A('%s:' % loop)
            A('s_mov_b64 exec, vcc')
            issue()
            A('s_mov_b64 exec, -1')
            A('s_waitcnt vmcnt(%d) ; racy-ok' % (nloads * (depth - 1)))
            check()
            done = A.label(name + '_done')
            A('s_cbranch_vccz %s' % done)
            spin_guard(A, sSPIN, loop, bail)
            A('%s:' % done)
            finish()
            A('s_branch %s' % back)
        return body

    def warm(self, n):
        for _ in range(n):
            self.A('v_mov_b32 v%d, v%d' % (vIDX, vIDX))
            self.A('s_nop 1')

    def poll_own(self):
        A = self.A
        top, retry = A.label('own'), A.label('own_retry')
        self.warm(OPT.get('d_own', 4))
        self.mem_issue(sMO, self.OWN)
        if OPT.get('xfirst', 0):
            self.warm(OPT.get('d_own2', 12))
            A('s_waitcnt vmcnt(0)')
        else:
            A('s_barrier')
            self.warm(OPT.get('d_own2', 12))
            A('s_waitcnt vmcnt(0)')
        self.mem_check(self.OWN)
        A('s_cbranch_vccnz %s' % retry)
        self.mem_write(self.OWN, L_MEMT)
        A('%s:' % top)
        self.cold.append((retry, self.retry_loop(
            'own', lambda: self.mem_issue(sMO, self.OWN), 3, lambda: self.mem_check(self.OWN),
            lambda: (self.mem_write(self.OWN, L_MEMT), A('s_waitcnt vmcnt(0)')), top)))
        if OPT.get('latei', 1) == -1:
            self.mem_issue(sMX, self.LATE)
        A('s_waitcnt lgkmcnt(0)')

    def take_late(self):
        A = self.A
        top, retry = A.label('late'), A.label('late_retry')
        A('s_waitcnt vmcnt(0)')
        self.mem_check(self.LATE)
        A('s_cbranch_vccnz %s' % retry)
        self.mem_write(self.LATE, L_MEMT + 5120)
        A('%s:' % top)
        self.cold.append((retry, self.retry_loop(
            'late', lambda: self.mem_issue(sMX, self.LATE), 3, lambda: self.mem_check(self.LATE),
            lambda: (self.mem_write(self.LATE, L_MEMT + 5120), A('s_waitcnt vmcnt(0)')), top)))

    def phase_a1(self):
        A = self.A
        ns = len(self.slots)
        q = [('b', i) for i in range(ns) for _ in range(2)]

        def issue(x, tagc):
            A(x)
            q.append(tagc)

        def need(tagc):
            if tagc in q:
                k = max(i for i, x in enumerate(q) if x == tagc)
                A('s_waitcnt lgkmcnt(%d)' % (len(q) - 1 - k))
                del q[:k + 1]
        for c in range(2):
            issue(self.a_read(c, AST + 4 * c), ('a', c))
        later = []
        for c in range(10):
            ar = AST + 4 * (c % 3)
            need(('a', c))
            for m, acc in (('q', ACCQ), ('k', ACCK), ('v', ACCV)):
                reload = []
                if (m, c) in self.w:
                    A(smf(acc, ar, self.w[m, c]))
                else:
                    i = self.lds_ops.index((m, c))
                    need(('b', i))
                    A(smf(acc, ar, self.slots[i % ns]))
                    reload = [(x, ('b', i + ns)) for x in self.b_reads(i + ns)]
                if m == 'q' and c + 2 < 10:
                    later.insert(0, (self.a_read(c + 2, AST + 4 * ((c + 2) % 3)), ('a', c + 2)))
                for x in later[:2]:
                    issue(*x)
                later = later[2:] + reload
            if c == OPT.get('latei', 1) and self.cls == 1:
                self.mem_issue(sMX, self.LATE)
            if c == OPT.get('latec', 9) and self.cls == 1:
                self.stamp(3)
                self.take_late()
                q += [None] * 3

    def prefetch(self):
        ws = srd(SRD_WS)
        x = ['buffer_load_dwordx4 %s, v%d, %s, %s offen offset:%d sc1' % (v(VXN + 4 * i, 4), vVX, ws, s(sKVV), i * 1024)
             for i in range(2)]
        x.append('s_mov_b32 m0, %s' % s(sKXM))
        x += ['buffer_load_dwordx4 v%d, %s, %s offen offset:%d sc1 lds' % (vVX, ws, s(sKVK), i * 1024) for i in range(2)]
        if self.cls == 0:
            x.append('s_mov_b32 m0, %d' % L_TCH)
            x.append('buffer_load_dword v%d, %s, %s offen sc1 lds' % (vTCH, ws, s(sTOF)))
        return x

    def kx_read(self, c):
        kx = BST + 8 * (c % 2)
        return ['ds_read_b128 %s, v%d offset:%d' % (v(kx, 4), vKXR, c * 1024),
                'ds_read_b128 %s, v%d offset:%d' % (v(kx + 4, 4), vKXR, (4 + c) * 1024)]

    def phase_a2(self):
        A = self.A
        ar = {10 + i: r for i, r in enumerate(list(range(AST, BST + 16, 4)) + [T0, T0 + 4])}
        ar[19] = ar[10]
        for c in range(10, 13):
            A(self.a_read(c, ar[c]))
        fill = [self.a_read(c, ar[c]) for c in range(13, 20)] + self.prefetch()
        waits = {10: 2, 11: 2, 12: 2, 13: 2, 14: 2, 15: 1, 17: 0}
        for c in range(10, 20):
            if c in waits:
                A('s_waitcnt lgkmcnt(%d)' % waits[c])
            elif fill:
                A(fill.pop(0))
            if c == 10:
                A(smf(ACCV, ar[c], self.w['v', c]))
                A(fill.pop(0))
            A(smf(ACCQ, ar[c], self.w['q', c]))
            if fill:
                A(fill.pop(0))
            A(smf(ACCK, ar[c], self.w['k', c]))
        assert not fill
        vs = [smf(ACCV, ar[c], self.w['v', c]) for c in (13, 14, 15, 16, 11, 12, 17, 18, 19)]
        for x in vs[:3]:
            A(x)
        for acc, off in ((ACCQ, 0), (ACCK, 2304)):
            A('v_cvt_pk_bf16_f32 v%d, v%d, v%d' % (acc, acc, acc + 1))
            A('v_cvt_pk_bf16_f32 v%d, v%d, v%d' % (acc + 1, acc + 2, acc + 3))
            A('ds_write_b64 v%d, %s offset:%d' % (vQW, v(acc, 2), off))
        fill = [None, None] + self.kx_read(0) + self.kx_read(1)
        for x, y in zip(vs[3:], fill):
            A(x)
            if y:
                A(y)
        A('s_waitcnt lgkmcnt(4)')
        A('s_barrier')

    def publish(self, reg, soff):
        self.A('buffer_store_dwordx2 %s, v%d, %s, %s offen sc1' % (v(reg, 2), vPUB, srd(SRD_WS), s(soff)))

    def phase_s(self):
        A = self.A
        SX0, SX1, SM = ACCQ, ACCK, T0
        qk = [(AST, AST + 4), (AST + 8, T0 + 4)]

        def rd(c):
            q, k = qk[c % 2]
            return ['ds_read_b64_tr_b16 %s, v%d offset:%d' % (v(q, 2), vQR, c * 576),
                    'ds_read_b64_tr_b16 %s, v%d offset:%d' % (v(q + 2, 2), vQR, c * 576 + 32),
                    'ds_read_b64_tr_b16 %s, v%d offset:%d' % (v(k, 2), vQR, 2304 + c * 576),
                    'ds_read_b64_tr_b16 %s, v%d offset:%d' % (v(k + 2, 2), vQR, 2304 + c * 576 + 32)]
        for x in rd(0) + rd(1):
            A(x)
        self.publish(ACCK, sPUB)
        A('v_cvt_pk_bf16_f32 v%d, v%d, v%d' % (ACCV, ACCV, ACCV + 1))
        A('v_cvt_pk_bf16_f32 v%d, v%d, v%d' % (ACCV + 1, ACCV + 2, ACCV + 3))

        def mm(c, i):
            q, k = qk[c % 2]
            kx = BST + 8 * (c % 2)
            acc, areg = ((SX0, kx), (SX1, kx + 4), (SM, k))[i]
            A('v_mfma_f32_16x16x32_bf16 %s, %s, %s, %s' % (v(acc, 4), v(areg, 4), v(q, 4), v(acc, 4) if c else '0'))
        A('s_waitcnt lgkmcnt(4)')
        for i in range(3):
            mm(0, i)
        A('s_waitcnt lgkmcnt(0)')
        nxt = rd(2) + self.kx_read(2)
        for i in range(3):
            mm(1, i)
            A(nxt[2 * i])
            A(nxt[2 * i + 1])
        nxt = rd(3) + self.kx_read(3)
        for x in nxt[:2]:
            A(x)
        A('s_waitcnt lgkmcnt(2)')
        mm(2, 0)
        A(nxt[2])
        A(nxt[3])
        mm(2, 1)
        A(nxt[4])
        A(nxt[5])
        mm(2, 2)
        self.publish(ACCV, sPUBV)
        A('s_waitcnt lgkmcnt(0)')
        mm(3, 2)
        A('v_xor_b32 v%d, 0x%x, v%d' % (vKXR, L_KX ^ (L_KX + 8192), vKXR))
        mm(3, 0)
        mm(3, 1)

    def softmax_pv(self):
        A = self.A
        X, Y, SM = ACCQ, ACCK, T0
        t, w = T0 + 4, T0 + 5
        P, PL, PH = Y, SM + 2, T0 + 6
        O0, O1, L, ONE, VM = AST + 4, BST + 8, AST + 8, AST, ACCV
        idm = 'quad_perm:[0,1,2,3]'
        full = 'row_mask:0xf bank_mask:0xf'
        for r in range(4):
            A('v_mov_b32 v%d, 0x3f803f80' % (ONE + r))
        A('v_mov_b64 %s, 0' % v(PH, 2))
        for r in range(2):
            A('v_mov_b32_dpp v%d, v%d %s row_mask:0xf bank_mask:0xc' % (SM + r, SM + 2 + r, idm))
        for r in range(4):
            A('v_mov_b32_dpp v%d, v%d %s row_mask:0xf bank_mask:0xc' % (X + r, Y + r, idm))
        A('v_max3_f32 v%d, v%d, v%d, v%d' % (t, SM, SM + 1, X))
        A('v_max3_f32 v%d, v%d, v%d, v%d' % (w, X + 1, X + 2, X + 3))
        A('v_max_f32 v%d, v%d, v%d' % (t, t, w))
        A('v_mov_b64 %s, 0' % v(PL, 2))
        A('v_max_f32_dpp v%d, v%d, v%d row_ror:8 %s' % (t, t, t, full))
        for sw in ('v_permlane16_swap_b32', 'v_permlane32_swap_b32'):
            A('v_mov_b32 v%d, v%d' % (w, t))
            A('%s v%d, v%d' % (sw, t, w))
            A('v_max_f32 v%d, v%d, v%d' % (t, t, w))
        A('v_mul_f32 v%d, 0x%x, v%d' % (t, f2u(-SCL), t))
        for r in (X, X + 2, SM):
            A('v_pk_fma_f32 %s, %s, %s, %s op_sel_hi:[1,0,0]' % (v(r, 2), v(r, 2), s(sSCL, 2), v(t, 2)))
        for r in (X, X + 1, X + 2, X + 3, SM, SM + 1):
            A('v_exp_f32 v%d, v%d' % (r, r))
        A('v_cvt_pk_bf16_f32 v%d, v%d, v%d' % (P, X, X + 1))
        A('v_cvt_pk_bf16_f32 v%d, v%d, v%d' % (P + 1, X + 2, X + 3))
        A('v_cvt_pk_bf16_f32 v%d, v%d, v%d' % (t, SM, SM + 1))
        A('v_mov_b32_dpp v%d, v%d row_ror:8 %s' % (P + 2, P, full))
        A('v_mov_b32_dpp v%d, v%d row_ror:8 %s' % (P + 3, P + 1, full))
        A('v_mov_b32_dpp v%d, v%d %s row_mask:0x3 bank_mask:0xf' % (PL, t, idm))
        A('v_mov_b32_dpp v%d, v%d row_ror:8 row_mask:0x3 bank_mask:0xf' % (PL + 1, t))
        A('v_mfma_f32_16x16x32_bf16 %s, %s, %s, 0' % (v(L, 4), v(ONE, 4), v(P, 4)))
        A('v_mov_b32_dpp v%d, v%d %s row_mask:0xc bank_mask:0xf' % (PH, t, idm))
        A('v_mov_b32_dpp v%d, v%d row_ror:8 row_mask:0xc bank_mask:0xf' % (PH + 1, t))
        A('v_mfma_f32_16x16x32_bf16 %s, %s, %s, 0' % (v(O0, 4), v(VX, 4), v(P, 4)))
        A('v_mov_b64 %s, 0' % v(X, 2))
        A('v_mov_b64 %s, 0' % v(X + 2, 2))
        A('v_mfma_f32_16x16x32_bf16 %s, %s, %s, 0' % (v(O1, 4), v(VX + 4, 4), v(P, 4)))
        A('v_mfma_f32_16x16x16_bf16 %s, %s, %s, %s' % (v(L, 4), v(ONE, 2), v(PL, 2), v(L, 4)))
        if self.ntile == 3:
            A('v_mov_b64 %s, 0' % v(Y, 2))
            A('v_mov_b64 %s, 0' % v(Y + 2, 2))
        A('v_mfma_f32_16x16x16_bf16 %s, %s, %s, %s' % (v(O0, 4), v(VM, 2), v(PL, 2), v(O0, 4)))
        A('v_mfma_f32_16x16x16_bf16 %s, %s, %s, %s' % (v(O1, 4), v(VM, 2), v(PH, 2), v(O1, 4)))
        A('v_mov_b64 %s, 0' % v(ACCV, 2))
        A('v_mov_b64 %s, 0' % v(ACCV + 2, 2))
        A('v_rcp_f32 v%d, v%d' % (t, L))
        for r in (O0, O0 + 2, O1, O1 + 2):
            A('v_pk_mul_f32 %s, %s, %s op_sel_hi:[1,0]' % (v(r, 2), v(r, 2), v(t, 2)))
        for r in range(4):
            A('v_cvt_pk_bf16_f32 v%d, v%d, v%d' % (T0 + r, O0 + r, O1 + r))
        A('ds_write_b128 v%d, %s' % (vOXW, v(T0, 4)))
        for i in range(3):
            for x in self.d_reads(i):
                A(x)
        A('s_waitcnt lgkmcnt(6)')
        A('s_barrier')

    def phase_d(self):
        A = self.A
        for c in range(4):
            A('ds_read_b128 %s, v%d offset:%d' % (v(BST + 4 * c, 4), vAR, L_OX + c * 512))
        flav = '' if self.fast else ' sc1'

        def put(t):
            r = ACCV + 4 * t
            A('v_cvt_pk_bf16_f32 v%d, v%d, v%d' % (r, r, r + 1))
            A('v_cvt_pk_bf16_f32 v%d, v%d, v%d' % (r + 1, r + 2, r + 3))
            A('buffer_store_dwordx2 %s, v%d, %s, %s offen%s' % (v(r, 2), vPST, srd(SRD_WS), s(sPT0 + t), flav))
        q, later = ['a0', 'a1', 'a2', 'a3'], []

        def need(x):
            if x in q:
                k = max(i for i, y in enumerate(q) if y == x)
                A('s_waitcnt lgkmcnt(%d)' % (len(q) - 1 - k))
                del q[:k + 1]
        for t in range(self.ntile):
            for c in range(4):
                need('a%d' % c)
                reload = []
                if (t, c) in self.wo:
                    A(smf(ACCV + 4 * t, BST + 4 * c, self.wo[t, c]))
                else:
                    i = self.d_ops.index((t, c))
                    need(i)
                    A(smf(ACCV + 4 * t, BST + 4 * c, self.d_slots[i % 3]))
                    reload = [(x, i + 3) for x in self.d_reads(i + 3)]
                for x, tg in later[:1]:
                    A(x)
                    q.append(tg)
                later = later[1:] + reload
            if t == 2:
                put(0)
        for t in range(1 if self.ntile == 3 else 0, self.ntile):
            put(t)

    def reduce(self):
        A = self.A
        top, retry = A.label('red'), A.label('red_retry')
        R, SEL, Z, t = BST, AST, AST + 4, AST + 8
        A('v_mov_b64 %s, 0' % v(SEL, 2))
        A('v_mov_b64 %s, 0' % v(SEL + 2, 2))
        for r in range(4):
            A('v_mov_b32_dpp v%d, v%d quad_perm:[0,1,2,3] row_mask:0xf bank_mask:0x%x' % (SEL + r, vSEL, 1 << r))
        def issue():
            for i in range(4):
                A('buffer_load_dwordx4 %s, v%d, %s, %s offen offset:%d sc1'
                  % (v(R + 4 * i, 4), vLIN, srd(SRD_WS), s(sPL), i * 1024))

        def prod(i):
            A('v_mfma_f32_16x16x32_bf16 %s, %s, %s, %s' % (v(Z, 4), v(R + 4 * i, 4), v(SEL, 4), v(Z, 4) if i else '0'))

        def scan(i):
            x = R + 4 * i
            if i == 0:
                A('v_max3_u32 v%d, v%d, v%d, v%d' % (t, x, x + 1, x + 2))
                A('v_max_u32 v%d, v%d, v%d' % (t, t, x + 3))
            else:
                A('v_max3_u32 v%d, v%d, v%d, v%d' % (t, t, x, x + 1))
                A('v_max3_u32 v%d, v%d, v%d, v%d' % (t, t, x + 2, x + 3))
            if i == 3:
                A('v_cmp_eq_u32 vcc, -1, v%d' % t)
        self.warm(OPT.get('d_red', 8))
        issue()
        self.warm(OPT.get('d_red2', 12))
        for i in range(4):
            A('s_waitcnt vmcnt(%d)' % (3 - i))
            prod(i)
            scan(i)
        A('s_cbranch_vccnz %s' % retry)
        A('%s:' % top)
        self.cold.append((retry, self.retry_loop(
            'red', issue, 4, lambda: [scan(i) for i in range(4)], lambda: [prod(i) for i in range(4)], top)))
        A('v_permlane32_swap_b32 v%d, v%d' % (Z, Z + 2))
        A('v_permlane32_swap_b32 v%d, v%d' % (Z + 1, Z + 3))
        A('v_pk_add_f32 %s, %s, %s' % (v(Z, 2), v(Z, 2), v(Z + 2, 2)))
        A('v_cvt_pk_bf16_f32 v%d, v%d, v%d' % (t, Z, Z + 1))
        A('s_mov_b64 exec, %s' % s(sEXM, 2))
        if OPT.get('xfirst', 0) == 1:
            A('s_add_u32 %s, %s, 5120' % (s(sT), s(sMXW)))
            A('buffer_store_dword v%d, v%d, %s, %s offen sc1' % (t, vMST, srd(SRD_WS), s(sT)))
        A('buffer_store_dword v%d, v%d, %s, %s offen%s'
          % (t, vMST, srd(SRD_WS), s(sMOW), '' if self.fast else ' sc1'))
        A('s_mov_b64 exec, -1')

    def repoison(self):
        A = self.A
        A('v_mov_b64 %s, -1' % v(T0, 2))
        A('v_mov_b64 %s, -1' % v(T0 + 2, 2))
        for i in range(4):
            A('buffer_store_dwordx4 %s, v%d, %s, %s offen offset:%d%s'
              % (v(T0, 4), vLIN, srd(SRD_WS), s(sPLP), i * 1024, '' if self.fast else ' sc1'))

    def advance(self, first=False):
        A = self.A
        for r in range(0, 8, 2):
            A('v_mov_b64 %s, %s' % (v(VX + r, 2), v(VXN + r, 2)))
        for r in range(0, 12, 2):
            A('v_mov_b64 %s, 0' % v(ACCV + r, 2))
        A('s_xor_b32 %s, %s, 0x%x' % (s(sKXM), s(sKXM), 8192))
        for r in (sKVK, sKVV):
            A('s_add_u32 %s, %s, 0x%x' % (s(r), s(r), 32 * 8192))
        if not first:
            A('s_add_u32 %s, %s, 1' % (s(sSTEP), s(sSTEP)))
            A('s_mov_b32 %s, %s' % (s(sPLP), s(sPL)))
            for r in (sPT0, sPT1, sPT2, sPL):
                A('s_add_u32 %s, %s, %s' % (s(r), s(r), s(sTAG)))
            A('s_sub_u32 %s, 0, %s' % (s(sTAG), s(sTAG)))
            for r in (sMO, sMX, sMOW, sMXW):
                A('s_add_u32 %s, %s, 5120' % (s(r), s(r)))
            A('s_add_u32 %s, %s, 0x%x' % (s(sPUB), s(sPUB), 32 * 2048))
            A('s_add_u32 %s, %s, 0x%x' % (s(sPUBV), s(sPUBV), 32 * 2048))
        A('s_add_u32 %s, %s, 5120' % (s(sTOF), s(sMOW)))

    def prologue(self, bail):
        A = self.A
        A('rec_load%d:' % self.cls)
        self.load_weights()
        self.hooks.rec_wait_start(A, bail)
        for x in self.prefetch()[:5]:
            A(x)
        A('s_waitcnt vmcnt(0)')
        self.advance(first=True)
        A('s_barrier')
        if self.cls == 1:
            R = self.LATE
            A('ds_read_b128 %s, v%d offset:%d' % (v(R[0], 4), vML4, L_MEMT + 5120))
            A('ds_read_b128 %s, v%d offset:%d' % (v(R[1], 4), vML4, L_MEMT + 6144))
            A('ds_read_b64 %s, v%d offset:%d' % (v(R[2], 2), vML2, L_MEMT + 5120))
            A('s_waitcnt lgkmcnt(0)')
            for r in list(range(R[0], R[0] + 8)) + [R[2], R[2] + 1]:
                A('v_min_u32 v%d, -2, v%d' % (r, r))
            A('buffer_store_dwordx4 %s, v%d, %s, %s offen sc1' % (v(R[0], 4), vML4, srd(SRD_WS), s(sMX)))
            A('buffer_store_dwordx4 %s, v%d, %s, %s offen offset:1024 sc1' % (v(R[1], 4), vML4, srd(SRD_WS), s(sMX)))
            A('buffer_store_dwordx2 %s, v%d, %s, %s offen sc1' % (v(R[2], 2), vML2, srd(SRD_WS), s(sMX)))
            A('s_waitcnt vmcnt(0)')
        if self.stamps:
            A('s_memrealtime %s' % s(sST, 2))
            A('s_memtime %s' % s(sST + 2, 2))
            A('s_waitcnt lgkmcnt(0)')
            A('s_mov_b32 %s, %s' % (s(sSTAMP + 10), s(sST)))
            A('s_mov_b32 %s, %s' % (s(sSTAMP + 11), s(sST + 2)))
            A('s_mov_b32 %s, 0' % s(sSTAMP + 15))
        self.b_first()
        A('s_cmp_lg_u32 %s, 0' % s(sFAST))
        A('s_cbranch_scc1 rec%df_a1' % self.cls)
        A('s_branch rec%ds_a1' % self.cls)

    def emit(self, bail):
        A = self.A
        self.cold = []
        tag = self.tag
        A('%s_step:' % tag)
        if self.cls == 0:
            self.advance()
            A('s_waitcnt vmcnt(%d)' % (2 if OPT.get('xfirst', 0) == 1 else 1))
            self.b_first()
        else:
            A('s_barrier')
            self.stamp(8, 41)
        if self.cls == 1:
            self.poll_own()
        elif not OPT.get('xfirst', 0):
            A('s_barrier')
            A('s_mov_b64 exec, %s' % s(sEXM, 2))
            A('buffer_store_dword v%d, v%d, %s, %s offen sc1' % (AST + 8, vMST, srd(SRD_WS), s(sMXW)))
            A('s_mov_b64 exec, -1')
        if self.cls == 1:
            self.trace(vMST)
        self.stamp(0, 41)
        A('s_barrier')
        if self.cls == 0 and OPT.get('xfirst', 0) == 2:
            A('s_mov_b64 exec, %s' % s(sEXM, 2))
            A('buffer_store_dword v%d, v%d, %s, %s offen sc1' % (AST + 8, vMST, srd(SRD_WS), s(sMXW)))
            A('s_mov_b64 exec, -1')
        self.stamp(14, 41)
        A('%s_a1:' % tag)
        self.stamp(1)
        self.phase_a1()
        if self.cls == 0:
            self.stamp(3)
            self.repoison()
        A('s_waitcnt lgkmcnt(0)')
        if self.cls == 1:
            self.trace(vTCH)
        A('s_barrier')
        self.stamp(2)
        self.phase_a2()
        self.stamp(4)
        self.phase_s()
        A('s_cmp_eq_u32 %s, %d' % (s(sSTEP), NSEG - 1))
        A('s_cbranch_scc1 %s_last' % tag)
        self.stamp(5)
        self.softmax_pv()
        self.stamp(6)
        self.phase_d()
        self.trace(vML4 if self.cls == 0 else vSEL)
        self.stamp(7)
        if self.cls == 1:
            A('s_waitcnt vmcnt(2)')
            self.advance()
            self.b_first()
            A('s_branch %s_step' % tag)
        else:
            idle = A.label('idle')
            A('s_cmp_ge_u32 %s, 40' % s(sRED))
            A('s_cbranch_scc1 %s' % idle)
            self.reduce()
            self.trace(vML2)
            self.stamp(8)
            A('s_barrier')
            self.hooks.rec_chores(A, bail)
            A('s_branch %s_step' % tag)
            A('%s:' % idle)
            A('s_waitcnt vmcnt(3)')
            A('s_barrier')
            A('s_branch %s_step' % tag)

        A('%s_last:' % tag)
        A('s_waitcnt vmcnt(0)')
        self.hooks.rec_signal_last(A)
        if self.stamps:
            A('s_memrealtime %s' % s(sST, 2))
            A('s_memtime %s' % s(sST + 2, 2))
            A('s_waitcnt lgkmcnt(0)')
            A('s_mov_b32 %s, %s' % (s(sSTAMP + 12), s(sST)))
            A('s_mov_b32 %s, %s' % (s(sSTAMP + 13), s(sST + 2)))
            A('s_mov_b32 %s, %s' % (s(sSTAMP + 9), s(sSPIN)))
            for k in range(16):
                A('v_writelane_b32 v%d, %s, %d' % (T0 + 1, s(sSTAMP + k), k))
            A('s_lshl_b32 %s, %s, 5' % (s(sT), s(sTEAM)))
            A('s_add_u32 %s, %s, %s' % (s(sT), s(sT), s(sHEAD)))
            A('s_lshl_b32 %s, %s, 2' % (s(sT), s(sT)))
            A('s_add_u32 %s, %s, %s' % (s(sT), s(sT), s(sWAVE)))
            A('s_lshl_b32 %s, %s, 7' % (s(sT), s(sT)))
            A('s_add_u32 %s, %s, 0x%x' % (s(sT), s(sT), WS_STAMP))
            A('v_lshrrev_b32 v%d, 2, v%d' % (T0, vLIN))
            if OPT.get('trace', 0):
                A('s_sub_u32 %s, %s, 0x%x' % (s(sOWN), s(sT), WS_STAMP))
                A('s_lshl_b32 %s, %s, 3' % (s(sOWN), s(sOWN)))
                A('s_add_u32 %s, %s, 0x%x' % (s(sOWN), s(sOWN), WS_O))
                for k, r in enumerate((vML4, vML2, vML2) if self.cls == 0 else (vMST, vTCH, vSEL)):
                    A('buffer_store_dword v%d, v%d, %s, %s offen offset:%d' % (r, T0, srd(SRD_WS), s(sOWN), k * 256))
            A('s_mov_b32 exec_hi, 0')
            A('buffer_store_dword v%d, v%d, %s, %s offen' % (T0 + 1, T0, srd(SRD_WS), s(sT)))
            A('s_waitcnt vmcnt(0)')
        A('s_endpgm')
        for name, body in self.cold:
            A('%s:' % name)
            body(bail)


def rec_setup(A):
    build_srd(A, SRD_A, 'mem0')
    t0, t1, t2, t3 = T0, T0 + 1, T0 + 2, T0 + 3
    A('v_and_b32 v%d, 7, v0' % t0)
    A('v_lshrrev_b32 v%d, 3, v0' % t1)
    A('v_lshrrev_b32 v%d, 3, v%d' % (t2, t1))
    A('v_lshl_add_u32 v%d, v%d, 3, v%d' % (t2, t2, t0))
    A('v_and_b32 v1, 7, v%d' % t1)
    A('v_lshlrev_b32 v%d, 4, v%d' % (t2, t2))
    A('v_lshl_add_u32 v%d, v1, 1, v%d' % (t2, t2))
    A('v_and_b32 v%d, 16, v%d' % (t3, t1))
    A('v_and_b32 v1, 3, v%d' % t1)
    A('v_lshl_add_u32 v%d, v1, 2, v%d' % (t3, t3))
    A('v_bfe_u32 v1, v%d, 2, 1' % t1)
    A('v_lshl_add_u32 v%d, v1, 1, v%d' % (t3, t3))
    A('v_bfe_u32 v1, v%d, 3, 1' % t1)
    A('v_add_u32 v%d, v1, v%d' % (t3, t3))
    A('v_mul_u32_u24 v%d, 640, v%d' % (t0, t0))
    A('v_add_lshl_u32 v%d, v%d, v%d, 1' % (t0, t0, t3))
    A('s_mul_i32 %s, %s, 640' % (s(sOWN), s(sTEAM)))
    A('s_sub_u32 %s, 640, %s' % (s(sLATE), s(sOWN)))
    for T in range(20):
        A('buffer_load_ushort v%d, v%d, %s, %s offen offset:%d'
          % (32 + T, t0, srd(SRD_A), s(sOWN if T < 10 else sLATE), (T % 10) * 64))
    for T in range(20):
        A('s_waitcnt vmcnt(%d)' % (19 - T))
        A('ds_write_b16 v%d, v%d offset:%d' % (t2, 32 + T, L_MEMT + T * 512))
    for r, n in ((SRD_A, 'wq'), (SRD_B, 'wk'), (SRD_C, 'wv'), (SRD_D, 'wo')):
        build_srd(A, r, n)
    A('v_and_b32 v0, 63, v0')
    n, g, tt, aa = T0, T0 + 1, T0 + 2, T0 + 3
    w = s(sWAVE)
    A('v_and_b32 v%d, 15, v0' % n)
    A('v_lshrrev_b32 v%d, 4, v0' % g)
    A('v_bfe_u32 v%d, v0, 2, 2' % tt)
    A('v_and_b32 v%d, 1, v0' % aa)
    A('v_bfe_u32 v%d, v0, 3, 1' % vIDX)
    A('v_mul_u32_u24 v%d, 0x5555, v%d' % (vIDX, vIDX))
    A('v_add_u32 v%d, 0x8888, v%d' % (vIDX, vIDX))
    A('v_lshlrev_b32 v%d, 4, v0' % vLIN)
    A('v_and_b32 v%d, 7, v0' % vAR)
    A('v_lshl_add_u32 v%d, v%d, 3, v%d' % (vAR, g, vAR))
    A('v_lshlrev_b32 v%d, 4, v%d' % (vAR, vAR))
    A('s_mul_i32 %s, %s, %d' % (s(sT), w, 18 * 2048))
    A('s_mul_i32 %s, %s, %d' % (s(sOWN), w, 14 * 2048))
    A('s_add_u32 %s, %s, %d' % (s(sOWN), s(sOWN), 8 * 2048))
    A('s_cmp_lt_u32 %s, 2' % w)
    A('s_cselect_b32 %s, %s, %s' % (s(sT), s(sT), s(sOWN)))
    A('s_add_u32 %s, %s, %d' % (s(sT), s(sT), L_WL))
    A('v_add_u32 v%d, %s, v%d' % (vBL, s(sT), vLIN))
    A('v_lshrrev_b32 v%d, 1, v%d' % (vQW, g))
    A('v_mul_u32_u24 v%d, 288, v%d' % (vQW, vQW))
    A('v_lshl_add_u32 v%d, v%d, 4, v%d' % (vQW, n, vQW))
    A('v_and_b32 v%d, 1, v%d' % (T0 + 4, g))
    A('v_lshl_add_u32 v%d, v%d, 3, v%d' % (vQW, T0 + 4, vQW))
    A('s_mul_i32 %s, %s, 576' % (s(sT), w))
    A('s_add_u32 %s, %s, %d' % (s(sT), s(sT), L_QT))
    A('v_add_u32 v%d, %s, v%d' % (vQW, s(sT), vQW))
    A('v_and_b32 v%d, 1, v%d' % (vQR, tt))
    A('v_mul_u32_u24 v%d, 288, v%d' % (vQR, vQR))
    A('v_lshrrev_b32 v%d, 1, v%d' % (T0 + 5, tt))
    A('v_lshl_add_u32 v%d, v%d, 2, v%d' % (T0 + 5, g, T0 + 5))
    A('v_lshl_add_u32 v%d, v%d, 4, v%d' % (vQR, T0 + 5, vQR))
    A('v_lshl_add_u32 v%d, v%d, 3, v%d' % (vQR, aa, vQR))
    A('v_add_u32 v%d, %d, v%d' % (vQR, L_QT, vQR))
    A('s_lshl_b32 %s, %s, 9' % (s(sT), w))
    A('s_add_u32 %s, %s, %d' % (s(sT), s(sT), L_OX))
    A('v_bfe_u32 v%d, v0, 3, 1' % vOXW)
    A('v_lshl_add_u32 v%d, v%d, 11, v%d' % (vOXW, vOXW, vAR))
    A('v_add_u32 v%d, %s, v%d' % (vOXW, s(sT), vOXW))
    A('v_lshlrev_b32 v%d, 4, v%d' % (vSEL, aa))
    A('v_mov_b32 v%d, 0x3f80' % (T0 + 5))
    A('v_lshlrev_b32 v%d, v%d, v%d' % (vSEL, vSEL, T0 + 5))
    A('v_lshrrev_b32 v%d, 3, v%d' % (vPST, n))
    A('v_lshrrev_b32 v%d, 1, v%d' % (T0 + 5, g))
    A('v_lshl_add_u32 v%d, v%d, 1, v%d' % (vPST, vPST, T0 + 5))
    A('v_lshlrev_b32 v%d, 12, v%d' % (vPST, vPST))
    A('v_lshl_add_u32 v%d, v%d, 6, v%d' % (vPST, T0 + 4, vPST))
    A('v_and_b32 v%d, 7, v0' % (T0 + 5))
    A('v_lshl_add_u32 v%d, v%d, 3, v%d' % (vPST, T0 + 5, vPST))
    A('v_min_u32 v%d, 39, v0' % vTCH)
    A('v_lshlrev_b32 v%d, 7, v%d' % (vTCH, vTCH))
    A('s_lshl_b32 %s, %s, 5' % (s(sRED), w))
    A('s_add_u32 %s, %s, %s' % (s(sRED), s(sRED), s(sHEAD)))
    A('s_mul_i32 %s, %s, 40' % (s(sPL), s(sTEAM)))
    A('s_add_u32 %s, %s, %s' % (s(sPL), s(sPL), s(sRED)))
    A('s_lshl_b32 %s, %s, 12' % (s(sPL), s(sPL)))
    A('s_add_u32 %s, %s, 0x%x' % (s(sPL), s(sPL), WS_PART))
    A('s_cmp_lt_u32 %s, 40' % s(sRED))
    A('s_cselect_b32 %s, %s, 0x40000000' % (s(sPL), s(sPL)))
    A('s_mov_b32 %s, 0x40000000' % s(sPLP))
    A('v_bfe_u32 v%d, v0, 2, 1' % (T0 + 5))
    A('v_lshl_add_u32 v%d, v%d, 1, v%d' % (vMST, T0 + 4, T0 + 5))
    A('v_lshl_add_u32 v%d, v%d, 1, v%d' % (vMST, vMST, aa))
    A('v_bfe_u32 v%d, v0, 3, 1' % (T0 + 5))
    A('v_lshl_add_u32 v%d, v%d, 1, v%d' % (vMST, vMST, T0 + 5))
    A('v_lshrrev_b32 v%d, 5, v0' % (T0 + 5))
    A('v_lshl_add_u32 v%d, v%d, 1, v%d' % (vMST, vMST, T0 + 5))
    A('s_lshl_b32 %s, %s, 7' % (s(sT), s(sRED)))
    A('v_lshl_add_u32 v%d, v%d, 2, %s' % (vMST, vMST, s(sT)))
    A('s_mov_b32 %s, 0x33333333' % s(sEXM))
    A('s_mov_b32 %s, 0x33333333' % s(sEXM + 1))
    A('s_and_b32 %s, %s, 1' % (s(sT), w))
    A('s_mul_i32 %s, %s, 2560' % (s(sT), s(sT)))
    A('v_add_u32 v%d, %s, v%d' % (vML4, s(sT), vLIN))
    A('s_add_u32 %s, %s, 2048' % (s(sT), s(sT)))
    A('v_lshl_add_u32 v%d, v0, 3, %s' % (vML2, s(sT)))
    A('s_lshl_b32 %s, %s, 11' % (s(sT), w))
    A('v_add_u32 v%d, %s, v%d' % (vVX, s(sT), vLIN))
    A('s_add_u32 %s, %s, %d' % (s(sKXM), s(sT), L_KX))
    A('s_lshl_b32 %s, %s, 9' % (s(sT), w))
    A('v_lshl_add_u32 v%d, v0, 3, %s' % (vPUB, s(sT)))
    A('s_mov_b32 %s, 0x%x' % (s(sSCL), f2u(SCL)))
    A('s_mov_b32 %s, 0x%x' % (s(sSCL + 1), f2u(SCL)))
    A('s_mov_b32 %s, 0' % s(sSTEP))
    A('s_mov_b32 %s, %d' % (s(sTAG), 80 * 4096))
    A('s_mov_b32 %s, 0' % s(sSPIN))
    A('s_mul_i32 %s, %s, %d' % (s(sMO), s(sTEAM), 64 * 5120))
    A('s_sub_u32 %s, %d, %s' % (s(sMXW), WS_MEMX + 64 * 5120, s(sMO)))
    A('s_cmp_lt_u32 %s, 40' % s(sRED))
    A('s_cselect_b32 %s, %s, 0x40000000' % (s(sMXW), s(sMXW)))
    A('s_add_u32 %s, %s, 0x%x' % (s(sMX), s(sMO), WS_MEMX))
    A('s_add_u32 %s, %s, 0x%x' % (s(sMO), s(sMO), WS_MEMO))
    A('s_add_u32 %s, %s, 5120' % (s(sMOW), s(sMO)))
    A('s_lshl_b32 %s, %s, 13' % (s(sKVK), s(sHEAD)))
    A('s_add_u32 %s, %s, 0x%x' % (s(sKVV), s(sKVK), WS_V))
    A('s_add_u32 %s, %s, 0x%x' % (s(sKVK), s(sKVK), WS_K))
    A('s_lshl_b32 %s, %s, 11' % (s(sT), s(sHEAD)))
    A('s_add_u32 %s, %s, 0x%x' % (s(sPUB), s(sT), WS_KM))
    A('s_add_u32 %s, %s, 0x%x' % (s(sPUBV), s(sT), WS_VM))
    A('s_cmp_eq_u32 %s, 0' % s(sTEAM))
    A('s_cselect_b32 %s, %s, 0x40000000' % (s(sPUB), s(sPUB)))
    A('s_cselect_b32 %s, 0x40000000, %s' % (s(sPUBV), s(sPUBV)))
    A('s_waitcnt lgkmcnt(0)')


def emit_rec(A, hooks, bail, stamps=False):
    rec_setup(A)
    A('s_cmp_ge_u32 %s, 2' % s(sWAVE))
    A('s_cbranch_scc1 rec_load1')
    for cls in (0, 1):
        Rec(A, cls, True, hooks, stamps).prologue(bail)
        for fast in (True, False):
            Rec(A, cls, fast, hooks, stamps).emit(bail)
```

```python
from common import *

sXCC, sRANK, sA, sB, sC, sX0, sX1, sSP = 72, 73, 74, 75, 76, 77, 78, 79
sCNT = 80


def assign_roles(A, bail, rec_label, worker_label):
    A('s_getreg_b32 %s, hwreg(HW_REG_XCC_ID, 0, 3)' % s(sXCC))
    A('s_mov_b32 %s, 0' % s(sSP))
    first = A.label('arrived')
    A('v_mov_b32 v2, 0')
    A('s_cmp_lg_u32 %s, 0' % s(sWAVE))
    A('s_cbranch_scc1 %s' % first)
    A('s_lshl_b32 %s, %s, 4' % (s(sA), s(sXCC)))
    A('v_mov_b32 v1, 1')
    A('s_mov_b64 exec, 1')
    A('buffer_atomic_add v1, v2, %s, %s offen sc0' % (srd(SRD_DBG), s(sA)))
    A('s_waitcnt vmcnt(0)')
    A('ds_write_b32 v2, v1')
    A('s_waitcnt lgkmcnt(0)')
    A('s_mov_b64 exec, -1')
    A('%s:' % first)
    A('s_barrier')
    A('ds_read_b32 v1, v2')
    A('v_and_b32 v3, 7, v0')
    A('v_lshlrev_b32 v3, 4, v3')
    A('s_waitcnt lgkmcnt(0)')
    A('v_readfirstlane_b32 %s, v1' % s(sRANK))
    top, retry = A.label('census'), A.label('census_retry')
    A('%s:' % top)
    A('buffer_load_dword v1, v3, %s, 0 offen sc1' % srd(SRD_DBG))
    A('s_waitcnt vmcnt(0)')
    for i in range(8):
        A('v_readlane_b32 %s, v1, %d' % (s(sCNT + i), i))
    A('s_add_u32 %s, %s, %s' % (s(sA), s(sCNT), s(sCNT + 1)))
    for i in range(2, 8):
        A('s_add_u32 %s, %s, %s' % (s(sA), s(sA), s(sCNT + i)))
    A('s_cmp_lt_u32 %s, 256' % s(sA))
    go = A.label('census_ok')
    A('s_cbranch_scc0 %s' % go)
    spin_guard(A, sSP, top, bail)
    A('%s:' % go)
    A('s_barrier')
    A('s_mov_b32 %s, 8' % s(sX0))
    A('s_mov_b32 %s, 8' % s(sX1))
    for i in range(7, -1, -1):
        A('s_cmp_ge_u32 %s, 32' % s(sCNT + i))
        A('s_cselect_b32 %s, %s, %s' % (s(sX1), s(sX0), s(sX1)))
        A('s_cselect_b32 %s, %d, %s' % (s(sX0), i, s(sX0)))
    A('s_mov_b32 %s, %s' % (s(sA), s(sRANK)))
    for i in range(7):
        A('s_cmp_gt_u32 %s, %d' % (s(sXCC), i))
        A('s_cselect_b32 %s, %s, 0' % (s(sB), s(sCNT + i)))
        A('s_add_u32 %s, %s, %s' % (s(sA), s(sA), s(sB)))
    slow, notteam = A.label('slowmap'), A.label('notteam')
    A('s_cmp_ge_u32 %s, 8' % s(sX1))
    A('s_cbranch_scc1 %s' % slow)
    A('s_mov_b32 %s, 1' % s(sFAST))
    A('s_mov_b32 %s, %s' % (s(sHEAD), s(sRANK)))
    A('s_cmp_ge_u32 %s, 32' % s(sRANK))
    A('s_cbranch_scc1 %s' % notteam)
    A('s_mov_b32 %s, 0' % s(sTEAM))
    A('s_cmp_eq_u32 %s, %s' % (s(sXCC), s(sX0)))
    A('s_cbranch_scc1 %s' % rec_label)
    A('s_mov_b32 %s, 1' % s(sTEAM))
    A('s_cmp_eq_u32 %s, %s' % (s(sXCC), s(sX1)))
    A('s_cbranch_scc1 %s' % rec_label)
    A('%s:' % notteam)
    A('s_cmp_ge_u32 %s, %s' % (s(sXCC), s(sX0)))
    A('s_cselect_b32 %s, 32, 0' % s(sB))
    A('s_sub_u32 %s, %s, %s' % (s(sA), s(sA), s(sB)))
    A('s_cmp_ge_u32 %s, %s' % (s(sXCC), s(sX1)))
    A('s_cselect_b32 %s, 32, 0' % s(sB))
    A('s_sub_u32 %s, %s, %s' % (s(sWIDX), s(sA), s(sB)))
    A('s_branch %s' % worker_label)
    A('%s:' % slow)
    A('s_mov_b32 %s, 0' % s(sFAST))
    A('s_and_b32 %s, %s, 31' % (s(sHEAD), s(sA)))
    A('s_lshr_b32 %s, %s, 5' % (s(sTEAM), s(sA)))
    A('s_cmp_lt_u32 %s, 64' % s(sA))
    A('s_cbranch_scc1 %s' % rec_label)
    A('s_sub_u32 %s, %s, 64' % (s(sWIDX), s(sA)))
    A('s_branch %s' % worker_label)
```

```python
import math
from common import *

F_H = 0x0000
F_QKV = 0x0400
F_KM = 0x0800
F_O = 0x1000
F_XA = 0x5000
F_T = 0x9000
F_X1 = 0xB000
F_U = 0xC000
F_END = 0xE000
DBG_INIT = 4
DBG_MOD = 128

sSP, sT, sT2, sT3, sI, sOFF, sOFF2, sOFF3, sCOPY, sSLICE, sRT, sFL = range(72, 84)
sM = 84
vL, vLIN, vT = 0, 1, 2

OOB = 0x40000000
WS = srd(SRD_WS)


def mfma(acc, x, y, first=False):
    return 'v_mfma_f32_16x16x32_bf16 %s, %s, %s, %s' % (v(acc, 4), u(x, 4), u(y, 4), '0' if first else v(acc, 4))


def rnd(d, x):
    return 'v_cvt_pk_bf16_f32 v%d, 0, v%d' % (d, x)


def unpack(A, dst, src, n):
    for i in reversed(range(n)):
        A('v_and_b32 v%d, 0xffff0000, v%d' % (dst + 2 * i + 1, src + i))
        A('v_lshlrev_b32 v%d, 16, v%d' % (dst + 2 * i, src + i))


def wait_ge(A, bail, srd_n, voff, soff, nlanes, need, tmp=vT, sleep=True, sp=sSP):
    top, ok = A.label('wait'), A.label('ready')
    A('%s:' % top)
    A('buffer_load_dword v%d, v%d, %s, %s offen sc1' % (tmp, voff, srd(srd_n), soff))
    A('s_waitcnt vmcnt(0)')
    A('v_cmp_gt_u32 vcc, %s, v%d' % (need, tmp))
    if nlanes < 64:
        A('s_and_b32 vcc_lo, vcc_lo, 0x%x' % ((1 << min(nlanes, 32)) - 1))
        A('s_and_b32 vcc_hi, vcc_hi, 0x%x' % ((1 << max(nlanes - 32, 0)) - 1))
    A('s_cmp_eq_u64 vcc, 0')
    A('s_cbranch_scc1 %s' % ok)
    if sleep:
        A('s_sleep 1')
    spin_guard(A, sp, top, bail)
    A('%s:' % ok)


def signal(A, srd_n, soff, val, tmp=vT):
    A('v_mov_b32 v%d, %s' % (tmp, val))
    A('v_mov_b32 v%d, 0' % (tmp + 1))
    A('s_mov_b64 exec, 1')
    A('buffer_store_dword v%d, v%d, %s, %s offen sc1' % (tmp, tmp + 1, srd(srd_n), soff))
    A('s_mov_b64 exec, -1')


def on_wave0(A, fn):
    skip = A.label('notw0')
    A('s_cmp_lg_u32 %s, 0' % s(sWAVE))
    A('s_cbranch_scc1 %s' % skip)
    fn()
    A('%s:' % skip)


def wait_init(A, bail, tmp=vT):
    A('v_and_b32 v%d, 7, v%d' % (tmp + 1, vL))
    A('v_lshlrev_b32 v%d, 4, v%d' % (tmp + 1, tmp + 1))
    wait_ge(A, bail, SRD_DBG, tmp + 1, str(DBG_INIT), 8, '24', tmp)


def wait_mod(A, bail):
    A('v_lshlrev_b32 v%d, 2, v%d' % (vT + 1, vL))
    A('s_mov_b32 %s, %d' % (s(sT), DBG_MOD))
    wait_ge(A, bail, SRD_DBG, vT + 1, s(sT), 30, '1')


def xor_reduce(A, x, tmp, op):
    for sw in ('v_permlane16_swap_b32', 'v_permlane32_swap_b32'):
        A('v_mov_b32 v%d, v%d' % (tmp, x))
        A('%s v%d, v%d' % (sw, x, tmp))
        A('%s v%d, v%d, v%d' % (op, x, x, tmp))


def row_sum(A, X, n, acc, vW, vR, lds, square_from=None):
    if square_from is None:
        A('v_pk_add_f32 %s, %s, %s' % (v(acc, 2), v(X, 2), v(X + 2, 2)))
        for i in range(4, n, 2):
            A('v_pk_add_f32 %s, %s, %s' % (v(acc, 2), v(acc, 2), v(X + i, 2)))
    else:
        d = acc + 2
        for i in range(0, n, 2):
            A('v_pk_add_f32 %s, %s, %s op_sel_hi:[1,0] neg_lo:[0,1] neg_hi:[0,1]' % (v(d, 2), v(X + i, 2), v(square_from, 2)))
            if i == 0:
                A('v_pk_mul_f32 %s, %s, %s' % (v(acc, 2), v(d, 2), v(d, 2)))
            else:
                A('v_pk_fma_f32 %s, %s, %s, %s' % (v(acc, 2), v(d, 2), v(d, 2), v(acc, 2)))
    A('v_add_f32 v%d, v%d, v%d' % (acc, acc, acc + 1))
    xor_reduce(A, acc, acc + 1, 'v_add_f32')
    A('ds_write_b32 v%d, v%d offset:%d' % (vW, acc, lds))
    A('s_waitcnt lgkmcnt(0)')
    A('s_barrier')
    A('ds_read_b128 %s, v%d offset:%d' % (v(acc, 4), vR, lds))
    A('s_waitcnt lgkmcnt(0)')
    A('v_pk_add_f32 %s, %s, %s' % (v(acc, 2), v(acc, 2), v(acc + 2, 2)))
    A('v_add_f32 v%d, v%d, v%d' % (acc, acc, acc + 1))
    A('v_mul_f32 v%d, 0x%x, v%d' % (acc, f2u(1.0 / D), acc))


def layernorm(A, X, T, vW, vR, lds, pack_to=None):
    mean, acc = T, T + 2
    row_sum(A, X, 40, acc, vW, vR, lds)
    A('v_mov_b32 v%d, v%d' % (mean, acc))
    row_sum(A, X, 40, acc, vW, vR, lds + 256, square_from=mean)
    A(rnd(acc, acc))
    A('v_add_f32 v%d, 0x%x, v%d' % (acc, f2u(1e-5), acc))
    A(rnd(acc, acc))
    A('v_sqrt_f32 v%d, v%d' % (acc, acc))
    A(rnd(mean, mean))
    A(rnd(acc, acc))
    A('v_rcp_f32 v%d, v%d' % (acc, acc))
    for i in range(0, 40, 2):
        A('v_pk_add_f32 %s, %s, %s op_sel_hi:[1,0] neg_lo:[0,1] neg_hi:[0,1]' % (v(X + i, 2), v(X + i, 2), v(mean, 2)))
    for i in range(40):
        A(rnd(X + i, X + i))
    for i in range(0, 40, 2):
        A('v_pk_mul_f32 %s, %s, %s op_sel_hi:[1,0]' % (v(X + i, 2), v(X + i, 2), v(acc, 2)))
    if pack_to is None:
        for i in range(40):
            A(rnd(X + i, X + i))
    else:
        for i in range(20):
            A('v_cvt_pk_bf16_f32 v%d, v%d, v%d' % (pack_to + i, X + 2 * i, X + 2 * i + 1))


def modulate(A, X, MS, MC, P):
    for i in range(0, 40, 2):
        A('v_pk_mul_f32 %s, %s, %s' % (v(X + i, 2), v(X + i, 2), v(MC + i, 2)))
    for i in range(40):
        A(rnd(X + i, X + i))
    for i in range(0, 40, 2):
        A('v_pk_add_f32 %s, %s, %s' % (v(X + i, 2), v(X + i, 2), v(MS + i, 2)))
    for i in range(20):
        A('v_cvt_pk_bf16_f32 v%d, v%d, v%d' % (P + i, X + 2 * i, X + 2 * i + 1))


def ln_addresses(A, vW, vR):
    A('v_and_b32 v%d, 15, v%d' % (vR, vL))
    A('v_lshlrev_b32 v%d, 4, v%d' % (vR, vR))
    A('s_lshl_b32 %s, %s, 2' % (s(sT), s(sWAVE)))
    A('v_add_u32 v%d, %s, v%d' % (vW, s(sT), vR))


def load_mod40(A, dst, which, tmp):
    A('v_lshrrev_b32 v%d, 4, v%d' % (tmp, vL))
    A('v_lshlrev_b32 v%d, 5, v%d' % (tmp, tmp))
    A('s_mul_i32 %s, %s, 640' % (s(sT), s(sWAVE)))
    A('s_add_u32 %s, %s, 0x%x' % (s(sT), s(sT), WS_MOD + which * D * 4))
    for k in range(10):
        A('buffer_load_dwordx4 %s, v%d, %s, %s offen offset:%d sc1'
          % (v(dst + 4 * k, 4), tmp, WS, s(sT), (k >> 1) * 128 + (k & 1) * 16))


def gelu(A, X, n, t0):
    k0 = math.sqrt(2.0 / math.pi) * -2.0 * math.log2(math.e)
    A('s_mov_b32 %s, 0x%x' % (s(sM), f2u(k0 * 0.044715)))
    A('v_mov_b32 v%d, 0x%x' % (t0 + n, f2u(k0)))
    for i in range(n):
        A(rnd(X + i, X + i))
    for i in range(n):
        A('v_mul_f32 v%d, v%d, v%d' % (t0 + i, X + i, X + i))
    for i in range(n):
        A('v_fma_f32 v%d, v%d, %s, v%d' % (t0 + i, t0 + i, s(sM), t0 + n))
    for i in range(n):
        A('v_mul_f32 v%d, v%d, v%d' % (t0 + i, t0 + i, X + i))
    for i in range(n):
        A('v_exp_f32 v%d, v%d' % (t0 + i, t0 + i))
    for i in range(n):
        A('v_add_f32 v%d, 1.0, v%d' % (t0 + i, t0 + i))
    for i in range(n):
        A('v_rcp_f32 v%d, v%d' % (t0 + i, t0 + i))
    for i in range(n):
        A('v_mul_f32 v%d, v%d, v%d' % (X + i, X + i, t0 + i))


def stage_wide(A, srd_n, stride, scol, split):
    R, vG, vS = 16, vT, vT + 1
    A('s_lshl_b32 %s, %s, 2' % (s(sT), s(sWAVE)))
    A('v_lshrrev_b32 v%d, 4, v%d' % (vS, vL))
    A('v_add_u32 v%d, %s, v%d' % (vT + 2, s(sT), vS))
    A('v_and_b32 v%d, 15, v%d' % (vT + 3, vL))
    A('s_mov_b32 %s, %d' % (s(sT), stride))
    A('v_mul_lo_u32 v%d, v%d, %s' % (vG, vT + 2, s(sT)))
    A('v_lshl_add_u32 v%d, v%d, 4, v%d' % (vG, vT + 3, vG))
    A('v_lshlrev_b32 v%d, 2, v%d' % (vS, vS))
    A('v_xor_b32 v%d, v%d, v%d' % (vS, vS, vT + 3))
    A('v_lshlrev_b32 v%d, 4, v%d' % (vS, vS))
    A('v_lshl_add_u32 v%d, v%d, 8, v%d' % (vS, vT + 2, vS))
    for i in range(40):
        A('s_add_u32 %s, %s, %d' % (s(sT), s(scol), i * 16 * stride))
        A('buffer_load_dwordx4 %s, v%d, %s, %s offen' % (v(R + 4 * i, 4), vG, srd(srd_n), s(sT)))
    if split:
        A('s_mov_b32 %s, 0x05040100' % s(sT))
        A('s_mov_b32 %s, 0x07060302' % s(sT2))
    for i in range(40):
        r = R + 4 * i
        A('s_waitcnt vmcnt(%d)' % (39 - i))
        src = r
        if split:
            src = 8 + 4 * (i % 2)
            A('v_perm_b32 v%d, v%d, v%d, %s' % (src, r + 1, r, s(sT)))
            A('v_perm_b32 v%d, v%d, v%d, %s' % (src + 1, r + 3, r + 2, s(sT)))
            A('v_perm_b32 v%d, v%d, v%d, %s' % (src + 2, r + 1, r, s(sT2)))
            A('v_perm_b32 v%d, v%d, v%d, %s' % (src + 3, r + 3, r + 2, s(sT2)))
        A('ds_write_b128 v%d, %s offset:%d' % (vS, v(src, 4), (i % 16) * 4096))
        if i % 16 == 15:
            A('v_add_u32 v%d, 0x10000, v%d' % (vS, vS))
    A('s_waitcnt lgkmcnt(0)')
    A('s_barrier')


def read_wide(A, spair, dst):
    vB = vT
    A('v_bfe_u32 v%d, v%d, 2, 2' % (vT + 1, vL))
    A('v_lshrrev_b32 v%d, 4, v%d' % (vB, vL))
    A('v_lshl_add_u32 v%d, v%d, 3, v%d' % (vB, vB, vT + 1))
    A('v_lshlrev_b32 v%d, 8, v%d' % (vB, vB))
    A('v_xor_b32 v%d, %s, v%d' % (vT + 1, s(spair), vT + 1))
    A('v_lshl_add_u32 v%d, v%d, 6, v%d' % (vB, vT + 1, vB))
    A('v_and_b32 v%d, 3, v%d' % (vT + 1, vL))
    A('v_lshl_add_u32 v%d, v%d, 4, v%d' % (vB, vT + 1, vB))
    for c in range(20):
        for b in range(2):
            for h in range(2):
                A('ds_read_b64_tr_b16 %s, v%d offset:%d' % (u(dst(c, b) + 2 * h, 2), vB, (c % 8) * 8192 + h * 1024 + b * 8))
        if c % 8 == 7:
            A('v_add_u32 v%d, 0x10000, v%d' % (vB, vB))
        if c % 3 == 2:
            A('s_waitcnt lgkmcnt(0)')
    A('s_waitcnt lgkmcnt(0)')


def init_workspace(A):
    n16 = (WS_KM - WS_PART + 16 * 192 * 256 - 1) // (16 * 192 * 256)
    A('s_mul_i32 %s, %s, %d' % (s(sT), s(sWIDX), n16 * 4096))
    A('s_lshl_b32 %s, %s, 10' % (s(sT2), s(sWAVE)))
    A('s_add_u32 %s, %s, %s' % (s(sT), s(sT), s(sT2)))
    A('s_add_u32 %s, %s, 0x%x' % (s(sT), s(sT), WS_PART))
    for r in range(4):
        A('v_mov_b32 v%d, -1' % (4 + r))
        A('v_mov_b32 v%d, 0' % (8 + r))
    for i in range(n16):
        A('s_cmp_lt_u32 %s, 0x%x' % (s(sT), WS_KM))
        A('s_cselect_b32 %s, %s, 0x%x' % (s(sT3), s(sT), OOB))
        A('buffer_store_dwordx4 v[4:7], v%d, %s, %s offen sc1' % (vLIN, WS, s(sT3)))
        A('s_add_u32 %s, %s, 4096' % (s(sT), s(sT)))
    A('s_lshl_b32 %s, %s, 12' % (s(sT), s(sWIDX)))
    A('s_add_u32 %s, %s, %s' % (s(sT), s(sT), s(sT2)))
    A('s_cmp_lt_u32 %s, 0x%x' % (s(sT), F_END))
    A('s_cselect_b32 %s, %s, 0x%x' % (s(sT), s(sT), OOB))
    A('buffer_store_dwordx4 v[8:11], v%d, %s, %s offen sc1' % (vLIN, WS, s(sT)))


def init_done(A):
    def fn():
        A('s_and_b32 %s, %s, 7' % (s(sT), s(sWIDX)))
        A('s_lshl_b32 %s, %s, 4' % (s(sT), s(sT)))
        A('s_add_u32 %s, %s, %d' % (s(sT), s(sT), DBG_INIT))
        A('v_mov_b32 v2, 1')
        A('v_mov_b32 v3, 0')
        A('s_mov_b64 exec, 1')
        A('buffer_atomic_add v2, v3, %s, %s offen' % (srd(SRD_DBG), s(sT)))
        A('s_mov_b64 exec, -1')
    A('s_waitcnt vmcnt(0)')
    A('s_barrier')
    on_wave0(A, fn)


def mod_stage(A):
    W, AC, AO = 64, 8, 12
    build_srd(A, SRD_A, 'wmod')
    build_srd(A, SRD_B, 'c')
    slice_ = sSLICE
    A('v_and_b32 v2, 15, v%d' % vL)
    A('v_lshrrev_b32 v3, 4, v%d' % vL)
    A('v_mul_u32_u24 v4, %d, v3' % (4 * 7680))
    A('v_lshl_add_u32 v4, v2, 2, v4')
    A('s_lshl_b32 %s, %s, 8' % (s(sOFF), s(slice_)))
    A('s_lshl_b32 %s, %s, 6' % (s(sT), s(sWAVE)))
    A('s_add_u32 %s, %s, %s' % (s(sOFF), s(sOFF), s(sT)))
    A('s_lshl_b32 %s, %s, 7' % (s(sT), s(sWAVE)))
    A('v_lshl_add_u32 v5, v%d, 1, %s' % (vL, s(sT)))
    for k in range(3):
        A('buffer_load_ushort v%d, v5, %s, 0 offen offset:%d' % (16 + k, srd(SRD_B), k * 512))
    for c in range(20):
        for r in range(8):
            A('s_add_u32 %s, %s, %d' % (s(sT), s(sOFF), (32 * c + 16 * (r >> 2) + (r & 3)) * 7680))
            A('buffer_load_dword v%d, v4, %s, %s offen' % (W + 8 * c + r, srd(SRD_A), s(sT)))
        if c == 0:
            A('s_waitcnt vmcnt(8)')
            for k in range(3):
                x, t = 16 + k, 20 + k
                A('v_lshlrev_b32 v%d, 16, v%d' % (x, x))
                A('v_mul_f32 v%d, 0x%x, v%d' % (t, f2u(-math.log2(math.e)), x))
                A('v_exp_f32 v%d, v%d' % (t, t))
                A('v_add_f32 v%d, 1.0, v%d' % (t, t))
                A('v_rcp_f32 v%d, v%d' % (t, t))
                A('v_mul_f32 v%d, v%d, v%d' % (x, x, t))
                A('v_cvt_pk_bf16_f32 v%d, v%d, v%d' % (x, x, x))
                A('ds_write_b16 v5, v%d offset:%d' % (x, k * 512))
    A('v_bfe_u32 v6, v%d, 3, 1' % vL)
    A('v_mul_u32_u24 v6, 0x5555, v6')
    A('v_add_u32 v6, 0x8888, v6')
    A('v_lshlrev_b32 v7, 4, v3')
    A('v_mov_b64 %s, 0' % v(AC, 2))
    A('v_mov_b64 %s, 0' % v(AC + 2, 2))
    A('s_waitcnt lgkmcnt(0)')
    A('s_barrier')
    for c in range(20):
        A('ds_read_b128 %s, v7 offset:%d' % (v(AO, 4), c * 64))
        A('s_waitcnt vmcnt(%d) lgkmcnt(0)' % min(63, 8 * (19 - c)))
        A('v_smfmac_f32_16x16x64_bf16 %s, %s, %s, v6' % (v(AC, 4), v(AO, 4), v(W + 8 * c, 8)))
    A(rnd(AC, AC))
    A('v_add_f32 v%d, 1.0, v%d' % (AC + 1, AC))
    A(rnd(AC + 1, AC + 1))
    A('s_mov_b32 %s, 0x%x' % (s(sT), (0x1f << 5) | (0x1f << 20)))
    A('s_bitcmp1_b32 %s, %s' % (s(sT), s(slice_)))
    A('s_cselect_b64 vcc, -1, 0')
    A('v_cndmask_b32 v%d, v%d, v%d, vcc' % (AC, AC, AC + 1))
    A('v_lshrrev_b32 v3, 1, v3')
    A('v_lshl_add_u32 v2, v2, 1, v3')
    A('v_lshlrev_b32 v2, 2, v2')
    A('s_lshl_b32 %s, %s, 1' % (s(sT), s(sOFF)))
    A('s_add_u32 %s, %s, 0x%x' % (s(sT), s(sT), WS_MOD))
    A('s_mov_b32 exec_lo, 0xffff')
    A('s_mov_b32 exec_hi, 0xffff')
    A('buffer_store_dword v%d, v2, %s, %s offen sc1' % (AC, WS, s(sT)))
    A('s_mov_b64 exec, -1')
    A('s_waitcnt vmcnt(0)')
    A('s_barrier')

    def fn():
        A('s_lshl_b32 %s, %s, 2' % (s(sT), s(slice_)))
        A('s_add_u32 %s, %s, %d' % (s(sT), s(sT), DBG_MOD))
        signal(A, SRD_DBG, s(sT), '1')
    on_wave0(A, fn)


def h_stage(A, bail):
    X, P, MS, MC, T, vW, vR = 16, 56, 80, 120, 8, 6, 7
    build_srd(A, SRD_A, 'x')
    A('v_and_b32 v2, 15, v%d' % vL)
    A('v_mul_u32_u24 v2, 1280, v2')
    A('v_lshrrev_b32 v3, 4, v%d' % vL)
    A('v_lshl_add_u32 v2, v3, 4, v2')
    A('s_mul_i32 %s, %s, %d' % (s(sOFF), s(sWIDX), 16 * 1280))
    A('s_mul_i32 %s, %s, 320' % (s(sT), s(sWAVE)))
    A('s_add_u32 %s, %s, %s' % (s(sT), s(sT), s(sOFF)))
    for k in range(5):
        A('buffer_load_dwordx4 %s, v2, %s, %s offen offset:%d' % (v(P + 4 * k, 4), srd(SRD_A), s(sT), k * 64))
    ln_addresses(A, vW, vR)
    A('s_waitcnt vmcnt(0)')
    unpack(A, X, P, 20)
    layernorm(A, X, T, vW, vR, 0)
    wait_mod(A, bail)
    load_mod40(A, MS, 0, 3)
    load_mod40(A, MC, 1, 3)
    A('s_waitcnt vmcnt(0)')
    modulate(A, X, MS, MC, P)
    A('s_mul_i32 %s, %s, 5120' % (s(sT), s(sWAVE)))
    A('s_add_u32 %s, %s, %s' % (s(sT), s(sT), s(sOFF)))
    A('s_add_u32 %s, %s, 0x%x' % (s(sT), s(sT), WS_H))
    A('s_add_u32 %s, %s, 4096' % (s(sT2), s(sT)))
    for k in range(5):
        A('buffer_store_dwordx4 %s, v%d, %s, %s offen offset:%d sc1'
          % (v(P + 4 * k, 4), vLIN, WS, s(sT if k < 4 else sT2), (k % 4) * 1024))
    A('s_waitcnt vmcnt(0)')
    A('s_barrier')

    def fn():
        wait_init(A, bail)
        A('s_lshl_b32 %s, %s, 2' % (s(sT), s(sWIDX)))
        A('s_add_u32 %s, %s, %d' % (s(sT), s(sT), WS_FLAG + F_H))
        signal(A, SRD_WS, s(sT), '1')
    on_wave0(A, fn)


def qkv_stage(A, bail):
    W, ACC, HS, vH, vD = 192, 16, 48, 8, 9
    sMAT, sHD, sGRP, sSRC, sDST, sBUF, sPR = sCOPY, sSLICE, sRT, sOFF, sOFF2, sOFF3, sFL
    A('s_cmp_ge_u32 %s, 96' % s(sWIDX))
    A('s_cselect_b32 %s, 1, 0' % s(sGRP))
    A('s_mul_i32 %s, %s, 96' % (s(sT), s(sGRP)))
    A('s_sub_u32 %s, %s, %s' % (s(sT), s(sWIDX), s(sT)))
    A('s_and_b32 %s, %s, 31' % (s(sHD), s(sT)))
    A('s_lshr_b32 %s, %s, 5' % (s(sMAT), s(sT)))
    build_srd(A, SRD_A, 'wk')
    for m, n in ((1, 'wv'), (2, 'wq')):
        A('s_cmp_eq_u32 %s, %d' % (s(sMAT), m))
        A('s_cselect_b32 %s, %s, %s' % (s(SRD_A), s(PTR[n]), s(SRD_A)))
        A('s_cselect_b32 %s, %s, %s' % (s(SRD_A + 1), s(PTR[n] + 1), s(SRD_A + 1)))
    A('s_and_b32 %s, %s, 0xffff' % (s(SRD_A + 1), s(SRD_A + 1)))
    A('s_lshl_b32 %s, %s, 8' % (s(sT3), s(sHD)))

    def wreg(p):
        return lambda c, b: W + (c * 4 + p * 2 + b) * 4

    for val in (False, True):
        tag = 'qkv_v' if val else 'qkv_qk'
        if not val:
            A('s_cmp_eq_u32 %s, 1' % s(sMAT))
            A('s_cbranch_scc1 qkv_v')
        A('%s:' % tag)
        stage_wide(A, SRD_A, 8192, sT3, val)
        for p in range(2):
            A('s_and_b32 %s, %s, 1' % (s(sT2), s(sWAVE)))
            A('s_lshl_b32 %s, %s, 1' % (s(sT2), s(sT2)))
            A('s_add_u32 %s, %s, %d' % (s(sT2), s(sT2), p))
            read_wide(A, sT2, wreg(p))
        A('v_lshlrev_b32 v3, 2, v%d' % vL)
        wait_init(A, bail, 4)
        for k in range(2):
            A('s_mov_b32 %s, %d' % (s(sT), WS_FLAG + F_H + 256 * k))
            wait_ge(A, bail, SRD_WS, 3, s(sT), 64, '1')
        A('s_barrier')
        A('s_mul_i32 %s, %s, 20480' % (s(sT), s(sWAVE)))
        A('s_mov_b32 %s, %s' % (s(sBUF), s(sT)))
        A('s_mul_i32 %s, %s, 81920' % (s(sSRC), s(sGRP)))
        A('s_add_u32 %s, %s, %s' % (s(sSRC), s(sSRC), s(sT)))
        A('s_add_u32 %s, %s, 0x%x' % (s(sSRC), s(sSRC), WS_H))
        A('s_lshr_b32 %s, %s, 1' % (s(sT), s(sWAVE)))
        A('s_mul_i32 %s, %s, 40960' % (s(sT2), s(sT)))
        A('v_add_u32 v%d, %s, v%d' % (vH, s(sT2), vLIN))
        A('v_mov_b32 v%d, 81920' % vD)
        A('s_lshl_b32 %s, %s, 1' % (s(sT2), s(sGRP)))
        A('s_add_u32 %s, %s, %s' % (s(sT), s(sT), s(sT2)))
        A('s_lshl_b32 %s, %s, 5' % (s(sT), s(sT)))
        A('s_add_u32 %s, %s, %s' % (s(sT), s(sT), s(sHD)))
        A('s_lshl_b32 %s, %s, 13' % (s(sDST), s(sT)))
        A('s_and_b32 %s, %s, 1' % (s(sT), s(sWAVE)))
        A('s_lshl_b32 %s, %s, %d' % (s(sT), s(sT), 12 if val else 11))
        A('s_add_u32 %s, %s, %s' % (s(sDST), s(sDST), s(sT)))
        if val:
            A('s_add_u32 %s, %s, 0x%x' % (s(sDST), s(sDST), WS_V))
        else:
            A('s_cmp_eq_u32 %s, 0' % s(sMAT))
            A('s_mov_b32 %s, 0x%x' % (s(sT), WS_Q))
            A('s_cselect_b32 %s, 0x%x, %s' % (s(sT), WS_K, s(sT)))
            A('s_add_u32 %s, %s, %s' % (s(sDST), s(sDST), s(sT)))
        A('s_add_u32 %s, %s, 1' % (s(sT), s(sMAT)))
        A('s_cmp_eq_u32 %s, 3' % s(sT))
        A('s_cselect_b32 %s, 0, %s' % (s(sT), s(sT)))
        A('s_lshl_b32 %s, %s, 1' % (s(sT), s(sT)))
        A('s_add_u32 %s, %s, %s' % (s(sT), s(sT), s(sGRP)))
        A('s_lshl_b32 %s, %s, 3' % (s(sPR), s(sHD)))
        A('s_add_u32 %s, %s, %s' % (s(sPR), s(sPR), s(sT)))
        A('s_lshl_b32 %s, %s, 2' % (s(sPR), s(sPR)))
        A('s_add_u32 %s, %s, %d' % (s(sPR), s(sPR), WS_FLAG + F_QKV))
        A('s_mov_b32 %s, 0' % s(sI))
        A('s_mov_b32 %s, 81920' % s(sM + 1))

        def dma():
            out = []
            for k in range(5):
                out.append('s_add_u32 m0, %s, %d' % (s(sBUF), k * 4096))
                out.append('s_add_u32 %s, %s, %d' % (s(sT), s(sSRC), k * 4096))
                out += ['buffer_load_dwordx4 v%d, %s, %s offen offset:%d sc1 lds' % (vLIN, WS, s(sT), j * 1024)
                        for j in range(4)]
            return out

        def flip():
            A('s_add_u32 %s, %s, %s' % (s(sBUF), s(sBUF), s(sM + 1)))
            A('s_sub_u32 %s, 0, %s' % (s(sM + 1), s(sM + 1)))
            A('s_add_u32 %s, %s, %d' % (s(sSRC), s(sSRC), 2 * 81920))
        for x in dma():
            A(x)
        flip()
        A('%s_loop:' % tag)
        A('s_waitcnt vmcnt(0)')
        A('s_barrier')
        on_wave0(A, lambda: signal(A, SRD_WS, s(sPR), s(sI)))
        A('s_cmp_lt_u32 %s, 15' % s(sI))
        A('s_cselect_b32 %s, %s, 0x%x' % (s(sSRC), s(sSRC), OOB))

        def rd(c):
            return ['ds_read_b128 %s, v%d offset:%d' % (v(HS + 8 * (c % 3) + 4 * tt, 4), vH, tt * 20480 + c * 1024)
                    for tt in range(2)]
        for x in rd(0) + rd(1):
            A(x)
        req = dma()
        for c in range(20):
            fill = (rd(c + 2) if c + 2 < 20 else []) + req[:2]
            req = req[2:]
            A('s_waitcnt lgkmcnt(%d)' % (2 if c < 19 else 0))
            for tt in range(2):
                for k in range(4):
                    h, w = HS + 8 * (c % 3) + 4 * tt, W + (c * 4 + k) * 4
                    a_ = ACC + (k * 2 + tt) * 4
                    A(mfma(a_, h, w, c == 0) if val else mfma(a_, w, h, c == 0))
                    if fill and k >= 1:
                        A(fill.pop(0))
        A('v_add_u32 v%d, v%d, v%d' % (vH, vH, vD))
        A('v_sub_u32 v%d, 0, v%d' % (vD, vD))
        flip()
        O = HS
        for k in range(4):
            if val:
                lo, hi = ACC + (k * 2) * 4, ACC + (k * 2 + 1) * 4
                off = k * 1024
            else:
                p, tt = k >> 1, k & 1
                lo, hi = ACC + (p * 4 + tt) * 4, ACC + (p * 4 + 2 + tt) * 4
                off = p * 1024
            o = O + 4 * k
            A('v_cvt_pk_bf16_f32 v%d, v%d, v%d' % (o, lo, lo + 1))
            A('v_cvt_pk_bf16_f32 v%d, v%d, v%d' % (o + 1, lo + 2, lo + 3))
            A('v_cvt_pk_bf16_f32 v%d, v%d, v%d' % (o + 2, hi, hi + 1))
            A('v_cvt_pk_bf16_f32 v%d, v%d, v%d' % (o + 3, hi + 2, hi + 3))
            so = sDST
            if not val and tt:
                A('s_add_u32 %s, %s, 4096' % (s(sT), s(sDST)))
                so = sT
            A('buffer_store_dwordx4 %s, v%d, %s, %s offen offset:%d sc1' % (v(o, 4), vLIN, WS, s(so), off))
        A('s_add_u32 %s, %s, 0x%x' % (s(sDST), s(sDST), 4 * 32 * 8192))
        A('s_add_u32 %s, %s, 1' % (s(sI), s(sI)))
        A('s_cmp_lt_u32 %s, 16' % s(sI))
        A('s_cbranch_scc1 %s_loop' % tag)
        A('s_waitcnt vmcnt(0)')
        A('s_barrier')
        on_wave0(A, lambda: signal(A, SRD_WS, s(sPR), '16'))
        if not val:
            A('s_branch qkv_done')
    A('qkv_done:')
```

```python
import math
from common import *
from wk import *

sSTEP_RT, sLDS = 100, 101
LOG2E = math.log2(math.e)


def next_tile(A, tag):
    A('s_add_u32 %s, %s, %s' % (s(sRT), s(sRT), s(sSTEP_RT)))
    A('s_cmp_lt_u32 %s, 128' % s(sRT))
    A('s_cbranch_scc1 %s_loop' % tag)
    A('s_waitcnt vmcnt(0)')
    A('s_endpgm')


def flag_off(A, dst, base, shift, add=None):
    A('s_lshl_b32 %s, %s, %d' % (s(dst), s(sRT), shift))
    if add is not None:
        A('s_lshl_b32 %s, %s, 2' % (s(sT3), s(add)))
        A('s_add_u32 %s, %s, %s' % (s(dst), s(dst), s(sT3)))
    A('s_add_u32 %s, %s, %d' % (s(dst), s(dst), WS_FLAG + base))


def done_flag(A, base, shift):
    A('s_waitcnt vmcnt(0)')
    A('s_barrier')

    def fn():
        flag_off(A, sT, base, shift, sSLICE)
        signal(A, SRD_WS, s(sT), '1')
    on_wave0(A, fn)


def attention(A, bail):
    Q, K0, K1, V, KM, VM, KD, S0, S1, SM, P, PL, PH, O, T = 16, 32, 48, 64, 96, 112, 120, 128, 132, 136, 140, 144, 146, 148, 180
    vQW, vQR, vL8, vFL, vNEG = 8, 9, 10, 11, 12
    sHD, sQT, sB, sKM = sSLICE, sCOPY, sOFF, sOFF2
    A('att:')
    A('s_lshl_b32 %s, %s, 2' % (s(sT), s(sSLICE)))
    A('s_add_u32 %s, %s, %s' % (s(sT), s(sT), s(sWAVE)))
    A('s_and_b32 %s, %s, 31' % (s(sHD), s(sT)))
    A('s_lshr_b32 %s, %s, 5' % (s(sQT), s(sT)))
    A('s_mov_b32 %s, %s' % (s(sRT), s(sQT)))
    A('s_mov_b32 %s, 2' % s(sSTEP_RT))
    n, g, t = 2, 3, 4
    A('v_and_b32 v%d, 15, v%d' % (n, vL))
    A('v_lshrrev_b32 v%d, 4, v%d' % (g, vL))
    A('v_bfe_u32 v%d, v%d, 2, 2' % (t, vL))
    A('s_mul_i32 %s, %s, 2304' % (s(sT), s(sWAVE)))
    A('v_lshrrev_b32 v%d, 1, v%d' % (vQW, g))
    A('v_mul_u32_u24 v%d, 288, v%d' % (vQW, vQW))
    A('v_lshl_add_u32 v%d, v%d, 4, v%d' % (vQW, n, vQW))
    A('v_and_b32 v5, 1, v%d' % g)
    A('v_lshl_add_u32 v%d, v5, 3, v%d' % (vQW, vQW))
    A('v_add_u32 v%d, %s, v%d' % (vQW, s(sT), vQW))
    A('v_and_b32 v%d, 1, v%d' % (vQR, t))
    A('v_mul_u32_u24 v%d, 288, v%d' % (vQR, vQR))
    A('v_lshrrev_b32 v5, 1, v%d' % t)
    A('v_lshl_add_u32 v5, v%d, 2, v5' % g)
    A('v_lshl_add_u32 v%d, v5, 4, v%d' % (vQR, vQR))
    A('v_and_b32 v5, 1, v%d' % vL)
    A('v_lshl_add_u32 v%d, v5, 3, v%d' % (vQR, vQR))
    A('v_add_u32 v%d, %s, v%d' % (vQR, s(sT), vQR))
    A('v_lshlrev_b32 v%d, 3, v%d' % (vL8, vL))
    A('v_lshlrev_b32 v%d, 2, v%d' % (vFL, vL))
    A('v_mov_b32 v%d, 0x%x' % (vNEG, f2u(-1e9)))
    A('s_lshl_b32 %s, %s, 4' % (s(sT), s(sQT)))
    A('v_add_u32 v5, %s, v%d' % (s(sT), n))
    A('v_lshlrev_b32 v6, 2, v%d' % g)
    for k in range(8):
        A('v_add_u32 v7, %d, v6' % (16 * (k >> 2) + (k & 3)))
        A('v_cmp_le_u32 %s, v7, v5' % s(sM + 2 * k, 2))
    A('s_lshl_b32 %s, %s, 5' % (s(sT), s(sHD)))
    A('s_add_u32 %s, %s, %d' % (s(sT), s(sT), WS_FLAG + F_QKV))
    wait_ge(A, bail, SRD_WS, vFL, s(sT), 6, '16')
    A('att_loop:')
    A('s_lshr_b32 %s, %s, 1' % (s(sI), s(sRT)))
    A('s_lshl_b32 %s, %s, 5' % (s(sT), s(sI)))
    A('s_add_u32 %s, %s, %s' % (s(sT), s(sT), s(sHD)))
    A('s_lshl_b32 %s, %s, 11' % (s(sKM), s(sT)))
    A('s_lshl_b32 %s, %s, 13' % (s(sB), s(sT)))
    A('s_lshl_b32 %s, %s, 12' % (s(sT), s(sQT)))
    A('s_add_u32 %s, %s, %s' % (s(sT), s(sT), s(sB)))
    A('s_add_u32 %s, %s, 0x%x' % (s(sT), s(sT), WS_Q))
    for c in range(4):
        A('buffer_load_dwordx4 %s, v%d, %s, %s offen offset:%d sc1' % (v(Q + 4 * c, 4), vLIN, WS, s(sT), c * 1024))
    for base, regs in ((WS_K, K0), (WS_K + 4096, K1), (WS_V, V), (WS_V + 4096, V + 16)):
        A('s_add_u32 %s, %s, 0x%x' % (s(sT), s(sB), base))
        for c in range(4):
            A('buffer_load_dwordx4 %s, v%d, %s, %s offen offset:%d sc1' % (v(regs + 4 * c, 4), vLIN, WS, s(sT), c * 1024))
    A('s_waitcnt vmcnt(8)')
    for c in range(4):
        A(mfma(S0, K0 + 4 * c, Q + 4 * c, c == 0))
        A(mfma(S1, K1 + 4 * c, Q + 4 * c, c == 0))
    A('s_lshl_b32 %s, %s, 3' % (s(sT), s(sHD)))
    A('s_add_u32 %s, %s, %d' % (s(sT), s(sT), WS_FLAG + F_KM))
    A('s_add_u32 %s, %s, 1' % (s(sI), s(sI)))
    wait_ge(A, bail, SRD_WS, vFL, s(sT), 2, s(sI))
    for base, regs in ((WS_KM, KD), (WS_VM, VM)):
        A('s_add_u32 %s, %s, 0x%x' % (s(sT), s(sKM), base))
        for c in range(4):
            A('buffer_load_dwordx2 %s, v%d, %s, %s offen offset:%d sc1' % (v(regs + 2 * c, 2), vL8, WS, s(sT), c * 512))
    scale = f2u(128 ** -0.5)

    def scaled(regs):
        for r in regs:
            A(rnd(r, r))
        for r in regs:
            A('v_mul_f32 v%d, 0x%x, v%d' % (r, scale, r))
        for r in regs:
            A(rnd(r, r))
    xs = list(range(S0, S0 + 8))
    ms = list(range(SM, SM + 4))
    scaled(xs)
    for k, r in enumerate(xs):
        A('v_cndmask_b32 v%d, v%d, v%d, %s' % (r, vNEG, r, s(sM + 2 * k, 2)))
    A('v_max3_f32 v%d, v%d, v%d, v%d' % (T, xs[0], xs[1], xs[2]))
    A('v_max3_f32 v%d, v%d, v%d, v%d' % (T, T, xs[3], xs[4]))
    A('v_max3_f32 v%d, v%d, v%d, v%d' % (T, T, xs[5], xs[6]))
    A('v_max_f32 v%d, v%d, v%d' % (T, T, xs[7]))
    A('v_mov_b64 %s, 0' % v(PL, 2))
    A('v_mov_b64 %s, 0' % v(PH, 2))
    A('s_waitcnt vmcnt(4)')
    for c in range(4):
        A('ds_write_b64 v%d, %s offset:%d' % (vQW, v(KD + 2 * c, 2), c * 576))
    for c in range(4):
        for h in range(2):
            A('ds_read_b64_tr_b16 %s, v%d offset:%d' % (v(KM + 4 * c + 2 * h, 2), vQR, c * 576 + 32 * h))
    for c in range(4):
        A('s_waitcnt lgkmcnt(%d)' % (6 - 2 * c))
        A(mfma(SM, KM + 4 * c, Q + 4 * c, c == 0))
    scaled(ms)
    A('v_max3_f32 v%d, v%d, v%d, v%d' % (T, T, ms[0], ms[1]))
    A('v_max3_f32 v%d, v%d, v%d, v%d' % (T, T, ms[2], ms[3]))
    xor_reduce(A, T, T + 1, 'v_max_f32')
    for r in xs + ms:
        A('v_sub_f32 v%d, v%d, v%d' % (r, r, T))
    for r in xs + ms:
        A('v_mul_f32 v%d, 0x%x, v%d' % (r, f2u(LOG2E), r))
    for r in xs + ms:
        A('v_exp_f32 v%d, v%d' % (r, r))
    A('v_pk_add_f32 %s, %s, %s' % (v(T, 2), v(S0, 2), v(S0 + 2, 2)))
    A('v_pk_add_f32 %s, %s, %s' % (v(T + 2, 2), v(S1, 2), v(S1 + 2, 2)))
    A('v_pk_add_f32 %s, %s, %s' % (v(T + 4, 2), v(SM, 2), v(SM + 2, 2)))
    A('v_pk_add_f32 %s, %s, %s' % (v(T, 2), v(T, 2), v(T + 2, 2)))
    A('v_add_f32 v%d, v%d, v%d' % (T + 4, T + 4, T + 5))
    A('v_add_f32 v%d, v%d, v%d' % (T, T, T + 1))
    A('v_fma_f32 v%d, v%d, 0.5, v%d' % (T, T + 4, T))
    xor_reduce(A, T, T + 1, 'v_add_f32')
    A('v_rcp_f32 v%d, v%d' % (T, T))
    for r in range(S0, S0 + 12, 2):
        A('v_pk_mul_f32 %s, %s, %s op_sel_hi:[1,0]' % (v(r, 2), v(r, 2), v(T, 2)))
    for k in range(4):
        A('v_cvt_pk_bf16_f32 v%d, v%d, v%d' % (P + k, S0 + 2 * k, S0 + 2 * k + 1))
    for k in range(2):
        A('v_cvt_pk_bf16_f32 v%d, v%d, v%d' % (T + k, SM + 2 * k, SM + 2 * k + 1))
    for k in range(2):
        A('v_mov_b32_dpp v%d, v%d quad_perm:[0,1,2,3] row_mask:0x3 bank_mask:0xf' % (PL + k, T + k))
        A('v_mov_b32_dpp v%d, v%d quad_perm:[0,1,2,3] row_mask:0xc bank_mask:0xf' % (PH + k, T + k))
    for k in range(8):
        A(mfma(O + 4 * k, V + 4 * k, P, True))
    A('s_waitcnt vmcnt(0)')
    for k in range(8):
        A('v_mfma_f32_16x16x16_bf16 %s, %s, %s, %s'
          % (v(O + 4 * k, 4), v(VM + 2 * (k >> 1), 2), v(PH if k & 1 else PL, 2), v(O + 4 * k, 4)))
    A('s_lshl_b32 %s, %s, 5' % (s(sT), s(sRT)))
    A('s_add_u32 %s, %s, %s' % (s(sT), s(sT), s(sHD)))
    A('s_lshl_b32 %s, %s, 12' % (s(sT), s(sT)))
    A('s_add_u32 %s, %s, 0x%x' % (s(sT), s(sT), WS_O))
    for c in range(4):
        for r in range(4):
            A('v_cvt_pk_bf16_f32 v%d, v%d, v%d' % (Q + 4 * c + r, O + 8 * c + r, O + 8 * c + 4 + r))
        A('buffer_store_dwordx4 %s, v%d, %s, %s offen offset:%d sc1' % (v(Q + 4 * c, 4), vLIN, WS, s(sT), c * 1024))
    A('s_waitcnt vmcnt(0)')
    flag_off(A, sT, F_O, 7, sHD)
    signal(A, SRD_WS, s(sT), '1')
    next_tile(A, 'att')


def ksplit(A, bail, tag):
    t2 = tag == 't2'
    NK, TOT = (32, 128) if t2 else (14, 54)
    W = 512 - NK * 8
    AP, ACC, RED, E, G, T = 16, 144, 152, 176, 192, 200
    vX, vFL, vRW = 8, 9, 10
    sK0 = sOFF
    A('%s:' % tag)
    build_srd(A, SRD_A, 'wo' if t2 else 'w4')
    build_srd(A, SRD_B, 'x' if t2 else 'out')
    A('s_mov_b32 %s, %s' % (s(sRT), s(sCOPY)))
    A('s_mul_i32 %s, %s, %d' % (s(sK0), s(sWAVE), NK))
    A('v_lshrrev_b32 v2, 2, v%d' % vL)
    A('v_mul_u32_u24 v2, 1280, v2')
    A('v_and_b32 v3, 3, v%d' % vL)
    A('v_lshl_add_u32 v2, v3, 4, v2')
    A('s_lshl_b32 %s, %s, 15' % (s(sT), s(sWAVE)))
    A('v_add_u32 v4, %s, v%d' % (s(sT), vLIN))
    A('v_lshrrev_b32 v5, 4, v%d' % vL)
    A('v_bfe_u32 v6, v%d, 2, 2' % vL)
    A('v_lshl_add_u32 v5, v5, 3, v6')
    A('v_lshlrev_b32 v5, 6, v5')
    A('v_lshl_add_u32 v5, v3, 4, v5')
    A('v_add_u32 v5, %s, v5' % s(sT))
    A('s_mul_i32 %s, %s, %d' % (s(sT2), s(sK0), 32 * 1280))
    A('s_lshl_b32 %s, %s, 6' % (s(sT), s(sSLICE)))
    A('s_add_u32 %s, %s, %s' % (s(sT2), s(sT2), s(sT)))
    for k0 in range(0, NK, 16):
        nk = min(16, NK - k0)
        for i in range(2 * nk):
            A('s_add_u32 %s, %s, %d' % (s(sT), s(sT2), (32 * k0 + 16 * i) * 1280))
            A('buffer_load_dwordx4 %s, v2, %s, %s offen' % (v(AP + 4 * i, 4), srd(SRD_A), s(sT)))
        for i in range(2 * nk):
            A('s_waitcnt vmcnt(%d)' % (2 * nk - 1 - i))
            A('ds_write_b128 v4, %s offset:%d' % (v(AP + 4 * i, 4), i * 1024))
        for c in range(nk):
            for b in range(2):
                for h in range(2):
                    A('ds_read_b64_tr_b16 %s, v5 offset:%d'
                      % (u(W + ((k0 + c) * 2 + b) * 4 + 2 * h, 2), c * 2048 + h * 256 + b * 8))
            if c % 3 == 2:
                A('s_waitcnt lgkmcnt(0)')
        A('s_waitcnt lgkmcnt(0)')
    A('s_barrier')
    wait_mod(A, bail)
    A('v_lshrrev_b32 v3, 4, v%d' % vL)
    A('v_lshlrev_b32 v2, 5, v3')
    A('s_lshl_b32 %s, %s, 7' % (s(sT), s(sSLICE)))
    A('s_add_u32 %s, %s, 0x%x' % (s(sT), s(sT), WS_MOD + (2 if t2 else 5) * D * 4))
    for k in range(2):
        A('buffer_load_dwordx4 %s, v2, %s, %s offen offset:%d sc1' % (v(G + 4 * k, 4), WS, s(sT), 16 * k))
    A('v_and_b32 v%d, 15, v%d' % (vX, vL))
    A('v_mul_u32_u24 v%d, 1280, v%d' % (vX, vX))
    A('v_lshl_add_u32 v%d, v3, 4, v%d' % (vX, vX))
    A('s_lshl_b32 %s, %s, 6' % (s(sT), s(sSLICE)))
    A('v_add_u32 v%d, %s, v%d' % (vX, s(sT), vX))
    A('v_lshlrev_b32 v%d, 2, v%d' % (vFL, vL))
    A('s_lshl_b32 %s, %s, 11' % (s(sT), s(sWAVE)))
    A('v_add_u32 v%d, %s, v%d' % (vRW, s(sT), vLIN))
    A('s_waitcnt vmcnt(0)')

    A('%s_loop:' % tag)
    flag_off(A, sT, F_O if t2 else F_U, 7 if t2 else 6)
    wait_ge(A, bail, SRD_WS, vFL, s(sT), 32 if t2 else 14, '1')
    A('s_mul_i32 %s, %s, %d' % (s(sOFF2), s(sRT), 20480))

    def extras():
        if t2:
            A('buffer_load_dwordx4 %s, v%d, %s, %s offen' % (v(E, 4), vX, srd(SRD_B), s(sOFF2)))
            return
        A('s_lshl_b32 %s, %s, 10' % (s(sT), s(sSLICE)))
        A('s_add_u32 %s, %s, %s' % (s(sT), s(sT), s(sOFF2)))
        A('s_add_u32 %s, %s, 0x%x' % (s(sT2), s(sT), WS_X1))
        A('s_add_u32 %s, %s, 0x%x' % (s(sT), s(sT), WS_XA))
        A('buffer_load_dwordx4 %s, v%d, %s, %s offen sc1' % (v(E, 4), vLIN, WS, s(sT2)))
        A('buffer_load_dwordx4 %s, v%d, %s, %s offen sc1' % (v(E + 4, 4), vLIN, WS, s(sT)))
    on_wave0(A, extras)
    A('s_mul_i32 %s, %s, %d' % (s(sOFF3), s(sRT), TOT))
    A('s_add_u32 %s, %s, %s' % (s(sOFF3), s(sOFF3), s(sK0)))
    A('s_lshl_b32 %s, %s, 10' % (s(sOFF3), s(sOFF3)))
    A('s_add_u32 %s, %s, 0x%x' % (s(sOFF3), s(sOFF3), WS_O if t2 else WS_U))
    for c in range(NK):
        if c % 4 == 0:
            A('s_add_u32 %s, %s, %d' % (s(sT), s(sOFF3), c * 1024))
            if not t2 and c == 12:
                A('s_cmp_eq_u32 %s, 3' % s(sWAVE))
                A('s_cselect_b32 %s, 0x%x, %s' % (s(sT), OOB, s(sT)))
        A('buffer_load_dwordx4 %s, v%d, %s, %s offen offset:%d sc1' % (v(AP + 4 * c, 4), vLIN, WS, s(sT), (c % 4) * 1024))
    for c in range(NK):
        A('s_waitcnt vmcnt(%d)' % (NK - 1 - c))
        for b in range(2):
            A(mfma(ACC + 4 * b, W + (c * 2 + b) * 4, AP + 4 * c, c == 0))
    w0, join = A.label('w0'), A.label('join')
    A('s_cmp_eq_u32 %s, 0' % s(sWAVE))
    A('s_cbranch_scc1 %s' % w0)
    for b in range(2):
        A('ds_write_b128 v%d, %s offset:%d' % (vRW, v(ACC + 4 * b, 4), b * 1024))
    A('s_waitcnt lgkmcnt(0)')
    A('s_barrier')
    A('s_barrier')
    A('s_branch %s' % join)
    A('%s:' % w0)
    A('s_barrier')
    for k in range(6):
        A('ds_read_b128 %s, v%d offset:%d' % (v(RED + 4 * k, 4), vLIN, 2048 + k * 1024))
    X, Y = T, T + 8
    unpack(A, X, E, 4)
    if not t2:
        unpack(A, Y, E + 4, 4)
    A('s_waitcnt lgkmcnt(0)')
    A('s_barrier')
    for k in range(3):
        for r in range(0, 8, 2):
            A('v_pk_add_f32 %s, %s, %s' % (v(ACC + r, 2), v(ACC + r, 2), v(RED + 8 * k + r, 2)))
    for r in range(8):
        A(rnd(ACC + r, ACC + r))
    if not t2:
        for r in range(0, 8, 2):
            A('v_pk_add_f32 %s, %s, %s' % (v(ACC + r, 2), v(ACC + r, 2), v(X + r, 2)))
        for r in range(8):
            A(rnd(ACC + r, ACC + r))
    for r in range(0, 8, 2):
        A('v_pk_mul_f32 %s, %s, %s' % (v(ACC + r, 2), v(ACC + r, 2), v(G + r, 2)))
    for r in range(8):
        A(rnd(ACC + r, ACC + r))
    for r in range(0, 8, 2):
        A('v_pk_add_f32 %s, %s, %s' % (v(ACC + r, 2), v(ACC + r, 2), v((X if t2 else Y) + r, 2)))
    for k in range(4):
        A('v_cvt_pk_bf16_f32 v%d, v%d, v%d' % (E + k, ACC + 2 * k, ACC + 2 * k + 1))
    if t2:
        A('s_lshl_b32 %s, %s, 10' % (s(sT), s(sSLICE)))
        A('s_add_u32 %s, %s, %s' % (s(sT), s(sT), s(sOFF2)))
        A('s_add_u32 %s, %s, 0x%x' % (s(sT), s(sT), WS_XA))
        A('buffer_store_dwordx4 %s, v%d, %s, %s offen sc1' % (v(E, 4), vLIN, WS, s(sT)))
        A('s_waitcnt vmcnt(0)')
        flag_off(A, sT, F_XA, 7, sSLICE)
        signal(A, SRD_WS, s(sT), '1')
    else:
        A('buffer_store_dwordx4 %s, v%d, %s, %s offen' % (v(E, 4), vX, srd(SRD_B), s(sOFF2)))
    A('%s:' % join)
    next_tile(A, tag)


def nsplit(A, bail, tag):
    W = 352
    X, P, T, MS, MC, HS, ACC, G, E = 16, 56, 8, 80, 120, 160, 172, 180, 192
    vW, vR, vFL, vH = 6, 7, 200, 201
    SH = 202
    name, stride = {'t3': ('w1', 1280), 't4': ('w2', 1280), 't5': ('w3', 3456)}[tag]
    A('%s:' % tag)
    build_srd(A, SRD_A, name)
    A('s_mov_b32 %s, %s' % (s(sRT), s(sCOPY)))
    A('s_lshl_b32 %s, %s, 8' % (s(sT3), s(sSLICE)))
    stage_wide(A, SRD_A, stride, sT3, False)
    read_wide(A, sWAVE, lambda c, b: W + (c * 2 + b) * 4)
    A('s_barrier')
    A('v_lshlrev_b32 v%d, 2, v%d' % (vFL, vL))
    A('s_mul_i32 %s, %s, 5120' % (s(sLDS), s(sWAVE)))
    A('s_add_u32 %s, %s, 1024' % (s(sT), s(sLDS)))
    A('v_add_u32 v%d, %s, v%d' % (vH, s(sT), vLIN))
    A('s_lshl_b32 %s, %s, 2' % (s(sOFF), s(sSLICE)))
    A('s_add_u32 %s, %s, %s' % (s(sOFF), s(sOFF), s(sWAVE)))
    if tag == 't5':
        A('s_cmp_lt_u32 %s, 54' % s(sOFF))
        A('s_cselect_b32 %s, %s, 0x%x' % (s(sOFF), s(sOFF), OOB >> 10))
    A('s_lshl_b32 %s, %s, 10' % (s(sOFF), s(sOFF)))
    if tag == 't4':
        A('v_and_b32 v2, 7, v%d' % vL)
        A('v_cmp_gt_u32 %s, 5, v2' % s(sM + 2, 2))
        A('s_and_b32 %s, %s, 0xffffff' % (s(sM + 2), s(sM + 2)))
        A('s_and_b32 %s, %s, 1' % (s(sT), s(sWAVE)))
        A('s_lshl_b32 %s, %s, 1' % (s(sT), s(sT)))
        A('s_sub_u32 %s, %s, 1' % (s(sT), s(sT)))
        A('s_lshr_b32 %s, %s, 1' % (s(sT2), s(sWAVE)))
        A('s_lshl_b32 %s, %s, %s' % (s(sT), s(sT), s(sT2)))
        A('v_and_b32 v2, 15, v%d' % vL)
        A('v_add_u32 v%d, %s, v2' % (SH, s(sT)))
    else:
        ln_addresses(A, vW, vR)
    if tag == 't3':
        wait_mod(A, bail)
        load_mod40(A, MS, 3, 3)
        load_mod40(A, MC, 4, 3)
        A('s_waitcnt vmcnt(0)')

    A('%s_loop:' % tag)
    A('s_mul_i32 %s, %s, 20480' % (s(sOFF2), s(sRT)))
    if tag == 't4':
        top, ok = A.label('wait'), A.label('ready')
        A('s_mov_b32 %s, %s' % (s(sM + 4), s(sM + 2)))
        A('s_cmp_eq_u32 %s, 0' % s(sRT))
        A('s_cselect_b32 %s, 0xffff00, -1' % s(sT))
        A('s_and_b32 %s, %s, %s' % (s(sM + 4), s(sM + 4), s(sT)))
        A('s_cmp_eq_u32 %s, 127' % s(sRT))
        A('s_cselect_b32 %s, 0xffff, -1' % s(sT))
        A('s_and_b32 %s, %s, %s' % (s(sM + 4), s(sM + 4), s(sT)))
        flag_off(A, sT, F_T, 5)
        A('%s:' % top)
        A('buffer_load_dword v2, v%d, %s, %s offen sc1' % (vFL, WS, s(sT)))
        A('s_waitcnt vmcnt(0)')
        A('v_cmp_eq_u32 vcc, 0, v2')
        A('s_and_b32 %s, vcc_lo, %s' % (s(sT2), s(sM + 4)))
        A('s_cbranch_scc0 %s' % ok)
        A('s_sleep 1')
        spin_guard(A, sSP, top, bail)
        A('%s:' % ok)
        A('s_lshl_b32 %s, %s, 4' % (s(sT), s(sRT)))
        A('v_add_u32 v2, %s, v%d' % (s(sT), SH))
        A('v_lshrrev_b32 v3, 4, v2')
        A('v_mul_u32_u24 v3, 20480, v3')
        A('v_and_b32 v4, 15, v2')
        A('v_and_b32 v5, 48, v%d' % vL)
        A('v_add_u32 v4, v4, v5')
        A('v_lshl_add_u32 v3, v4, 4, v3')
        A('v_cmp_gt_u32 vcc, %d, v2' % S)
        A('v_mov_b32 v4, 0x%x' % OOB)
        A('v_cndmask_b32 v3, v4, v3, vcc')
        A('s_add_u32 %s, %s, 0x%x' % (s(sT), s(sLDS), WS_T))
        A('s_add_u32 m0, %s, 1024' % s(sLDS))
        for k in range(5):
            if k == 4:
                A('s_add_u32 %s, %s, 4096' % (s(sT), s(sT)))
                A('s_add_u32 m0, %s, 5120' % s(sLDS))
            A('buffer_load_dwordx4 v3, %s, %s offen offset:%d sc1 lds' % (WS, s(sT), (k % 4) * 1024))
        A('s_add_u32 %s, %s, %s' % (s(sT), s(sOFF), s(sOFF2)))
        A('s_add_u32 %s, %s, 0x%x' % (s(sT), s(sT), WS_H2))
        A('buffer_load_dwordx4 %s, v%d, %s, %s offen sc1' % (v(E, 4), vLIN, WS, s(sT)))
        A('s_waitcnt vmcnt(0)')
    else:
        t3 = tag == 't3'
        flag_off(A, sT, F_XA if t3 else F_X1, 7 if t3 else 5)
        wait_ge(A, bail, SRD_WS, vFL, s(sT), 20 if t3 else 5, '1')
        A('s_add_u32 %s, %s, %s' % (s(sOFF3), s(sLDS), s(sOFF2)))
        A('s_add_u32 %s, %s, 0x%x' % (s(sT), s(sOFF3), WS_XA if t3 else WS_X1))
        A('s_add_u32 %s, %s, 4096' % (s(sT2), s(sT)))
        for k in range(5):
            A('buffer_load_dwordx4 %s, v%d, %s, %s offen offset:%d sc1'
              % (v(P + 4 * k, 4), vLIN, WS, s(sT if k < 4 else sT2), (k % 4) * 1024))
        A('s_waitcnt vmcnt(0)')
        unpack(A, X, P, 20)
        if t3:
            layernorm(A, X, T, vW, vR, 0)
            modulate(A, X, MS, MC, P)
            A('s_add_u32 %s, %s, 0x%x' % (s(sT), s(sOFF3), WS_H2))
            A('s_cmp_eq_u32 %s, 0' % s(sSLICE))
            A('s_cselect_b32 %s, %s, 0x%x' % (s(sT), s(sT), OOB))
            A('s_add_u32 %s, %s, 4096' % (s(sT2), s(sT)))
            for k in range(5):
                A('buffer_store_dwordx4 %s, v%d, %s, %s offen offset:%d sc1'
                  % (v(P + 4 * k, 4), vLIN, WS, s(sT if k < 4 else sT2), (k % 4) * 1024))
            unpack(A, X, P, 20)
        layernorm(A, X, T, vW, vR, 0, pack_to=P)
        for k in range(5):
            A('ds_write_b128 v%d, %s offset:%d' % (vH, v(P + 4 * k, 4), k * 1024))
        A('s_waitcnt lgkmcnt(0)')
    A('s_barrier')

    def rd(c):
        return 'ds_read_b128 %s, v%d offset:%d' % (v(HS + 4 * (c % 3), 4), vLIN, 1024 + c * 1024)
    A(rd(0))
    A(rd(1))
    for c in range(20):
        A('s_waitcnt lgkmcnt(%d)' % (1 if c < 19 else 0))
        A(mfma(ACC, W + c * 8, HS + 4 * (c % 3), c == 0))
        if c + 2 < 20:
            A(rd(c + 2))
        A(mfma(ACC + 4, W + c * 8 + 4, HS + 4 * (c % 3), c == 0))
    if tag == 't4':
        unpack(A, G, E, 4)
        for r in range(8):
            A(rnd(ACC + r, ACC + r))
        for r in range(0, 8, 2):
            A('v_pk_add_f32 %s, %s, %s' % (v(ACC + r, 2), v(ACC + r, 2), v(G + r, 2)))
    else:
        gelu(A, ACC, 8, G)
    for k in range(4):
        A('v_cvt_pk_bf16_f32 v%d, v%d, v%d' % (E + k, ACC + 2 * k, ACC + 2 * k + 1))
    if tag == 't5':
        A('s_mul_i32 %s, %s, %d' % (s(sOFF2), s(sRT), 54 * 1024))
    A('s_add_u32 %s, %s, %s' % (s(sT), s(sOFF), s(sOFF2)))
    A('s_add_u32 %s, %s, 0x%x' % (s(sT), s(sT), {'t3': WS_T, 't4': WS_X1, 't5': WS_U}[tag]))
    A('buffer_store_dwordx4 %s, v%d, %s, %s offen sc1' % (v(E, 4), vLIN, WS, s(sT)))
    done_flag(A, *{'t3': (F_T + 32, 5), 't4': (F_X1, 5), 't5': (F_U, 6)}[tag])
    next_tile(A, tag)


ROLES = [(20, 't2', 0), (5, 't3', 0), (5, 't3', 1), (2, 'att', 0),
         (20, 't2', 1), (5, 't3', 2), (5, 't3', 3), (2, 'att', 2),
         (20, 't2', 2), (5, 't4', 0), (5, 't4', 1), (2, 'att', 4),
         (14, 't5', 0), (14, 't5', 1), (4, 'att', 6),
         (14, 't5', 2), (20, 't6', 0), (20, 't6', 1), (6, 'att', 10)]
COPIES = {'t2': 3, 't3': 4, 't4': 2, 't5': 3, 't6': 2}


def dispatch(A, enabled):
    start = 0
    for i, (n, role, arg) in enumerate(ROLES):
        nxt = A.label('role')
        A('s_cmp_ge_u32 %s, %d' % (s(sWIDX), start + n))
        A('s_cbranch_scc1 %s' % nxt)
        if role in enabled:
            if role == 'att':
                A('s_sub_u32 %s, %s, %d' % (s(sSLICE), s(sWIDX), start - arg))
            else:
                A('s_sub_u32 %s, %s, %d' % (s(sSLICE), s(sWIDX), start))
                A('s_mov_b32 %s, %d' % (s(sCOPY), arg))
                A('s_mov_b32 %s, %d' % (s(sSTEP_RT), COPIES[role]))
            A('s_branch %s' % role)
        else:
            A('s_endpgm')
        A('%s:' % nxt)
        start += n
    A('s_endpgm')


def emit_trailing(A, bail, enabled):
    dispatch(A, enabled)
    if 'att' in enabled:
        attention(A, bail)
    for tag in ('t2', 't6'):
        if tag in enabled:
            ksplit(A, bail, tag)
    for tag in ('t3', 't4', 't5'):
        if tag in enabled:
            nsplit(A, bail, tag)
```

```python
import sys
from common import *
import rec, roles, wk, wk2

NAME = 'adaLN_cond__memory_aug_recurrent_mem_tr__mixer_s_mlp__prompt_kernel'


class Hooks:
    t = rec.AST

    def ready(self, A, bail, need):
        t, a_, b_ = self.t, rec.sOWN, rec.sLATE
        top, ok = A.label('kv'), A.label('kvok')
        A('s_cmp_ge_u32 %s, %s' % (s(rec.sKVOK), s(need)))
        A('s_cbranch_scc1 %s' % ok)
        A('v_lshrrev_b32 v%d, 2, v%d' % (t + 1, rec.vLIN))
        A('%s:' % top)
        A('buffer_load_dword v%d, v%d, %s, %s offen sc1' % (t, t + 1, srd(SRD_WS), s(rec.sFLG)))
        A('s_waitcnt vmcnt(0)')
        A('v_readlane_b32 %s, v%d, 2' % (s(a_), t))
        A('v_readlane_b32 %s, v%d, 4' % (s(b_), t))
        A('s_min_u32 %s, %s, %s' % (s(rec.sKVOK), s(a_), s(b_)))
        A('v_readlane_b32 %s, v%d, 3' % (s(a_), t))
        A('v_readlane_b32 %s, v%d, 5' % (s(b_), t))
        A('s_min_u32 %s, %s, %s' % (s(a_), s(a_), s(b_)))
        A('s_lshl_b32 %s, %s, 1' % (s(rec.sKVOK), s(rec.sKVOK)))
        A('s_lshl_b32 %s, %s, 1' % (s(a_), s(a_)))
        A('s_add_u32 %s, %s, 1' % (s(a_), s(a_)))
        A('s_min_u32 %s, %s, %s' % (s(rec.sKVOK), s(rec.sKVOK), s(a_)))
        A('s_cmp_ge_u32 %s, %s' % (s(rec.sKVOK), s(need)))
        A('s_cbranch_scc1 %s' % ok)
        spin_guard(A, rec.sSPIN, top, bail)
        A('%s:' % ok)

    def rec_wait_start(self, A, bail):
        t = self.t
        A('v_lshrrev_b32 v%d, 4, v%d' % (t + 1, rec.vLIN))
        A('v_and_b32 v%d, 7, v%d' % (t + 1, t + 1))
        A('v_lshlrev_b32 v%d, 4, v%d' % (t + 1, t + 1))
        wk.wait_ge(A, bail, SRD_DBG, t + 1, str(wk.DBG_INIT), 8, '24', t, sp=rec.sSPIN)
        A('s_lshl_b32 %s, %s, 5' % (s(rec.sFLG), s(sHEAD)))
        A('s_add_u32 %s, %s, %d' % (s(rec.sFLG), s(rec.sFLG), WS_FLAG + wk.F_QKV))
        A('s_mov_b32 %s, 0' % s(rec.sKVOK))
        A('s_mov_b32 %s, 1' % s(rec.sT))
        self.ready(A, bail, rec.sT)
        A('s_lshl_b32 %s, %s, 1' % (s(5), s(sHEAD)))
        A('s_add_u32 %s, %s, %s' % (s(5), s(5), s(sTEAM)))
        A('s_lshl_b32 %s, %s, 2' % (s(5), s(5)))
        A('s_add_u32 %s, %s, %d' % (s(5), s(5), WS_FLAG + wk.F_KM))

    def rec_chores(self, A, bail):
        def fn():
            A('s_add_u32 %s, %s, 1' % (s(rec.sT), s(rec.sSTEP)))
            wk.signal(A, SRD_WS, s(5), s(rec.sT), self.t)
            A('s_lshr_b32 %s, %s, 1' % (s(rec.sT), s(rec.sSTEP)))
            A('s_add_u32 %s, %s, 2' % (s(rec.sT), s(rec.sT)))
            A('s_min_u32 %s, %s, 32' % (s(rec.sT), s(rec.sT)))
            self.ready(A, bail, rec.sT)
        wk.on_wave0(A, fn)

    def rec_signal_last(self, A):
        A('s_barrier')
        wk.on_wave0(A, lambda: wk.signal(A, SRD_WS, s(5), '64', self.t))
        A('s_waitcnt vmcnt(0)')


def generate(path, enabled=('att', 't2', 't3', 't4', 't5', 't6'), stamps=False, name=NAME, force_slow=False):
    A = Asm()
    bail = name + '_exit'
    kernel_entry(A, name, 256)
    roles.assign_roles(A, bail, 'rec_jump', 'worker')
    A('rec_jump:')
    A('s_branch rec_role')
    kernel_exit(A, name)
    A('worker:')
    A('v_and_b32 v0, 63, v0')
    A('v_lshlrev_b32 v1, 4, v0')
    A('s_mov_b32 %s, 0' % s(wk.sSP))
    wk.init_workspace(A)
    wk.init_done(A)
    A('s_cmp_lt_u32 %s, 128' % s(sWIDX))
    A('s_cbranch_scc1 do_h')
    A('s_cmp_lt_u32 %s, 162' % s(sWIDX))
    A('s_cbranch_scc1 do_qkv')
    A('s_sub_u32 %s, %s, 162' % (s(wk.sSLICE), s(sWIDX)))
    wk.mod_stage(A)
    A('s_branch do_qkv')
    A('do_h:')
    wk.h_stage(A, bail)
    A('do_qkv:')
    A('s_barrier')
    wk.qkv_stage(A, bail)
    A('s_barrier')
    wk2.emit_trailing(A, 'bail2', enabled)
    A('bail2:')
    A('s_endpgm')
    A('rec_role:')
    if force_slow:
        A('s_mov_b32 %s, 0' % s(sFAST))
    rec.emit_rec(A, Hooks(), 'bail2', stamps)
    n = A.pad_hazards()
    pr = A.check_waits([name])
    print('nops added', n, 'wait problems', len(pr), 'instructions', len(A.ins))
    for p in pr[:20]:
        print(p)
    head = open('adaLN_cond__memory_aug_recurrent_mem_tr__mixer_s_mlp__prompt.s.ref').read()
    head = head[:head.index('; Override launch geometry')]
    head += '; @launch grid=(256,1,1) block=(256,1,1) lds=163840\n'
    head += '.amdgcn_target "amdgcn-amd-amdhsa--gfx950"\n.text\n.globl %s\n.type %s,@function\n' % (name, name)
    text = head + A.text() + '.section .rodata,"a"\n.p2align 6\n' + descriptor(name)
    open(path, 'w').write(text)
    print(path, len(text), 'bytes')


if __name__ == '__main__':
    rec.OPT.update(xfirst=1, d_own=20, d_red=16, latei=0, smask=0)
    kw = {}
    for kv in sys.argv[2:]:
        k_, v_ = kv.split('=')
        if k_ == 'enabled':
            kw['enabled'] = tuple(v_.split(','))
        elif k_ in ('stamps', 'force_slow'):
            kw[k_] = bool(int(v_))
        else:
            rec.OPT[k_] = int(v_)
    generate(sys.argv[1], **kw)
```

```python
from asmlib import Asm, v, a, s, u

S, D, H, DH, M, SEG, NSEG, F = 2048, 640, 32, 128, 8, 32, 64, 1728

WS_BYTES = 268435456
ACT = S * D * 2
WS_FLAG = 0x0
FLAG_BYTES = 0x20000
WS_MOD = 0x20000
WS_STAMP = 0x28000
WS_PART = 0x40000
WS_MEMO = 0x100000
WS_MEMX = 0x1A0000
WS_KM = 0x240000
WS_VM = 0x640000
WS_H = 0xA40000
WS_XA = WS_H + ACT
WS_H2 = WS_XA + ACT
WS_HN = WS_H2 + ACT
WS_T = WS_HN + ACT
WS_X1 = WS_T + ACT
WS_U = 0x1A00000
WS_Q = 0x2200000
WS_K = 0x3200000
WS_V = 0x4200000
WS_O = 0x5200000
assert WS_X1 + ACT <= WS_U and WS_U + S * F * 2 <= WS_Q

PTR = {n: 32 + 2 * i for i, n in enumerate(
    ['x', 'mem0', 'wq', 'wk', 'wv', 'wo', 'seglen', 'bx', 'w1', 'w2', 'w3', 'w4', 'c', 'wmod', 'out', 'dbg', 'ws'])}
NBYTES = {'x': ACT, 'mem0': M * D * 2, 'wq': D * 4096 * 2, 'wk': D * 4096 * 2, 'wv': D * 4096 * 2,
          'wo': D * 4096 * 2, 'w1': D * D * 2, 'w2': D * D * 2, 'w3': D * F * 2, 'w4': D * F * 2,
          'c': D * 2, 'wmod': D * 6 * D * 2, 'out': ACT, 'dbg': 256, 'ws': WS_BYTES}
SRD_WS, SRD_A, SRD_B, SRD_C, SRD_D, SRD_DBG = 8, 12, 16, 20, 24, 28
sWAVE, sTEAM, sHEAD, sFAST, sWIDX = 66, 67, 68, 69, 70
SPIN_LIMIT = 1 << 18
WS_TRACE = 0x6200000
WS_TL = 0x30000
DIAG = {'on': False}


def srd(n):
    return s(n, 4)


def build_srd(A, dst, name):
    p = PTR[name]
    A('s_mov_b32 %s, %s' % (s(dst), s(p)))
    A('s_and_b32 %s, %s, 0xffff' % (s(dst + 1), s(p + 1)))
    A('s_mov_b32 %s, 0x%x' % (s(dst + 2), NBYTES[name]))
    A('s_mov_b32 %s, 0x20000' % s(dst + 3))


def kernel_entry(A, name, nwg):
    A('.p2align 8')
    A('%s:' % name)
    A('s_cmp_ge_u32 s2, %d' % nwg)
    A('s_cbranch_scc1 %s_exit' % name)
    A('s_load_dwordx16 s[32:47], s[0:1], 0')
    A('s_load_dwordx16 s[48:63], s[0:1], 64')
    A('s_load_dwordx2 s[64:65], s[0:1], 128')
    A('v_lshrrev_b32 v1, 6, v0')
    A('s_nop 0')
    A('v_readfirstlane_b32 %s, v1' % s(sWAVE))
    A('s_waitcnt lgkmcnt(0)')
    build_srd(A, SRD_WS, 'ws')
    build_srd(A, SRD_DBG, 'dbg')
    for r in (SRD_A, SRD_B, SRD_C, SRD_D):
        build_srd(A, r, 'ws')


def kernel_exit(A, name):
    A('%s_exit:' % name)
    A('s_endpgm')


def descriptor(name, vgpr=512, accum=256):
    return '\n'.join([
        '.amdhsa_kernel %s' % name,
        '  .amdhsa_next_free_vgpr %d' % vgpr,
        '  .amdhsa_next_free_sgpr 102',
        '  .amdhsa_accum_offset %d' % accum,
        '  .amdhsa_group_segment_fixed_size 0',
        '  .amdhsa_kernarg_size 136',
        '  .amdhsa_user_sgpr_count 2',
        '  .amdhsa_user_sgpr_kernarg_segment_ptr 1',
        '  .amdhsa_system_sgpr_workgroup_id_x 1',
        '  .amdhsa_float_denorm_mode_32 3',
        '.end_amdhsa_kernel', ''])


def spin_guard(A, cnt, back, bail):
    A('s_add_u32 %s, %s, 1' % (s(cnt), s(cnt)))
    A('s_cmp_lt_u32 %s, 0x%x' % (s(cnt), SPIN_LIMIT))
    A('s_cbranch_scc1 %s' % back)
    A('s_branch %s' % bail)


def f2u(x):
    import struct
    return struct.unpack('<I', struct.pack('<f', x))[0]


def mark(A, k, idx_sreg, base=0):
    if not DIAG['on']:
        return
    skip = A.label('nomark')
    A('s_cmp_lg_u32 %s, 0' % s(sWAVE))
    A('s_cbranch_scc1 %s' % skip)
    A('s_memrealtime s[6:7]')
    A('s_waitcnt lgkmcnt(0)')
    A('v_mov_b32 v2, s6')
    A('s_lshl_b32 s6, %s, 6' % s(idx_sreg))
    A('s_add_u32 s6, s6, %d' % (WS_TL + base * 64 + 4 * k))
    A('v_mov_b32 v3, 0')
    A('s_mov_b64 exec, 1')
    A('buffer_store_dword v2, v3, %s, s6 offen' % srd(SRD_WS))
    A('s_mov_b64 exec, -1')
    A('%s:' % skip)
```

```python
import math
from common import *
from asmlib import interleave

L_MEMT = 0
L_OX = 0
L_QT = 10240
L_KT = L_QT + 2304
L_TCH = L_KT + 2304
L_KX = 16384
L_WL = L_KX + 16384
L_END = L_WL + 131072
assert L_TCH + 512 <= L_KX and L_END <= 163840

vKXR, vIDX, vAR, vBL, vQW, vQR, vLIN, vOXW, vSEL, vPST, vTCH, vMST, vML4, vML2, vVX, vPUB = range(16)
VX, VXN = 16, 24
ACCV, ACCQ, ACCK = 32, 36, 40
AST = 44
BST = 56
T0 = 72
WREG = 80

sSTEP, sTAG, sSPIN, sMO, sMX, sMOW, sMXW, sKVK, sPUB, sT, sPT0, sPT1, sPT2, sPL, sRED, sOWN, sLATE, sFLG = range(72, 90)
sEXM = 90
sST = 92
sSTAMP = 44
sKVOK, sKXM, sPUBV, sPLP, sKVV, sTOF = 96, 97, 100, 101, 3, 4
sSCL = 98

OPT = {}
SCL = 128 ** -0.5 * math.log2(math.e)


def smf(acc, areg, breg):
    return 'v_smfmac_f32_16x16x64_bf16 %s, %s, %s, %s' % (v(acc, 4), v(areg, 4), u(breg, 8), v(vIDX))


class Rec:
    def __init__(self, A, cls, fast, hooks, stamps=False):
        self.A, self.cls, self.fast, self.hooks, self.stamps = A, cls, fast, hooks, stamps
        self.ntile = 3 if cls == 0 else 2
        klds = (3, 7) if cls == 0 else ()
        self.a_ops = []
        for c in range(10):
            if c in klds:
                self.a_ops.append(('k', c))
            self.a_ops.append(('v', c))
        self.d_ops = [(0, 0), (0, 1), (0, 2), (1, 3)] + ([(2, 0), (2, 1)] if cls == 0 else [])
        self.lds_ops = self.a_ops + self.d_ops
        self.nlds = len(self.lds_ops)
        self.slots = [BST, BST + 8, T0] if cls == 0 else [BST, BST + 8]
        self.d_slots = [VX, AST, T0]
        r = WREG
        self.w, self.wo = {}, {}
        for m in 'qkv':
            for c in range(20):
                if (m, c) not in self.lds_ops:
                    self.w[m, c] = r
                    r += 8
        for t in range(self.ntile):
            for c in range(4):
                if (t, c) not in self.lds_ops:
                    self.wo[t, c] = r
                    r += 8
        assert r == 512
        self.tag = 'rec%d%s' % (cls, 'f' if fast else 's')

    def stamp(self, k, step=40):
        if not self.stamps or not (OPT.get('smask', 0xffff) >> k) & 1:
            return
        A = self.A
        skip = A.label('nostamp')
        A('s_cmp_lg_u32 %s, %d' % (s(sSTEP), step))
        A('s_cbranch_scc1 %s' % skip)
        A('s_memtime %s' % s(sST, 2))
        A('s_waitcnt lgkmcnt(0)')
        A('s_mov_b32 %s, %s' % (s(sSTAMP + k), s(sST)))
        A('%s:' % skip)

    def trace(self, reg):
        if not OPT.get('trace', 0):
            return
        A = self.A
        A('s_memrealtime %s' % s(sST, 2))
        A('s_waitcnt lgkmcnt(0)')
        A('s_mov_b32 m0, %s' % s(sSTEP))
        A('s_nop 0')
        A('v_writelane_b32 v%d, %s, m0' % (reg, s(sST)))

    def load_weights(self):
        A = self.A
        vW, vWo, vSW, vSR, vSO = T0, T0 + 1, T0 + 2, T0 + 3, T0 + 4
        t0, t1 = T0 + 5, T0 + 6
        A('s_lshl_b32 %s, %s, 3' % (s(sT), s(sWAVE)))
        A('v_lshrrev_b32 v%d, 4, v0' % t0)
        A('v_add_u32 v%d, %s, v%d' % (t0, s(sT), t0))
        A('v_and_b32 v%d, 15, v0' % t1)
        A('v_lshlrev_b32 v%d, 13, v%d' % (vW, t0))
        A('v_lshl_add_u32 v%d, v%d, 4, v%d' % (vW, t1, vW))
        A('v_lshrrev_b32 v%d, 2, v0' % t0)
        A('v_and_b32 v%d, 3, v0' % t1)
        A('v_mul_u32_u24 v%d, 1280, v%d' % (vWo, t0))
        A('v_lshl_add_u32 v%d, v%d, 4, v%d' % (vWo, t1, vWo))
        A('s_lshl_b32 %s, %s, 11' % (s(sT), s(sWAVE)))
        A('s_add_u32 %s, %s, %d' % (s(sT), s(sT), L_KX))
        A('v_add_u32 v%d, %s, v%d' % (vSW, s(sT), vLIN))
        A('v_and_b32 v%d, 15, v0' % t0)
        A('v_lshl_add_u32 v%d, v%d, 2, %s' % (t0, t0, s(sT)))
        A('v_and_b32 v%d, 15, v0' % vSR)
        A('s_lshl_b32 %s, %s, 6' % (s(sT), s(sWAVE)))
        A('s_add_u32 %s, %s, %d' % (s(sT), s(sT), L_KX))
        A('v_lshl_add_u32 v%d, v%d, 2, %s' % (vSR, vSR, s(sT)))
        A('v_bfe_u32 v%d, v0, 4, 1' % t1)
        A('v_lshl_add_u32 v%d, v%d, 9, v%d' % (vSR, t1, vSR))
        A('v_lshrrev_b32 v%d, 5, v0' % t1)
        A('v_lshl_add_u32 v%d, v%d, 8, v%d' % (vSR, t1, vSR))
        A('v_lshrrev_b32 v%d, 4, v0' % t1)
        A('v_lshl_add_u32 v%d, v%d, 8, v%d' % (vSO, t1, t0))
        A('s_lshl_b32 %s, %s, 8' % (s(sT), s(sHEAD)))
        A('s_mul_i32 %s, %s, %d' % (s(sOWN), s(sTEAM), 320 * 8192))
        A('s_sub_u32 %s, %d, %s' % (s(sLATE), 320 * 8192, s(sOWN)))
        A('s_add_u32 %s, %s, %s' % (s(sOWN), s(sOWN), s(sT)))
        A('s_add_u32 %s, %s, %s' % (s(sLATE), s(sLATE), s(sT)))

        if self.cls == 0:
            A('s_mul_i32 %s, %s, 3' % (s(sPT0), s(sWAVE)))
        else:
            A('s_lshl_b32 %s, %s, 1' % (s(sPT0), s(sWAVE)))
            A('s_add_u32 %s, %s, 2' % (s(sPT0), s(sPT0)))
        A('s_mul_i32 %s, %s, %d' % (s(sPT1), s(sHEAD), 128 * 1280))
        A('s_mul_i32 %s, %s, 640' % (s(sT), s(sTEAM)))
        A('s_add_u32 %s, %s, %s' % (s(sPT1), s(sPT1), s(sT)))
        A('s_lshl_b32 %s, %s, 6' % (s(sT), s(sPT0)))
        A('s_add_u32 %s, %s, %s' % (s(sPT1), s(sPT1), s(sT)))

        nt = ' nt' if OPT.get('nt', 0) else ''

        def request(op, dst):
            for h in range(2):
                if op[0] in ('q', 'k', 'v'):
                    c = op[1]
                    A('s_add_u32 %s, %s, 0x%x' % (s(sT), s(sOWN if c < 10 else sLATE), (32 * (c % 10) + 4 * h) * 8192))
                    A('buffer_load_dwordx4 %s, v%d, %s, %s offen%s'
                      % (u(dst + 4 * h, 4), vW, srd({'q': SRD_A, 'k': SRD_B, 'v': SRD_C}[op[0]]), s(sT), nt))
                else:
                    A('s_add_u32 %s, %s, %d' % (s(sT), s(sPT1), (32 * op[1] + 16 * h) * 1280 + 64 * op[0]))
                    A('buffer_load_dwordx4 %s, v%d, %s, %s offen%s' % (u(dst + 4 * h, 4), vWo, srd(SRD_D), s(sT), nt))

        def arrange(i, op, dst):
            shared = op[0] in ('q', 'k', 'v')
            base = (i % 2) * 8192 if shared else 0
            for h in range(2):
                A('ds_write_b128 v%d, %s offset:%d' % (vSW, u(dst + 4 * h, 4), base + h * 1024))
            if shared:
                A('s_waitcnt lgkmcnt(0)')
                A('s_barrier')
            for k in range(4):
                if shared:
                    o = base // 256 + 8 * k
                    A('ds_read2st64_b32 %s, v%d offset0:%d offset1:%d' % (u(dst + 2 * k, 2), vSR, o, o + 4))
                else:
                    A('ds_read2_b32 %s, v%d offset0:%d offset1:%d'
                      % (u(dst + 2 * k, 2), vSO if k < 2 else t0, 32 * (k & 1), 32 * (k & 1) + 16))
        A('v_add_u32 v%d, 1024, v%d' % (t0, vSO))
        first = [('v', c) for c in range(10)] + [('k', 3), ('k', 7)]
        rest = [(m, c) for c in range(20) for m in 'qkv' if (m, c) not in first]
        todo = [(op, self.w.get(op, self.w[rest[-12 + i]])) for i, op in enumerate(first)]
        todo += [(op, self.w[op]) for op in rest]
        todo += [(op, VX + 8 * i) for i, op in enumerate(self.d_ops)] + list(self.wo.items())
        issued, DEPTH = 0, 28
        for i, (op, r) in enumerate(todo):
            while issued < min(len(todo), i + DEPTH):
                request(*todo[issued])
                issued += 1
            A('s_waitcnt vmcnt(%d)' % (2 * (issued - i - 1)))
            if i == 60:
                A('s_waitcnt lgkmcnt(0)')
                A('s_barrier')
            arrange(i, op, r)
            if op in self.lds_ops:
                k = self.lds_ops.index(op)
                A('s_waitcnt lgkmcnt(0)')
                A('ds_write_b128 v%d, %s offset:%d' % (vBL, u(r, 4), k * 2048))
                A('ds_write_b128 v%d, %s offset:%d' % (vBL, u(r + 4, 4), k * 2048 + 1024))
            elif i >= 60:
                A('s_waitcnt lgkmcnt(6)')
        A('s_waitcnt lgkmcnt(0)')
        A('s_barrier')
        A('v_add_u32 v%d, %d, v%d' % (vKXR, L_KX, vLIN))
        A('s_mul_i32 %s, %s, %d' % (s(sT), s(sTEAM), 40 * 4096))
        A('s_lshl_b32 %s, %s, 14' % (s(sPT0), s(sPT0)))
        A('s_add_u32 %s, %s, %s' % (s(sPT0), s(sPT0), s(sT)))
        A('s_lshl_b32 %s, %s, 7' % (s(sT), s(sHEAD)))
        A('s_add_u32 %s, %s, %s' % (s(sPT0), s(sPT0), s(sT)))
        A('s_add_u32 %s, %s, 0x%x' % (s(sPT0), s(sPT0), WS_PART))
        A('s_add_u32 %s, %s, 0x4000' % (s(sPT1), s(sPT0)))
        A('s_add_u32 %s, %s, 0x8000' % (s(sPT2), s(sPT0)))

    def a_read(self, c, r):
        return 'ds_read_b128 %s, v%d offset:%d' % (v(r, 4), vAR, L_MEMT + c * 512)

    def w_reads(self, i, r):
        return ['ds_read_b128 %s, v%d offset:%d' % (v(r, 4), vBL, i * 2048),
                'ds_read_b128 %s, v%d offset:%d' % (v(r + 4, 4), vBL, i * 2048 + 1024)]

    def b_reads(self, i):
        return self.w_reads(i, self.slots[i % len(self.slots)]) if i < len(self.a_ops) else []

    def d_reads(self, i):
        return self.w_reads(len(self.a_ops) + i, self.d_slots[i % 3]) if i < len(self.d_ops) else []

    def b_first(self):
        for i in range(len(self.slots)):
            for x in self.b_reads(i):
                self.A(x)

    def mem_issue(self, soff, R):
        A = self.A
        A('buffer_load_dwordx4 %s, v%d, %s, %s offen sc1' % (v(R[0], 4), vML4, srd(SRD_WS), s(soff)))
        A('buffer_load_dwordx4 %s, v%d, %s, %s offen offset:1024 sc1' % (v(R[1], 4), vML4, srd(SRD_WS), s(soff)))
        A('buffer_load_dwordx2 %s, v%d, %s, %s offen sc1' % (v(R[2], 2), vML2, srd(SRD_WS), s(soff)))

    def mem_check(self, R):
        A, t, w = self.A, VXN + 6, VXN + 7
        x = [R[0] + i for i in range(4)] + [R[1] + i for i in range(4)] + [R[2], R[2] + 1]
        A('v_max3_u32 v%d, v%d, v%d, v%d' % (t, x[0], x[1], x[2]))
        A('v_max3_u32 v%d, v%d, v%d, v%d' % (w, x[3], x[4], x[5]))
        A('v_max3_u32 v%d, v%d, v%d, v%d' % (t, t, x[6], x[7]))
        A('v_max3_u32 v%d, v%d, v%d, v%d' % (w, w, x[8], x[9]))
        A('v_max_u32 v%d, v%d, v%d' % (t, t, w))
        A('v_cmp_eq_u32 vcc, -1, v%d' % t)

    def mem_write(self, R, lds_off):
        A = self.A
        A('ds_write_b128 v%d, %s offset:%d' % (vML4, v(R[0], 4), lds_off))
        A('ds_write_b128 v%d, %s offset:%d' % (vML4, v(R[1], 4), lds_off + 1024))
        A('ds_write_b64 v%d, %s offset:%d' % (vML2, v(R[2], 2), lds_off))

    OWN = (AST, AST + 4, AST + 8)
    LATE = (T0, T0 + 4, VXN)

    def retry_loop(self, name, issue, nloads, check, finish, back):
        def body(bail):
            A = self.A
            loop = A.label(name + '_loop')
            depth = OPT.get('depth', 2)
            A('s_mov_b64 exec, vcc')
            for _ in range(depth - 1):
                issue()
            A('%s:' % loop)
            A('s_mov_b64 exec, vcc')
            issue()
            A('s_mov_b64 exec, -1')
            A('s_waitcnt vmcnt(%d) ; racy-ok' % (nloads * (depth - 1)))
            check()
            done = A.label(name + '_done')
            A('s_cbranch_vccz %s' % done)
            spin_guard(A, sSPIN, loop, bail)
            A('%s:' % done)
            finish()
            A('s_branch %s' % back)
        return body

    def warm(self, n):
        for _ in range(n):
            self.A('v_mov_b32 v%d, v%d' % (vIDX, vIDX))
            self.A('s_nop 1')

    def poll_own(self):
        A = self.A
        top, retry = A.label('own'), A.label('own_retry')
        self.warm(OPT.get('d_own', 4))
        self.mem_issue(sMO, self.OWN)
        if OPT.get('xfirst', 0):
            self.warm(OPT.get('d_own2', 12))
            A('s_waitcnt vmcnt(0)')
        else:
            A('s_barrier')
            self.warm(OPT.get('d_own2', 12))
            A('s_waitcnt vmcnt(0)')
        self.mem_check(self.OWN)
        A('s_cbranch_vccnz %s' % retry)
        self.mem_write(self.OWN, L_MEMT)
        A('%s:' % top)
        self.cold.append((retry, self.retry_loop(
            'own', lambda: self.mem_issue(sMO, self.OWN), 3, lambda: self.mem_check(self.OWN),
            lambda: (self.mem_write(self.OWN, L_MEMT), A('s_waitcnt vmcnt(0)')), top)))
        if OPT.get('latei', 1) == -1:
            self.mem_issue(sMX, self.LATE)
        A('s_waitcnt lgkmcnt(0)')

    def take_late(self):
        A = self.A
        top, retry = A.label('late'), A.label('late_retry')
        A('s_waitcnt vmcnt(0)')
        self.mem_check(self.LATE)
        A('s_cbranch_vccnz %s' % retry)
        self.mem_write(self.LATE, L_MEMT + 5120)
        A('%s:' % top)
        self.cold.append((retry, self.retry_loop(
            'late', lambda: self.mem_issue(sMX, self.LATE), 3, lambda: self.mem_check(self.LATE),
            lambda: (self.mem_write(self.LATE, L_MEMT + 5120), A('s_waitcnt vmcnt(0)')), top)))

    def phase_a1(self):
        A = self.A
        ns = len(self.slots)
        q = [('b', i) for i in range(ns) for _ in range(2)]

        def issue(x, tagc):
            A(x)
            q.append(tagc)

        def need(tagc):
            if tagc in q:
                k = max(i for i, x in enumerate(q) if x == tagc)
                A('s_waitcnt lgkmcnt(%d)' % (len(q) - 1 - k))
                del q[:k + 1]
        for c in range(2):
            issue(self.a_read(c, AST + 4 * c), ('a', c))
        later = []
        for c in range(10):
            ar = AST + 4 * (c % 3)
            need(('a', c))
            for m, acc in (('q', ACCQ), ('k', ACCK), ('v', ACCV)):
                reload = []
                if (m, c) in self.w:
                    A(smf(acc, ar, self.w[m, c]))
                else:
                    i = self.lds_ops.index((m, c))
                    need(('b', i))
                    A(smf(acc, ar, self.slots[i % ns]))
                    reload = [(x, ('b', i + ns)) for x in self.b_reads(i + ns)]
                if m == 'q' and c + 2 < 10:
                    later.insert(0, (self.a_read(c + 2, AST + 4 * ((c + 2) % 3)), ('a', c + 2)))
                for x in later[:2]:
                    issue(*x)
                later = later[2:] + reload
            if c == OPT.get('latei', 1) and self.cls == 1:
                self.mem_issue(sMX, self.LATE)
            if c == OPT.get('latec', 9) and self.cls == 1:
                self.stamp(3)
                self.take_late()
                q += [None] * 3

    def prefetch(self):
        ws = srd(SRD_WS)
        x = ['buffer_load_dwordx4 %s, v%d, %s, %s offen offset:%d sc1' % (v(VXN + 4 * i, 4), vVX, ws, s(sKVV), i * 1024)
             for i in range(2)]
        x.append('s_mov_b32 m0, %s' % s(sKXM))
        x += ['buffer_load_dwordx4 v%d, %s, %s offen offset:%d sc1 lds' % (vVX, ws, s(sKVK), i * 1024) for i in range(2)]
        if self.cls == 0:
            x.append('s_mov_b32 m0, %d' % L_TCH)
            x.append('buffer_load_dword v%d, %s, %s offen sc1 lds' % (vTCH, ws, s(sTOF)))
        return x + (self.hooks.rec_progress(self.cls) or [])

    def kx_read(self, c):
        kx = BST + 8 * (c % 2)
        return ['ds_read_b128 %s, v%d offset:%d' % (v(kx, 4), vKXR, c * 1024),
                'ds_read_b128 %s, v%d offset:%d' % (v(kx + 4, 4), vKXR, (4 + c) * 1024)]

    def phase_a2(self):
        A = self.A
        ar = {10 + i: r for i, r in enumerate(list(range(AST, BST + 16, 4)) + [T0, T0 + 4])}
        ar[19] = ar[10]
        for c in range(10, 13):
            A(self.a_read(c, ar[c]))
        fill = [self.a_read(c, ar[c]) for c in range(13, 20)] + self.prefetch()
        waits = {10: 2, 11: 2, 12: 2, 13: 2, 14: 2, 15: 1, 17: 0}
        for c in range(10, 20):
            if c in waits:
                A('s_waitcnt lgkmcnt(%d)' % waits[c])
            elif fill:
                A(fill.pop(0))
            if c == 10:
                A(smf(ACCV, ar[c], self.w['v', c]))
                A(fill.pop(0))
            A(smf(ACCQ, ar[c], self.w['q', c]))
            if fill:
                A(fill.pop(0))
            A(smf(ACCK, ar[c], self.w['k', c]))
        for x in fill:
            A(x)
        vs = [smf(ACCV, ar[c], self.w['v', c]) for c in (13, 14, 15, 16, 11, 12, 17, 18, 19)]
        for x in vs[:3]:
            A(x)
        for acc, off in ((ACCQ, 0), (ACCK, 2304)):
            A('v_cvt_pk_bf16_f32 v%d, v%d, v%d' % (acc, acc, acc + 1))
            A('v_cvt_pk_bf16_f32 v%d, v%d, v%d' % (acc + 1, acc + 2, acc + 3))
            A('ds_write_b64 v%d, %s offset:%d' % (vQW, v(acc, 2), off))
        fill = [None, None] + self.kx_read(0) + self.kx_read(1)
        for x, y in zip(vs[3:], fill):
            A(x)
            if y:
                A(y)
        A('s_waitcnt lgkmcnt(4)')
        A('s_barrier')

    def publish(self, reg, soff):
        self.A('buffer_store_dwordx2 %s, v%d, %s, %s offen sc1' % (v(reg, 2), vPUB, srd(SRD_WS), s(soff)))

    def phase_s(self):
        A = self.A
        SX0, SX1, SM = ACCQ, ACCK, T0
        qk = [(AST, AST + 4), (AST + 8, T0 + 4)]

        def rd(c):
            q, k = qk[c % 2]
            return ['ds_read_b64_tr_b16 %s, v%d offset:%d' % (v(q, 2), vQR, c * 576),
                    'ds_read_b64_tr_b16 %s, v%d offset:%d' % (v(q + 2, 2), vQR, c * 576 + 32),
                    'ds_read_b64_tr_b16 %s, v%d offset:%d' % (v(k, 2), vQR, 2304 + c * 576),
                    'ds_read_b64_tr_b16 %s, v%d offset:%d' % (v(k + 2, 2), vQR, 2304 + c * 576 + 32)]
        for x in rd(0) + rd(1):
            A(x)
        self.publish(ACCK, sPUB)
        A('v_cvt_pk_bf16_f32 v%d, v%d, v%d' % (ACCV, ACCV, ACCV + 1))
        A('v_cvt_pk_bf16_f32 v%d, v%d, v%d' % (ACCV + 1, ACCV + 2, ACCV + 3))

        def mm(c, i):
            q, k = qk[c % 2]
            kx = BST + 8 * (c % 2)
            acc, areg = ((SX0, kx), (SX1, kx + 4), (SM, k))[i]
            A('v_mfma_f32_16x16x32_bf16 %s, %s, %s, %s' % (v(acc, 4), v(areg, 4), v(q, 4), v(acc, 4) if c else '0'))
        A('s_waitcnt lgkmcnt(4)')
        for i in range(3):
            mm(0, i)
        A('s_waitcnt lgkmcnt(0)')
        nxt = rd(2) + self.kx_read(2)
        for i in range(3):
            mm(1, i)
            A(nxt[2 * i])
            A(nxt[2 * i + 1])
        nxt = rd(3) + self.kx_read(3)
        for x in nxt[:2]:
            A(x)
        A('s_waitcnt lgkmcnt(2)')
        mm(2, 0)
        A(nxt[2])
        A(nxt[3])
        mm(2, 1)
        A(nxt[4])
        A(nxt[5])
        mm(2, 2)
        self.publish(ACCV, sPUBV)
        A('s_waitcnt lgkmcnt(0)')
        mm(3, 2)
        A('v_xor_b32 v%d, 0x%x, v%d' % (vKXR, L_KX ^ (L_KX + 8192), vKXR))
        mm(3, 0)
        mm(3, 1)

    def softmax_pv(self):
        A = self.A
        X, Y, SM = ACCQ, ACCK, T0
        t, w = T0 + 4, T0 + 5
        P, PL, PH = Y, SM + 2, T0 + 6
        O0, O1, L, ONE, VM = AST + 4, BST + 8, AST + 8, AST, ACCV
        idm = 'quad_perm:[0,1,2,3]'
        full = 'row_mask:0xf bank_mask:0xf'
        for r in range(4):
            A('v_mov_b32 v%d, 0x3f803f80' % (ONE + r))
        A('v_mov_b64 %s, 0' % v(PH, 2))
        for r in range(2):
            A('v_mov_b32_dpp v%d, v%d %s row_mask:0xf bank_mask:0xc' % (SM + r, SM + 2 + r, idm))
        for r in range(4):
            A('v_mov_b32_dpp v%d, v%d %s row_mask:0xf bank_mask:0xc' % (X + r, Y + r, idm))
        A('v_max3_f32 v%d, v%d, v%d, v%d' % (t, SM, SM + 1, X))
        A('v_max3_f32 v%d, v%d, v%d, v%d' % (w, X + 1, X + 2, X + 3))
        A('v_max_f32 v%d, v%d, v%d' % (t, t, w))
        A('v_mov_b64 %s, 0' % v(PL, 2))
        A('v_max_f32_dpp v%d, v%d, v%d row_ror:8 %s' % (t, t, t, full))
        for sw in ('v_permlane16_swap_b32', 'v_permlane32_swap_b32'):
            A('v_mov_b32 v%d, v%d' % (w, t))
            A('%s v%d, v%d' % (sw, t, w))
            A('v_max_f32 v%d, v%d, v%d' % (t, t, w))
        A('v_mul_f32 v%d, 0x%x, v%d' % (t, f2u(-SCL), t))
        for r in (X, X + 2, SM):
            A('v_pk_fma_f32 %s, %s, %s, %s op_sel_hi:[1,0,0]' % (v(r, 2), v(r, 2), s(sSCL, 2), v(t, 2)))
        for r in (X, X + 1, X + 2, X + 3, SM, SM + 1):
            A('v_exp_f32 v%d, v%d' % (r, r))
        A('v_cvt_pk_bf16_f32 v%d, v%d, v%d' % (P, X, X + 1))
        A('v_cvt_pk_bf16_f32 v%d, v%d, v%d' % (P + 1, X + 2, X + 3))
        A('v_cvt_pk_bf16_f32 v%d, v%d, v%d' % (t, SM, SM + 1))
        A('v_mov_b32_dpp v%d, v%d row_ror:8 %s' % (P + 2, P, full))
        A('v_mov_b32_dpp v%d, v%d row_ror:8 %s' % (P + 3, P + 1, full))
        A('v_mov_b32_dpp v%d, v%d %s row_mask:0x3 bank_mask:0xf' % (PL, t, idm))
        A('v_mov_b32_dpp v%d, v%d row_ror:8 row_mask:0x3 bank_mask:0xf' % (PL + 1, t))
        A('v_mfma_f32_16x16x32_bf16 %s, %s, %s, 0' % (v(L, 4), v(ONE, 4), v(P, 4)))
        A('v_mov_b32_dpp v%d, v%d %s row_mask:0xc bank_mask:0xf' % (PH, t, idm))
        A('v_mov_b32_dpp v%d, v%d row_ror:8 row_mask:0xc bank_mask:0xf' % (PH + 1, t))
        A('v_mfma_f32_16x16x32_bf16 %s, %s, %s, 0' % (v(O0, 4), v(VX, 4), v(P, 4)))
        A('v_mov_b64 %s, 0' % v(X, 2))
        A('v_mov_b64 %s, 0' % v(X + 2, 2))
        A('v_mfma_f32_16x16x32_bf16 %s, %s, %s, 0' % (v(O1, 4), v(VX + 4, 4), v(P, 4)))
        A('v_mfma_f32_16x16x16_bf16 %s, %s, %s, %s' % (v(L, 4), v(ONE, 2), v(PL, 2), v(L, 4)))
        if self.ntile == 3:
            A('v_mov_b64 %s, 0' % v(Y, 2))
            A('v_mov_b64 %s, 0' % v(Y + 2, 2))
        A('v_mfma_f32_16x16x16_bf16 %s, %s, %s, %s' % (v(O0, 4), v(VM, 2), v(PL, 2), v(O0, 4)))
        A('v_mfma_f32_16x16x16_bf16 %s, %s, %s, %s' % (v(O1, 4), v(VM, 2), v(PH, 2), v(O1, 4)))
        A('v_mov_b64 %s, 0' % v(ACCV, 2))
        A('v_mov_b64 %s, 0' % v(ACCV + 2, 2))
        A('v_rcp_f32 v%d, v%d' % (t, L))
        for r in (O0, O0 + 2, O1, O1 + 2):
            A('v_pk_mul_f32 %s, %s, %s op_sel_hi:[1,0]' % (v(r, 2), v(r, 2), v(t, 2)))
        for r in range(4):
            A('v_cvt_pk_bf16_f32 v%d, v%d, v%d' % (T0 + r, O0 + r, O1 + r))
        A('ds_write_b128 v%d, %s' % (vOXW, v(T0, 4)))
        for i in range(3):
            for x in self.d_reads(i):
                A(x)
        A('s_waitcnt lgkmcnt(6)')
        A('s_barrier')

    def phase_d(self):
        A = self.A
        for c in range(4):
            A('ds_read_b128 %s, v%d offset:%d' % (v(BST + 4 * c, 4), vAR, L_OX + c * 512))
        flav = '' if self.fast else ' sc1'

        def put(t):
            r = ACCV + 4 * t
            A('v_cvt_pk_bf16_f32 v%d, v%d, v%d' % (r, r, r + 1))
            A('v_cvt_pk_bf16_f32 v%d, v%d, v%d' % (r + 1, r + 2, r + 3))
            A('buffer_store_dwordx2 %s, v%d, %s, %s offen%s' % (v(r, 2), vPST, srd(SRD_WS), s(sPT0 + t), flav))
        q, later = ['a0', 'a1', 'a2', 'a3'], []

        def need(x):
            if x in q:
                k = max(i for i, y in enumerate(q) if y == x)
                A('s_waitcnt lgkmcnt(%d)' % (len(q) - 1 - k))
                del q[:k + 1]
        for t in range(self.ntile):
            for c in range(4):
                need('a%d' % c)
                reload = []
                if (t, c) in self.wo:
                    A(smf(ACCV + 4 * t, BST + 4 * c, self.wo[t, c]))
                else:
                    i = self.d_ops.index((t, c))
                    need(i)
                    A(smf(ACCV + 4 * t, BST + 4 * c, self.d_slots[i % 3]))
                    reload = [(x, i + 3) for x in self.d_reads(i + 3)]
                for x, tg in later[:1]:
                    A(x)
                    q.append(tg)
                later = later[1:] + reload
            if t == 2:
                put(0)
        for t in range(1 if self.ntile == 3 else 0, self.ntile):
            put(t)

    def reduce(self):
        A = self.A
        top, retry = A.label('red'), A.label('red_retry')
        R, SEL, Z, t = BST, AST, AST + 4, AST + 8
        A('v_mov_b64 %s, 0' % v(SEL, 2))
        A('v_mov_b64 %s, 0' % v(SEL + 2, 2))
        for r in range(4):
            A('v_mov_b32_dpp v%d, v%d quad_perm:[0,1,2,3] row_mask:0xf bank_mask:0x%x' % (SEL + r, vSEL, 1 << r))
        def issue():
            for i in range(4):
                A('buffer_load_dwordx4 %s, v%d, %s, %s offen offset:%d sc1'
                  % (v(R + 4 * i, 4), vLIN, srd(SRD_WS), s(sPL), i * 1024))

        def prod(i):
            A('v_mfma_f32_16x16x32_bf16 %s, %s, %s, %s' % (v(Z, 4), v(R + 4 * i, 4), v(SEL, 4), v(Z, 4) if i else '0'))

        def scan(i):
            x = R + 4 * i
            if i == 0:
                A('v_max3_u32 v%d, v%d, v%d, v%d' % (t, x, x + 1, x + 2))
                A('v_max_u32 v%d, v%d, v%d' % (t, t, x + 3))
            else:
                A('v_max3_u32 v%d, v%d, v%d, v%d' % (t, t, x, x + 1))
                A('v_max3_u32 v%d, v%d, v%d, v%d' % (t, t, x + 2, x + 3))
            if i == 3:
                A('v_cmp_eq_u32 vcc, -1, v%d' % t)
        self.warm(OPT.get('d_red', 8))
        issue()
        self.warm(OPT.get('d_red2', 12))
        for i in range(4):
            A('s_waitcnt vmcnt(%d)' % (3 - i))
            prod(i)
            scan(i)
        A('s_cbranch_vccnz %s' % retry)
        A('%s:' % top)
        self.cold.append((retry, self.retry_loop(
            'red', issue, 4, lambda: [scan(i) for i in range(4)], lambda: [prod(i) for i in range(4)], top)))
        A('v_permlane32_swap_b32 v%d, v%d' % (Z, Z + 2))
        A('v_permlane32_swap_b32 v%d, v%d' % (Z + 1, Z + 3))
        A('v_pk_add_f32 %s, %s, %s' % (v(Z, 2), v(Z, 2), v(Z + 2, 2)))
        A('v_cvt_pk_bf16_f32 v%d, v%d, v%d' % (t, Z, Z + 1))
        A('s_mov_b64 exec, %s' % s(sEXM, 2))
        if OPT.get('xfirst', 0) == 1:
            A('s_add_u32 %s, %s, 5120' % (s(sT), s(sMXW)))
            A('buffer_store_dword v%d, v%d, %s, %s offen sc1' % (t, vMST, srd(SRD_WS), s(sT)))
        A('buffer_store_dword v%d, v%d, %s, %s offen%s'
          % (t, vMST, srd(SRD_WS), s(sMOW), '' if self.fast else ' sc1'))
        A('s_mov_b64 exec, -1')

    def repoison(self):
        A = self.A
        A('v_mov_b64 %s, -1' % v(T0, 2))
        A('v_mov_b64 %s, -1' % v(T0 + 2, 2))
        for i in range(4):
            A('buffer_store_dwordx4 %s, v%d, %s, %s offen offset:%d%s'
              % (v(T0, 4), vLIN, srd(SRD_WS), s(sPLP), i * 1024, '' if self.fast else ' sc1'))

    def advance(self, first=False):
        A = self.A
        for r in range(0, 8, 2):
            A('v_mov_b64 %s, %s' % (v(VX + r, 2), v(VXN + r, 2)))
        for r in range(0, 12, 2):
            A('v_mov_b64 %s, 0' % v(ACCV + r, 2))
        A('s_xor_b32 %s, %s, 0x%x' % (s(sKXM), s(sKXM), 8192))
        for r in (sKVK, sKVV):
            A('s_add_u32 %s, %s, 0x%x' % (s(r), s(r), 32 * 8192))
        if not first:
            A('s_add_u32 %s, %s, 1' % (s(sSTEP), s(sSTEP)))
            A('s_mov_b32 %s, %s' % (s(sPLP), s(sPL)))
            for r in (sPT0, sPT1, sPT2, sPL):
                A('s_add_u32 %s, %s, %s' % (s(r), s(r), s(sTAG)))
            A('s_sub_u32 %s, 0, %s' % (s(sTAG), s(sTAG)))
            for r in (sMO, sMX, sMOW, sMXW):
                A('s_add_u32 %s, %s, 5120' % (s(r), s(r)))
            A('s_add_u32 %s, %s, 0x%x' % (s(sPUB), s(sPUB), 32 * 2048))
            A('s_add_u32 %s, %s, 0x%x' % (s(sPUBV), s(sPUBV), 32 * 2048))
        A('s_add_u32 %s, %s, 5120' % (s(sTOF), s(sMOW)))

    def prologue(self, bail):
        A = self.A
        A('rec_load%d:' % self.cls)
        self.load_weights()
        if DIAG['on']:
            A('s_waitcnt vmcnt(0)')
            A('s_memrealtime %s' % s(sST, 2))
            A('s_waitcnt lgkmcnt(0)')
        self.hooks.rec_wait_start(A, bail)
        if DIAG['on']:
            A('s_mov_b32 %s, %s' % (s(sSTAMP + 14), s(sST)))
        for x in self.prefetch()[:5]:
            A(x)
        A('s_waitcnt vmcnt(0)')
        self.advance(first=True)
        A('s_barrier')
        if self.cls == 1:
            R = self.LATE
            A('ds_read_b128 %s, v%d offset:%d' % (v(R[0], 4), vML4, L_MEMT + 5120))
            A('ds_read_b128 %s, v%d offset:%d' % (v(R[1], 4), vML4, L_MEMT + 6144))
            A('ds_read_b64 %s, v%d offset:%d' % (v(R[2], 2), vML2, L_MEMT + 5120))
            A('s_waitcnt lgkmcnt(0)')
            for r in list(range(R[0], R[0] + 8)) + [R[2], R[2] + 1]:
                A('v_min_u32 v%d, -2, v%d' % (r, r))
            A('buffer_store_dwordx4 %s, v%d, %s, %s offen sc1' % (v(R[0], 4), vML4, srd(SRD_WS), s(sMX)))
            A('buffer_store_dwordx4 %s, v%d, %s, %s offen offset:1024 sc1' % (v(R[1], 4), vML4, srd(SRD_WS), s(sMX)))
            A('buffer_store_dwordx2 %s, v%d, %s, %s offen sc1' % (v(R[2], 2), vML2, srd(SRD_WS), s(sMX)))
            A('s_waitcnt vmcnt(0)')
        if self.stamps:
            A('s_memrealtime %s' % s(sST, 2))
            A('s_memtime %s' % s(sST + 2, 2))
            A('s_waitcnt lgkmcnt(0)')
            A('s_mov_b32 %s, %s' % (s(sSTAMP + 10), s(sST)))
            A('s_mov_b32 %s, %s' % (s(sSTAMP + 11), s(sST + 2)))
            A('s_mov_b32 %s, 0' % s(sSTAMP + 15))
        self.b_first()
        A('s_cmp_lg_u32 %s, 0' % s(sFAST))
        A('s_cbranch_scc1 rec%df_a1' % self.cls)
        A('s_branch rec%ds_a1' % self.cls)

    def emit(self, bail):
        A = self.A
        self.cold = []
        tag = self.tag
        A('%s_step:' % tag)
        if self.cls == 0:
            self.advance()
            A('s_waitcnt vmcnt(%d)' % (2 if OPT.get('xfirst', 0) == 1 else 1))
            self.b_first()
        else:
            A('s_barrier')
            self.stamp(8, 41)
        if self.cls == 1:
            self.poll_own()
        elif not OPT.get('xfirst', 0):
            A('s_barrier')
            A('s_mov_b64 exec, %s' % s(sEXM, 2))
            A('buffer_store_dword v%d, v%d, %s, %s offen sc1' % (AST + 8, vMST, srd(SRD_WS), s(sMXW)))
            A('s_mov_b64 exec, -1')
        if self.cls == 1:
            self.trace(vMST)
        self.stamp(0, 41)
        A('s_barrier')
        if self.cls == 0 and OPT.get('xfirst', 0) == 2:
            A('s_mov_b64 exec, %s' % s(sEXM, 2))
            A('buffer_store_dword v%d, v%d, %s, %s offen sc1' % (AST + 8, vMST, srd(SRD_WS), s(sMXW)))
            A('s_mov_b64 exec, -1')
        self.stamp(14, 41)
        A('%s_a1:' % tag)
        self.stamp(1)
        self.phase_a1()
        if self.cls == 0:
            self.stamp(3)
            self.repoison()
        A('s_waitcnt lgkmcnt(0)')
        if self.cls == 1:
            self.trace(vTCH)
        A('s_barrier')
        self.stamp(2)
        self.phase_a2()
        self.stamp(4)
        self.phase_s()
        A('s_cmp_eq_u32 %s, %d' % (s(sSTEP), NSEG - 1))
        A('s_cbranch_scc1 %s_last' % tag)
        self.stamp(5)
        self.softmax_pv()
        self.stamp(6)
        self.phase_d()
        self.trace(vML4 if self.cls == 0 else vSEL)
        self.stamp(7)
        if self.cls == 1:
            A('s_waitcnt vmcnt(2)')
            self.advance()
            self.b_first()
            A('s_branch %s_step' % tag)
        else:
            idle = A.label('idle')
            A('s_cmp_ge_u32 %s, 40' % s(sRED))
            A('s_cbranch_scc1 %s' % idle)
            self.reduce()
            self.trace(vML2)
            self.stamp(8)
            A('s_barrier')
            self.hooks.rec_chores(A, bail)
            A('s_branch %s_step' % tag)
            A('%s:' % idle)
            A('s_waitcnt vmcnt(3)')
            A('s_barrier')
            A('s_branch %s_step' % tag)

        A('%s_last:' % tag)
        A('s_waitcnt vmcnt(0)')
        self.hooks.rec_signal_last(A)
        if self.stamps:
            A('s_memrealtime %s' % s(sST, 2))
            A('s_memtime %s' % s(sST + 2, 2))
            A('s_waitcnt lgkmcnt(0)')
            A('s_mov_b32 %s, %s' % (s(sSTAMP + 12), s(sST)))
            A('s_mov_b32 %s, %s' % (s(sSTAMP + 13), s(sST + 2)))
            A('s_mov_b32 %s, %s' % (s(sSTAMP + 9), s(sSPIN)))
            for k in range(16):
                A('v_writelane_b32 v%d, %s, %d' % (T0 + 1, s(sSTAMP + k), k))
            A('s_lshl_b32 %s, %s, 5' % (s(sT), s(sTEAM)))
            A('s_add_u32 %s, %s, %s' % (s(sT), s(sT), s(sHEAD)))
            A('s_lshl_b32 %s, %s, 2' % (s(sT), s(sT)))
            A('s_add_u32 %s, %s, %s' % (s(sT), s(sT), s(sWAVE)))
            A('s_lshl_b32 %s, %s, 7' % (s(sT), s(sT)))
            A('s_add_u32 %s, %s, 0x%x' % (s(sT), s(sT), WS_STAMP))
            A('v_lshrrev_b32 v%d, 2, v%d' % (T0, vLIN))
            if OPT.get('trace', 0):
                A('s_sub_u32 %s, %s, 0x%x' % (s(sOWN), s(sT), WS_STAMP))
                A('s_lshl_b32 %s, %s, 3' % (s(sOWN), s(sOWN)))
                A('s_add_u32 %s, %s, 0x%x' % (s(sOWN), s(sOWN), WS_TRACE))
                for k, r in enumerate((vML4, vML2, vML2) if self.cls == 0 else (vMST, vTCH, vSEL)):
                    A('buffer_store_dword v%d, v%d, %s, %s offen offset:%d' % (r, T0, srd(SRD_WS), s(sOWN), k * 256))
            A('s_mov_b32 exec_hi, 0')
            A('buffer_store_dword v%d, v%d, %s, %s offen' % (T0 + 1, T0, srd(SRD_WS), s(sT)))
            A('s_waitcnt vmcnt(0)')
        A('s_endpgm')
        for name, body in self.cold:
            A('%s:' % name)
            body(bail)


def rec_setup(A):
    build_srd(A, SRD_A, 'mem0')
    t0, t1, t2, t3 = T0, T0 + 1, T0 + 2, T0 + 3
    A('v_and_b32 v%d, 7, v0' % t0)
    A('v_lshrrev_b32 v%d, 3, v0' % t1)
    A('v_lshrrev_b32 v%d, 3, v%d' % (t2, t1))
    A('v_lshl_add_u32 v%d, v%d, 3, v%d' % (t2, t2, t0))
    A('v_and_b32 v1, 7, v%d' % t1)
    A('v_lshlrev_b32 v%d, 4, v%d' % (t2, t2))
    A('v_lshl_add_u32 v%d, v1, 1, v%d' % (t2, t2))
    A('v_and_b32 v%d, 16, v%d' % (t3, t1))
    A('v_and_b32 v1, 3, v%d' % t1)
    A('v_lshl_add_u32 v%d, v1, 2, v%d' % (t3, t3))
    A('v_bfe_u32 v1, v%d, 2, 1' % t1)
    A('v_lshl_add_u32 v%d, v1, 1, v%d' % (t3, t3))
    A('v_bfe_u32 v1, v%d, 3, 1' % t1)
    A('v_add_u32 v%d, v1, v%d' % (t3, t3))
    A('v_mul_u32_u24 v%d, 640, v%d' % (t0, t0))
    A('v_add_lshl_u32 v%d, v%d, v%d, 1' % (t0, t0, t3))
    A('s_mul_i32 %s, %s, 640' % (s(sOWN), s(sTEAM)))
    A('s_sub_u32 %s, 640, %s' % (s(sLATE), s(sOWN)))
    for T in range(20):
        A('buffer_load_ushort v%d, v%d, %s, %s offen offset:%d'
          % (32 + T, t0, srd(SRD_A), s(sOWN if T < 10 else sLATE), (T % 10) * 64))
    for T in range(20):
        A('s_waitcnt vmcnt(%d)' % (19 - T))
        A('ds_write_b16 v%d, v%d offset:%d' % (t2, 32 + T, L_MEMT + T * 512))
    for r, n in ((SRD_A, 'wq'), (SRD_B, 'wk'), (SRD_C, 'wv'), (SRD_D, 'wo')):
        build_srd(A, r, n)
    A('v_and_b32 v0, 63, v0')
    n, g, tt, aa = T0, T0 + 1, T0 + 2, T0 + 3
    w = s(sWAVE)
    A('v_and_b32 v%d, 15, v0' % n)
    A('v_lshrrev_b32 v%d, 4, v0' % g)
    A('v_bfe_u32 v%d, v0, 2, 2' % tt)
    A('v_and_b32 v%d, 1, v0' % aa)
    A('v_bfe_u32 v%d, v0, 3, 1' % vIDX)
    A('v_mul_u32_u24 v%d, 0x5555, v%d' % (vIDX, vIDX))
    A('v_add_u32 v%d, 0x8888, v%d' % (vIDX, vIDX))
    A('v_lshlrev_b32 v%d, 4, v0' % vLIN)
    A('v_and_b32 v%d, 7, v0' % vAR)
    A('v_lshl_add_u32 v%d, v%d, 3, v%d' % (vAR, g, vAR))
    A('v_lshlrev_b32 v%d, 4, v%d' % (vAR, vAR))
    A('s_mul_i32 %s, %s, %d' % (s(sT), w, 18 * 2048))
    A('s_mul_i32 %s, %s, %d' % (s(sOWN), w, 14 * 2048))
    A('s_add_u32 %s, %s, %d' % (s(sOWN), s(sOWN), 8 * 2048))
    A('s_cmp_lt_u32 %s, 2' % w)
    A('s_cselect_b32 %s, %s, %s' % (s(sT), s(sT), s(sOWN)))
    A('s_add_u32 %s, %s, %d' % (s(sT), s(sT), L_WL))
    A('v_add_u32 v%d, %s, v%d' % (vBL, s(sT), vLIN))
    A('v_lshrrev_b32 v%d, 1, v%d' % (vQW, g))
    A('v_mul_u32_u24 v%d, 288, v%d' % (vQW, vQW))
    A('v_lshl_add_u32 v%d, v%d, 4, v%d' % (vQW, n, vQW))
    A('v_and_b32 v%d, 1, v%d' % (T0 + 4, g))
    A('v_lshl_add_u32 v%d, v%d, 3, v%d' % (vQW, T0 + 4, vQW))
    A('s_mul_i32 %s, %s, 576' % (s(sT), w))
    A('s_add_u32 %s, %s, %d' % (s(sT), s(sT), L_QT))
    A('v_add_u32 v%d, %s, v%d' % (vQW, s(sT), vQW))
    A('v_and_b32 v%d, 1, v%d' % (vQR, tt))
    A('v_mul_u32_u24 v%d, 288, v%d' % (vQR, vQR))
    A('v_lshrrev_b32 v%d, 1, v%d' % (T0 + 5, tt))
    A('v_lshl_add_u32 v%d, v%d, 2, v%d' % (T0 + 5, g, T0 + 5))
    A('v_lshl_add_u32 v%d, v%d, 4, v%d' % (vQR, T0 + 5, vQR))
    A('v_lshl_add_u32 v%d, v%d, 3, v%d' % (vQR, aa, vQR))
    A('v_add_u32 v%d, %d, v%d' % (vQR, L_QT, vQR))
    A('s_lshl_b32 %s, %s, 9' % (s(sT), w))
    A('s_add_u32 %s, %s, %d' % (s(sT), s(sT), L_OX))
    A('v_bfe_u32 v%d, v0, 3, 1' % vOXW)
    A('v_lshl_add_u32 v%d, v%d, 11, v%d' % (vOXW, vOXW, vAR))
    A('v_add_u32 v%d, %s, v%d' % (vOXW, s(sT), vOXW))
    A('v_lshlrev_b32 v%d, 4, v%d' % (vSEL, aa))
    A('v_mov_b32 v%d, 0x3f80' % (T0 + 5))
    A('v_lshlrev_b32 v%d, v%d, v%d' % (vSEL, vSEL, T0 + 5))
    A('v_lshrrev_b32 v%d, 3, v%d' % (vPST, n))
    A('v_lshrrev_b32 v%d, 1, v%d' % (T0 + 5, g))
    A('v_lshl_add_u32 v%d, v%d, 1, v%d' % (vPST, vPST, T0 + 5))
    A('v_lshlrev_b32 v%d, 12, v%d' % (vPST, vPST))
    A('v_lshl_add_u32 v%d, v%d, 6, v%d' % (vPST, T0 + 4, vPST))
    A('v_and_b32 v%d, 7, v0' % (T0 + 5))
    A('v_lshl_add_u32 v%d, v%d, 3, v%d' % (vPST, T0 + 5, vPST))
    A('v_min_u32 v%d, 39, v0' % vTCH)
    A('v_lshlrev_b32 v%d, 7, v%d' % (vTCH, vTCH))
    A('s_lshl_b32 %s, %s, 5' % (s(sRED), w))
    A('s_add_u32 %s, %s, %s' % (s(sRED), s(sRED), s(sHEAD)))
    A('s_mul_i32 %s, %s, 40' % (s(sPL), s(sTEAM)))
    A('s_add_u32 %s, %s, %s' % (s(sPL), s(sPL), s(sRED)))
    A('s_lshl_b32 %s, %s, 12' % (s(sPL), s(sPL)))
    A('s_add_u32 %s, %s, 0x%x' % (s(sPL), s(sPL), WS_PART))
    A('s_cmp_lt_u32 %s, 40' % s(sRED))
    A('s_cselect_b32 %s, %s, 0x40000000' % (s(sPL), s(sPL)))
    A('s_mov_b32 %s, 0x40000000' % s(sPLP))
    A('v_bfe_u32 v%d, v0, 2, 1' % (T0 + 5))
    A('v_lshl_add_u32 v%d, v%d, 1, v%d' % (vMST, T0 + 4, T0 + 5))
    A('v_lshl_add_u32 v%d, v%d, 1, v%d' % (vMST, vMST, aa))
    A('v_bfe_u32 v%d, v0, 3, 1' % (T0 + 5))
    A('v_lshl_add_u32 v%d, v%d, 1, v%d' % (vMST, vMST, T0 + 5))
    A('v_lshrrev_b32 v%d, 5, v0' % (T0 + 5))
    A('v_lshl_add_u32 v%d, v%d, 1, v%d' % (vMST, vMST, T0 + 5))
    A('s_lshl_b32 %s, %s, 7' % (s(sT), s(sRED)))
    A('v_lshl_add_u32 v%d, v%d, 2, %s' % (vMST, vMST, s(sT)))
    A('s_mov_b32 %s, 0x33333333' % s(sEXM))
    A('s_mov_b32 %s, 0x33333333' % s(sEXM + 1))
    A('s_and_b32 %s, %s, 1' % (s(sT), w))
    A('s_mul_i32 %s, %s, 2560' % (s(sT), s(sT)))
    A('v_add_u32 v%d, %s, v%d' % (vML4, s(sT), vLIN))
    A('s_add_u32 %s, %s, 2048' % (s(sT), s(sT)))
    A('v_lshl_add_u32 v%d, v0, 3, %s' % (vML2, s(sT)))
    A('s_lshl_b32 %s, %s, 11' % (s(sT), w))
    A('v_add_u32 v%d, %s, v%d' % (vVX, s(sT), vLIN))
    A('s_add_u32 %s, %s, %d' % (s(sKXM), s(sT), L_KX))
    A('s_lshl_b32 %s, %s, 9' % (s(sT), w))
    A('v_lshl_add_u32 v%d, v0, 3, %s' % (vPUB, s(sT)))
    A('s_mov_b32 %s, 0x%x' % (s(sSCL), f2u(SCL)))
    A('s_mov_b32 %s, 0x%x' % (s(sSCL + 1), f2u(SCL)))
    A('s_mov_b32 %s, 0' % s(sSTEP))
    A('s_mov_b32 %s, %d' % (s(sTAG), 80 * 4096))
    A('s_mov_b32 %s, 0' % s(sSPIN))
    A('s_mul_i32 %s, %s, %d' % (s(sMO), s(sTEAM), 64 * 5120))
    A('s_sub_u32 %s, %d, %s' % (s(sMXW), WS_MEMX + 64 * 5120, s(sMO)))
    A('s_cmp_lt_u32 %s, 40' % s(sRED))
    A('s_cselect_b32 %s, %s, 0x40000000' % (s(sMXW), s(sMXW)))
    A('s_add_u32 %s, %s, 0x%x' % (s(sMX), s(sMO), WS_MEMX))
    A('s_add_u32 %s, %s, 0x%x' % (s(sMO), s(sMO), WS_MEMO))
    A('s_add_u32 %s, %s, 5120' % (s(sMOW), s(sMO)))
    A('s_lshl_b32 %s, %s, 13' % (s(sKVK), s(sHEAD)))
    A('s_add_u32 %s, %s, 0x%x' % (s(sKVV), s(sKVK), WS_V))
    A('s_add_u32 %s, %s, 0x%x' % (s(sKVK), s(sKVK), WS_K))
    A('s_lshl_b32 %s, %s, 11' % (s(sT), s(sHEAD)))
    A('s_add_u32 %s, %s, 0x%x' % (s(sPUB), s(sT), WS_KM))
    A('s_add_u32 %s, %s, 0x%x' % (s(sPUBV), s(sT), WS_VM))
    A('s_cmp_eq_u32 %s, 0' % s(sTEAM))
    A('s_cselect_b32 %s, %s, 0x40000000' % (s(sPUB), s(sPUB)))
    A('s_cselect_b32 %s, 0x40000000, %s' % (s(sPUBV), s(sPUBV)))
    A('s_waitcnt lgkmcnt(0)')


def emit_rec(A, hooks, bail, stamps=False):
    rec_setup(A)
    A('s_cmp_ge_u32 %s, 2' % s(sWAVE))
    A('s_cbranch_scc1 rec_load1')
    for cls in (0, 1):
        Rec(A, cls, True, hooks, stamps).prologue(bail)
        for fast in (True, False):
            Rec(A, cls, fast, hooks, stamps).emit(bail)
```

```python
from common import *

sXCC, sRANK, sA, sB, sC, sX0, sX1, sSP = 72, 73, 74, 75, 76, 77, 78, 79
sCNT = 80


sKEEP = 71


def census(A, bail, tmp, sp):
    top, go = A.label('census'), A.label('census_ok')
    A('v_mbcnt_lo_u32_b32 v%d, -1, 0' % (tmp + 1))
    A('v_and_b32 v%d, 7, v%d' % (tmp + 1, tmp + 1))
    A('v_lshlrev_b32 v%d, 5, v%d' % (tmp + 1, tmp + 1))
    others = A.label('census_wait')
    A('s_cmp_lg_u32 %s, 0' % s(sWAVE))
    A('s_cbranch_scc1 %s' % others)
    A('%s:' % top)
    A('s_sleep 8')
    A('buffer_load_dword v%d, v%d, %s, 0 offen sc1' % (tmp, tmp + 1, srd(SRD_DBG)))
    A('s_waitcnt vmcnt(0)')
    A('v_readlane_b32 %s, v%d, 0' % (s(sA), tmp))
    for i in range(1, 8):
        A('v_readlane_b32 %s, v%d, %d' % (s(sB), tmp, i))
        A('s_add_u32 %s, %s, %s' % (s(sA), s(sA), s(sB)))
    A('s_cmp_lt_u32 %s, 256' % s(sA))
    A('s_cbranch_scc0 %s' % go)
    spin_guard(A, sp, top, bail)
    A('%s:' % go)
    A('ds_write_b32 v%d, v%d' % (tmp + 1, tmp))
    A('s_waitcnt lgkmcnt(0)')
    A('%s:' % others)
    A('s_barrier')
    A('ds_read_b32 v%d, v%d' % (tmp, tmp + 1))
    A('s_waitcnt lgkmcnt(0)')
    for i in range(8):
        A('v_readlane_b32 %s, v%d, %d' % (s(sCNT + (i >> 2) + 2 * (i & 3)), tmp, i))
    A('s_barrier')


def take_ticket(A, guess_label):
    A('s_getreg_b32 %s, hwreg(HW_REG_XCC_ID, 0, 3)' % s(sXCC))
    first = A.label('arrived')
    A('v_mov_b32 v2, 0')
    A('s_cmp_lg_u32 %s, 0' % s(sWAVE))
    A('s_cbranch_scc1 %s' % first)
    A('s_and_b32 %s, %s, 1' % (s(sA), s(sXCC)))
    A('s_lshl_b32 %s, %s, 7' % (s(sA), s(sA)))
    A('s_lshr_b32 %s, %s, 1' % (s(sB), s(sXCC)))
    A('s_lshl_b32 %s, %s, 5' % (s(sB), s(sB)))
    A('s_add_u32 %s, %s, %s' % (s(sA), s(sA), s(sB)))
    A('v_mov_b32 v1, 1')
    A('s_mov_b64 exec, 1')
    early = A.label('early')
    A('s_cmp_lt_u32 %s, 2' % s(sXCC))
    A('s_cbranch_scc1 %s' % early)
    A('buffer_load_dword v3, v2, %s, 0 offen sc1' % srd(SRD_DBG))
    A('s_waitcnt vmcnt(0)')
    A('%s:' % early)
    A('buffer_atomic_add v1, v2, %s, %s offen sc0' % (srd(SRD_DBG), s(sA)))
    A('s_waitcnt vmcnt(0)')
    A('ds_write_b32 v2, v1')
    A('s_waitcnt lgkmcnt(0)')
    A('s_mov_b64 exec, -1')
    A('%s:' % first)
    A('s_barrier')
    A('ds_read_b32 v1, v2')
    A('s_waitcnt lgkmcnt(0)')
    A('v_readfirstlane_b32 %s, v1' % s(sRANK))
    A('s_barrier')
    A('s_lshl_b32 %s, %s, 8' % (s(sKEEP), s(sXCC)))
    A('s_or_b32 %s, %s, %s' % (s(sKEEP), s(sKEEP), s(sRANK)))
    A('s_mov_b32 %s, %s' % (s(sTEAM), s(sXCC)))
    A('s_mov_b32 %s, %s' % (s(sHEAD), s(sRANK)))
    A('s_mov_b32 %s, 2' % s(sFAST))
    A('s_and_b32 %s, %s, 0xfee0' % (s(sA), s(sKEEP)))
    A('s_cbranch_scc0 %s' % guess_label)


def confirm(A, bail, tmp, sp, regs):
    top, ok = A.label('confirm'), A.label('confirmed')
    a_, b_ = regs
    A('s_cmp_lg_u32 %s, 2' % s(sFAST))
    A('s_cbranch_scc1 %s' % ok)
    A('s_mov_b32 %s, 1' % s(sFAST))
    A('v_mbcnt_lo_u32_b32 v%d, -1, 0' % (tmp + 1))
    A('v_and_b32 v%d, 7, v%d' % (tmp + 1, tmp + 1))
    A('v_lshlrev_b32 v%d, 5, v%d' % (tmp + 1, tmp + 1))
    A('%s:' % top)
    A('buffer_load_dword v%d, v%d, %s, 0 offen sc1' % (tmp, tmp + 1, srd(SRD_DBG)))
    A('s_waitcnt vmcnt(0)')
    A('v_readlane_b32 %s, v%d, 0' % (s(a_), tmp))
    A('v_readlane_b32 %s, v%d, 4' % (s(b_), tmp))
    A('s_min_u32 %s, %s, %s' % (s(a_), s(a_), s(b_)))
    A('s_cmp_ge_u32 %s, 32' % s(a_))
    A('s_cbranch_scc1 %s' % ok)
    A('v_readlane_b32 %s, v%d, 0' % (s(a_), tmp))
    for i in range(1, 8):
        A('v_readlane_b32 %s, v%d, %d' % (s(b_), tmp, i))
        A('s_add_u32 %s, %s, %s' % (s(a_), s(a_), s(b_)))
    A('s_cmp_ge_u32 %s, 256' % s(a_))
    A('s_cbranch_scc1 reassign')
    spin_guard(A, sp, top, bail)
    A('%s:' % ok)


def assign_roles(A, bail, rec_label, worker_label):
    A('assign:')
    A('s_lshr_b32 %s, %s, 8' % (s(sXCC), s(sKEEP)))
    A('s_and_b32 %s, %s, 0xff' % (s(sRANK), s(sKEEP)))
    A('s_mov_b32 %s, 0' % s(sSP))
    census(A, bail, 1, sSP)
    A('s_mov_b32 %s, 8' % s(sX0))
    A('s_mov_b32 %s, 8' % s(sX1))
    for i in range(7, -1, -1):
        A('s_cmp_ge_u32 %s, 32' % s(sCNT + i))
        A('s_cselect_b32 %s, %s, %s' % (s(sX1), s(sX0), s(sX1)))
        A('s_cselect_b32 %s, %d, %s' % (s(sX0), i, s(sX0)))
    A('s_mov_b32 %s, %s' % (s(sA), s(sRANK)))
    for i in range(7):
        A('s_cmp_gt_u32 %s, %d' % (s(sXCC), i))
        A('s_cselect_b32 %s, %s, 0' % (s(sB), s(sCNT + i)))
        A('s_add_u32 %s, %s, %s' % (s(sA), s(sA), s(sB)))
    slow, notteam = A.label('slowmap'), A.label('notteam')
    A('s_cmp_ge_u32 %s, 8' % s(sX1))
    A('s_cbranch_scc1 %s' % slow)
    A('s_mov_b32 %s, 1' % s(sFAST))
    A('s_mov_b32 %s, %s' % (s(sHEAD), s(sRANK)))
    A('s_cmp_ge_u32 %s, 32' % s(sRANK))
    A('s_cbranch_scc1 %s' % notteam)
    A('s_mov_b32 %s, 0' % s(sTEAM))
    A('s_cmp_eq_u32 %s, %s' % (s(sXCC), s(sX0)))
    A('s_cbranch_scc1 %s' % rec_label)
    A('s_mov_b32 %s, 1' % s(sTEAM))
    A('s_cmp_eq_u32 %s, %s' % (s(sXCC), s(sX1)))
    A('s_cbranch_scc1 %s' % rec_label)
    A('%s:' % notteam)
    A('s_cmp_ge_u32 %s, %s' % (s(sXCC), s(sX0)))
    A('s_cselect_b32 %s, 32, 0' % s(sB))
    A('s_sub_u32 %s, %s, %s' % (s(sA), s(sA), s(sB)))
    A('s_cmp_ge_u32 %s, %s' % (s(sXCC), s(sX1)))
    A('s_cselect_b32 %s, 32, 0' % s(sB))
    A('s_sub_u32 %s, %s, %s' % (s(sWIDX), s(sA), s(sB)))
    A('s_branch %s' % worker_label)
    A('%s:' % slow)
    A('s_mov_b32 %s, 0' % s(sFAST))
    A('s_and_b32 %s, %s, 31' % (s(sHEAD), s(sA)))
    A('s_lshr_b32 %s, %s, 5' % (s(sTEAM), s(sA)))
    A('s_cmp_lt_u32 %s, 64' % s(sA))
    A('s_cbranch_scc1 %s' % rec_label)
    A('s_sub_u32 %s, %s, 64' % (s(sWIDX), s(sA)))
    A('s_branch %s' % worker_label)
```

```python
import math
from common import *

F_H = 0x0000
F_QKV = 0x0400
F_KM = 0xE000
F_O = 0x1000
F_XA = 0x5000
F_T = 0x9000
F_X1 = 0xB000
F_U = 0xC000
F_END = 0x10000
DBG_INIT = 4
DBG_MOD = 8

sSP, sT, sT2, sT3, sI, sOFF, sOFF2, sOFF3, sCOPY, sSLICE, sRT, sFL = range(72, 84)
sM = 84
vL, vLIN, vT = 0, 1, 2

OOB = 0x40000000
OPT = {}
WS = srd(SRD_WS)


def mfma(acc, x, y, first=False):
    return 'v_mfma_f32_16x16x32_bf16 %s, %s, %s, %s' % (v(acc, 4), u(x, 4), u(y, 4), '0' if first else v(acc, 4))


def rnd(d, x):
    return 'v_cvt_pk_bf16_f32 v%d, 0, v%d' % (d, x)


def unpack(A, dst, src, n):
    for i in reversed(range(n)):
        A('v_and_b32 v%d, 0xffff0000, v%d' % (dst + 2 * i + 1, src + i))
        A('v_lshlrev_b32 v%d, 16, v%d' % (dst + 2 * i, src + i))


def wait_ge(A, bail, srd_n, voff, soff, nlanes, need, tmp=vT, sleep=True, sp=sSP):
    top, ok = A.label('wait'), A.label('ready')
    A('%s:' % top)
    A('buffer_load_dword v%d, v%d, %s, %s offen sc1' % (tmp, voff, srd(srd_n), soff))
    A('s_waitcnt vmcnt(0)')
    A('v_cmp_gt_u32 vcc, %s, v%d' % (need, tmp))
    if nlanes < 64:
        A('s_and_b32 vcc_lo, vcc_lo, 0x%x' % ((1 << min(nlanes, 32)) - 1))
        A('s_and_b32 vcc_hi, vcc_hi, 0x%x' % ((1 << max(nlanes - 32, 0)) - 1))
    A('s_cmp_eq_u64 vcc, 0')
    A('s_cbranch_scc1 %s' % ok)
    if sleep:
        A('s_sleep 1')
    spin_guard(A, sp, top, bail)
    A('%s:' % ok)


def signal(A, srd_n, soff, val, tmp=vT):
    A('v_mov_b32 v%d, %s' % (tmp, val))
    A('v_mov_b32 v%d, 0' % (tmp + 1))
    A('s_mov_b64 exec, 1')
    A('buffer_store_dword v%d, v%d, %s, %s offen sc1' % (tmp, tmp + 1, srd(srd_n), soff))
    A('s_mov_b64 exec, -1')


def on_wave0(A, fn):
    skip = A.label('notw0')
    A('s_cmp_lg_u32 %s, 0' % s(sWAVE))
    A('s_cbranch_scc1 %s' % skip)
    fn()
    A('%s:' % skip)


def wait_init(A, bail, tmp=vT):
    A('v_and_b32 v%d, 7, v%d' % (tmp + 1, vL))
    A('v_lshlrev_b32 v%d, 5, v%d' % (tmp + 1, tmp + 1))
    wait_ge(A, bail, SRD_DBG, tmp + 1, str(DBG_INIT), 8, '24', tmp)


def wait_mod(A, bail, n=6):
    A('v_lshlrev_b32 v%d, 5, v%d' % (vT + 1, vL))
    wait_ge(A, bail, SRD_DBG, vT + 1, str(DBG_MOD), n, '20')


def xor_reduce(A, x, tmp, op):
    for sw in ('v_permlane16_swap_b32', 'v_permlane32_swap_b32'):
        A('v_mov_b32 v%d, v%d' % (tmp, x))
        A('%s v%d, v%d' % (sw, x, tmp))
        A('%s v%d, v%d, v%d' % (op, x, x, tmp))


def row_sum(A, X, n, acc, vW, vR, lds, square_from=None):
    if square_from is None:
        A('v_pk_add_f32 %s, %s, %s' % (v(acc, 2), v(X, 2), v(X + 2, 2)))
        for i in range(4, n, 2):
            A('v_pk_add_f32 %s, %s, %s' % (v(acc, 2), v(acc, 2), v(X + i, 2)))
    else:
        d = acc + 2
        for i in range(0, n, 2):
            A('v_pk_add_f32 %s, %s, %s op_sel_hi:[1,0] neg_lo:[0,1] neg_hi:[0,1]' % (v(d, 2), v(X + i, 2), v(square_from, 2)))
            if i == 0:
                A('v_pk_mul_f32 %s, %s, %s' % (v(acc, 2), v(d, 2), v(d, 2)))
            else:
                A('v_pk_fma_f32 %s, %s, %s, %s' % (v(acc, 2), v(d, 2), v(d, 2), v(acc, 2)))
    A('v_add_f32 v%d, v%d, v%d' % (acc, acc, acc + 1))
    xor_reduce(A, acc, acc + 1, 'v_add_f32')
    A('ds_write_b32 v%d, v%d offset:%d' % (vW, acc, lds))
    A('s_waitcnt lgkmcnt(0)')
    A('s_barrier')
    A('ds_read_b128 %s, v%d offset:%d' % (v(acc, 4), vR, lds))
    A('s_waitcnt lgkmcnt(0)')
    A('v_pk_add_f32 %s, %s, %s' % (v(acc, 2), v(acc, 2), v(acc + 2, 2)))
    A('v_add_f32 v%d, v%d, v%d' % (acc, acc, acc + 1))
    A('v_mul_f32 v%d, 0x%x, v%d' % (acc, f2u(1.0 / D), acc))


def layernorm(A, X, T, vW, vR, lds, pack_to=None):
    mean, acc = T, T + 2
    row_sum(A, X, 40, acc, vW, vR, lds)
    A('v_mov_b32 v%d, v%d' % (mean, acc))
    row_sum(A, X, 40, acc, vW, vR, lds + 256, square_from=mean)
    A(rnd(acc, acc))
    A('v_add_f32 v%d, 0x%x, v%d' % (acc, f2u(1e-5), acc))
    A(rnd(acc, acc))
    A('v_sqrt_f32 v%d, v%d' % (acc, acc))
    A(rnd(mean, mean))
    A(rnd(acc, acc))
    A('v_rcp_f32 v%d, v%d' % (acc, acc))
    for i in range(0, 40, 2):
        A('v_pk_add_f32 %s, %s, %s op_sel_hi:[1,0] neg_lo:[0,1] neg_hi:[0,1]' % (v(X + i, 2), v(X + i, 2), v(mean, 2)))
    for i in range(40):
        A(rnd(X + i, X + i))
    for i in range(0, 40, 2):
        A('v_pk_mul_f32 %s, %s, %s op_sel_hi:[1,0]' % (v(X + i, 2), v(X + i, 2), v(acc, 2)))
    if pack_to is None:
        for i in range(40):
            A(rnd(X + i, X + i))
    else:
        for i in range(20):
            A('v_cvt_pk_bf16_f32 v%d, v%d, v%d' % (pack_to + i, X + 2 * i, X + 2 * i + 1))


def modulate(A, X, MS, MC, P):
    for i in range(0, 40, 2):
        A('v_pk_mul_f32 %s, %s, %s' % (v(X + i, 2), v(X + i, 2), v(MC + i, 2)))
    for i in range(40):
        A(rnd(X + i, X + i))
    for i in range(0, 40, 2):
        A('v_pk_add_f32 %s, %s, %s' % (v(X + i, 2), v(X + i, 2), v(MS + i, 2)))
    for i in range(20):
        A('v_cvt_pk_bf16_f32 v%d, v%d, v%d' % (P + i, X + 2 * i, X + 2 * i + 1))


def ln_addresses(A, vW, vR):
    A('v_and_b32 v%d, 15, v%d' % (vR, vL))
    A('v_lshlrev_b32 v%d, 4, v%d' % (vR, vR))
    A('s_lshl_b32 %s, %s, 2' % (s(sT), s(sWAVE)))
    A('v_add_u32 v%d, %s, v%d' % (vW, s(sT), vR))


def load_mod40(A, dst, which, tmp):
    A('v_lshrrev_b32 v%d, 4, v%d' % (tmp, vL))
    A('v_lshlrev_b32 v%d, 5, v%d' % (tmp, tmp))
    A('s_mul_i32 %s, %s, 640' % (s(sT), s(sWAVE)))
    A('s_add_u32 %s, %s, 0x%x' % (s(sT), s(sT), WS_MOD + which * D * 4))
    for k in range(10):
        A('buffer_load_dwordx4 %s, v%d, %s, %s offen offset:%d sc1'
          % (v(dst + 4 * k, 4), tmp, WS, s(sT), (k >> 1) * 128 + (k & 1) * 16))


def gelu(A, X, n, t0):
    k0 = math.sqrt(2.0 / math.pi) * -2.0 * math.log2(math.e)
    A('s_mov_b32 %s, 0x%x' % (s(sM), f2u(k0 * 0.044715)))
    A('v_mov_b32 v%d, 0x%x' % (t0 + n, f2u(k0)))
    for i in range(n):
        A(rnd(X + i, X + i))
    for i in range(n):
        A('v_mul_f32 v%d, v%d, v%d' % (t0 + i, X + i, X + i))
    for i in range(n):
        A('v_fma_f32 v%d, v%d, %s, v%d' % (t0 + i, t0 + i, s(sM), t0 + n))
    for i in range(n):
        A('v_mul_f32 v%d, v%d, v%d' % (t0 + i, t0 + i, X + i))
    for i in range(n):
        A('v_exp_f32 v%d, v%d' % (t0 + i, t0 + i))
    for i in range(n):
        A('v_add_f32 v%d, 1.0, v%d' % (t0 + i, t0 + i))
    for i in range(n):
        A('v_rcp_f32 v%d, v%d' % (t0 + i, t0 + i))
    for i in range(n):
        A('v_mul_f32 v%d, v%d, v%d' % (X + i, X + i, t0 + i))


def stage_wide(A, srd_n, stride, scol, split, R=16, between=None):
    vG, vS = vT + 4, vT + 5
    A('s_lshl_b32 %s, %s, 2' % (s(sT), s(sWAVE)))
    A('v_lshrrev_b32 v%d, 4, v%d' % (vS, vL))
    A('v_add_u32 v%d, %s, v%d' % (vT + 2, s(sT), vS))
    A('v_and_b32 v%d, 15, v%d' % (vT + 3, vL))
    A('s_mov_b32 %s, %d' % (s(sT), stride))
    A('v_mul_lo_u32 v%d, v%d, %s' % (vG, vT + 2, s(sT)))
    A('v_lshl_add_u32 v%d, v%d, 4, v%d' % (vG, vT + 3, vG))
    A('v_lshlrev_b32 v%d, 2, v%d' % (vS, vS))
    A('v_xor_b32 v%d, v%d, v%d' % (vS, vS, vT + 3))
    A('v_lshlrev_b32 v%d, 4, v%d' % (vS, vS))
    A('v_lshl_add_u32 v%d, v%d, 8, v%d' % (vS, vT + 2, vS))
    for i in range(40):
        A('s_add_u32 %s, %s, %d' % (s(sT), s(scol), i * 16 * stride))
        A('buffer_load_dwordx4 %s, v%d, %s, %s offen' % (u(R + 4 * i, 4), vG, srd(srd_n), s(sT)))
    if between:
        between()
    if split:
        A('s_mov_b32 %s, 0x05040100' % s(sT))
        A('s_mov_b32 %s, 0x07060302' % s(sT2))
    for i in range(40):
        r = R + 4 * i
        A('s_waitcnt vmcnt(%d)' % (39 - i))
        src = r
        if split:
            src = 8 + 4 * (i % 2)
            A('v_perm_b32 v%d, v%d, v%d, %s' % (src, r + 1, r, s(sT)))
            A('v_perm_b32 v%d, v%d, v%d, %s' % (src + 1, r + 3, r + 2, s(sT)))
            A('v_perm_b32 v%d, v%d, v%d, %s' % (src + 2, r + 1, r, s(sT2)))
            A('v_perm_b32 v%d, v%d, v%d, %s' % (src + 3, r + 3, r + 2, s(sT2)))
        A('ds_write_b128 v%d, %s offset:%d' % (vS, u(src, 4), (i % 16) * 4096))
        if i % 16 == 15:
            A('v_add_u32 v%d, 0x10000, v%d' % (vS, vS))
    A('s_waitcnt lgkmcnt(0)')
    A('s_barrier')


def read_wide(A, spair, dst):
    vB = vT
    A('v_bfe_u32 v%d, v%d, 2, 2' % (vT + 1, vL))
    A('v_lshrrev_b32 v%d, 4, v%d' % (vB, vL))
    A('v_lshl_add_u32 v%d, v%d, 3, v%d' % (vB, vB, vT + 1))
    A('v_lshlrev_b32 v%d, 8, v%d' % (vB, vB))
    A('v_xor_b32 v%d, %s, v%d' % (vT + 1, s(spair), vT + 1))
    A('v_lshl_add_u32 v%d, v%d, 6, v%d' % (vB, vT + 1, vB))
    A('v_and_b32 v%d, 3, v%d' % (vT + 1, vL))
    A('v_lshl_add_u32 v%d, v%d, 4, v%d' % (vB, vT + 1, vB))
    for c in range(20):
        for b in range(2):
            for h in range(2):
                A('ds_read_b64_tr_b16 %s, v%d offset:%d' % (u(dst(c, b) + 2 * h, 2), vB, (c % 8) * 8192 + h * 1024 + b * 8))
        if c % 8 == 7:
            A('v_add_u32 v%d, 0x10000, v%d' % (vB, vB))
        if c % 3 == 2:
            A('s_waitcnt lgkmcnt(0)')
    A('s_waitcnt lgkmcnt(0)')


def init_workspace(A):
    n16 = (WS_KM - WS_PART + 16 * 192 * 256 - 1) // (16 * 192 * 256)
    A('s_mul_i32 %s, %s, %d' % (s(sT), s(sWIDX), n16 * 4096))
    A('s_lshl_b32 %s, %s, 10' % (s(sT2), s(sWAVE)))
    A('s_add_u32 %s, %s, %s' % (s(sT), s(sT), s(sT2)))
    A('s_add_u32 %s, %s, 0x%x' % (s(sT), s(sT), WS_PART))
    for r in range(4):
        A('v_mov_b32 v%d, -1' % (12 + r))
        A('v_mov_b32 v%d, 0' % (8 + r))
    for i in range(n16):
        A('s_cmp_lt_u32 %s, 0x%x' % (s(sT), WS_KM))
        A('s_cselect_b32 %s, %s, 0x%x' % (s(sT3), s(sT), OOB))
        A('buffer_store_dwordx4 v[12:15], v%d, %s, %s offen sc1' % (vLIN, WS, s(sT3)))
        A('s_add_u32 %s, %s, 4096' % (s(sT), s(sT)))
    A('s_lshl_b32 %s, %s, 12' % (s(sT), s(sWIDX)))
    A('s_add_u32 %s, %s, %s' % (s(sT), s(sT), s(sT2)))
    A('s_cmp_lt_u32 %s, 0x%x' % (s(sT), F_END))
    A('s_cselect_b32 %s, %s, 0x%x' % (s(sT), s(sT), OOB))
    A('buffer_store_dwordx4 v[8:11], v%d, %s, %s offen sc1' % (vLIN, WS, s(sT)))


def init_done(A):
    def fn():
        A('s_and_b32 %s, %s, 7' % (s(sT), s(sWIDX)))
        A('s_lshl_b32 %s, %s, 5' % (s(sT), s(sT)))
        A('s_add_u32 %s, %s, %d' % (s(sT), s(sT), DBG_INIT))
        A('v_mov_b32 v2, 1')
        A('v_mov_b32 v3, 0')
        A('s_mov_b64 exec, 1')
        A('buffer_atomic_add v2, v3, %s, %s offen' % (srd(SRD_DBG), s(sT)))
        A('s_mov_b64 exec, -1')
    A('s_waitcnt vmcnt(0)')
    A('s_barrier')
    on_wave0(A, fn)


MODW = 96


def mod_request(A):
    build_srd(A, SRD_A, 'wmod')
    build_srd(A, SRD_B, 'c')
    sSLICE = sM + 4
    A('s_sub_u32 %s, %s, 128' % (s(sSLICE), s(sWIDX)))
    A('v_lshrrev_b32 v4, 2, v%d' % vL)
    A('v_mul_u32_u24 v4, 7680, v4')
    A('v_and_b32 v5, 3, v%d' % vL)
    A('v_lshl_add_u32 v4, v5, 4, v4')
    A('s_lshl_b32 %s, %s, 6' % (s(sOFF), s(sSLICE)))
    A('s_mul_i32 %s, %s, %d' % (s(sT), s(sWAVE), 160 * 7680))
    A('s_add_u32 %s, %s, %s' % (s(sOFF), s(sOFF), s(sT)))
    A('s_lshl_b32 %s, %s, 7' % (s(sT), s(sWAVE)))
    A('v_lshl_add_u32 v19, v%d, 1, %s' % (vL, s(sT)))
    for k in range(3):
        A('buffer_load_ushort v%d, v19, %s, 0 offen offset:%d' % (16 + k, srd(SRD_B), k * 512))
    for i in range(20):
        if i == 10:
            A('s_add_u32 %s, %s, 4096' % (s(sOFF), s(sOFF)))
            A('s_cmp_lt_u32 %s, 56' % s(sSLICE))
            A('s_cselect_b32 %s, %s, 0x%x' % (s(sOFF), s(sOFF), OOB))
        A('s_add_u32 %s, %s, %d' % (s(sT), s(sOFF), 16 * (i % 10) * 7680))
        A('buffer_load_dwordx4 %s, v4, %s, %s offen nt' % (v(MODW + 4 * i, 4), srd(SRD_A), s(sT)))


def mod_finish(A):
    W, AC, AO = MODW, 8, 12
    sSLICE = sM + 4
    A('s_waitcnt vmcnt(20)')
    A('v_and_b32 v2, 15, v%d' % vL)
    A('v_lshrrev_b32 v3, 4, v%d' % vL)
    A('s_lshl_b32 %s, %s, 11' % (s(sT), s(sWAVE)))
    A('s_add_u32 %s, %s, 2048' % (s(sT), s(sT)))
    A('v_add_u32 v90, %s, v%d' % (s(sT), vLIN))
    A('v_lshl_add_u32 v91, v2, 2, %s' % s(sT))
    A('v_lshl_add_u32 v91, v3, 8, v91')
    A('v_add_u32 v92, 1024, v91')
    for k in range(3):
        x, t = 16 + k, 20 + k
        A('v_lshlrev_b32 v%d, 16, v%d' % (x, x))
        A('v_mul_f32 v%d, 0x%x, v%d' % (t, f2u(-math.log2(math.e)), x))
        A('v_exp_f32 v%d, v%d' % (t, t))
        A('v_add_f32 v%d, 1.0, v%d' % (t, t))
        A('v_rcp_f32 v%d, v%d' % (t, t))
        A('v_mul_f32 v%d, v%d, v%d' % (x, x, t))
        A('v_cvt_pk_bf16_f32 v%d, v%d, v%d' % (x, x, x))
        A('ds_write_b16 v19, v%d offset:%d' % (x, k * 512))
    A('v_bfe_u32 v6, v%d, 3, 1' % vL)
    A('v_mul_u32_u24 v6, 0x5555, v6')
    A('v_add_u32 v6, 0x8888, v6')
    A('s_mul_i32 %s, %s, 320' % (s(sT), s(sWAVE)))
    A('v_lshl_add_u32 v7, v3, 4, %s' % s(sT))
    A('v_lshrrev_b32 v3, 1, v3')
    A('v_lshl_add_u32 v2, v2, 1, v3')
    A('v_lshlrev_b32 v93, 2, v2')
    A('s_lshl_b32 %s, %s, 2' % (s(sT), s(sWAVE)))
    A('v_add_u32 v94, %s, v%d' % (s(sT), vLIN))
    A('s_waitcnt lgkmcnt(0)')
    A('s_barrier')
    for half in range(2):
        A('v_mov_b64 %s, 0' % v(AC, 2))
        A('v_mov_b64 %s, 0' % v(AC + 2, 2))
        A('s_waitcnt vmcnt(%d)' % (10 if half == 0 else 0))
        for c in range(5):
            r = W + 40 * half + 8 * c
            for h in range(2):
                A('ds_write_b128 v90, %s offset:%d' % (v(r + 4 * h, 4), h * 1024))
            for k in range(4):
                A('ds_read2_b32 %s, v%d offset0:%d offset1:%d'
                  % (v(r + 2 * k, 2), 91 + (k >> 1), 32 * (k & 1), 32 * (k & 1) + 16))
            A('ds_read_b128 %s, v7 offset:%d' % (v(AO, 4), c * 64))
            A('s_waitcnt lgkmcnt(0)')
            A('v_smfmac_f32_16x16x64_bf16 %s, %s, %s, v6' % (v(AC, 4), v(AO, 4), v(r, 8)))
        A('ds_write_b32 v94, v%d offset:%d' % (AC, 12288 + 1024 * half))
        A('s_waitcnt lgkmcnt(0)')
        A('s_barrier')
        skip = A.label('modskip')
        A('s_cmp_lg_u32 %s, %d' % (s(sWAVE), half))
        A('s_cbranch_scc1 %s' % skip)
        if half:
            A('s_add_u32 %s, %s, 64' % (s(sSLICE), s(sSLICE)))
            A('s_cmp_ge_u32 %s, 120' % s(sSLICE))
            A('s_cbranch_scc1 %s' % skip)
        A('ds_read_b128 %s, v%d offset:%d' % (v(AC, 4), vLIN, 12288 + 1024 * half))
        A('s_waitcnt lgkmcnt(0)')
        A('v_pk_add_f32 %s, %s, %s' % (v(AC, 2), v(AC, 2), v(AC + 2, 2)))
        A('v_add_f32 v%d, v%d, v%d' % (AC, AC, AC + 1))
        A(rnd(AC, AC))
        A('v_add_f32 v%d, 1.0, v%d' % (AC + 1, AC))
        A(rnd(AC + 1, AC + 1))
        A('s_mul_i32 %s, %s, 205' % (s(sT2), s(sSLICE)))
        A('s_lshr_b32 %s, %s, 12' % (s(sT2), s(sT2)))
        A('s_bitcmp1_b32 0x12, %s' % s(sT2))
        A('s_cselect_b64 vcc, -1, 0')
        A('v_cndmask_b32 v%d, v%d, v%d, vcc' % (AC, AC, AC + 1))
        A('s_lshl_b32 %s, %s, 7' % (s(sT), s(sSLICE)))
        A('s_add_u32 %s, %s, 0x%x' % (s(sT), s(sT), WS_MOD))
        A('s_mov_b32 exec_lo, 0xffff')
        A('s_mov_b32 exec_hi, 0xffff')
        A('buffer_store_dword v%d, v93, %s, %s offen sc1' % (AC, WS, s(sT)))
        A('s_lshl_b32 %s, %s, 5' % (s(sT2), s(sT2)))
        A('s_add_u32 %s, %s, %d' % (s(sT2), s(sT2), DBG_MOD))
        A('v_mov_b32 v2, 1')
        A('s_mov_b64 exec, 1')
        A('s_waitcnt vmcnt(0)')
        A('buffer_atomic_add v2, off, %s, %s' % (srd(SRD_DBG), s(sT2)))
        A('s_mov_b64 exec, -1')
        A('%s:' % skip)
    A('s_barrier')


H_X, H_P = 104, 64


def h_request(A):
    build_srd(A, SRD_C, 'x')
    A('v_and_b32 v2, 15, v%d' % vL)
    A('v_mul_u32_u24 v2, 1280, v2')
    A('v_lshrrev_b32 v3, 4, v%d' % vL)
    A('v_lshl_add_u32 v2, v3, 4, v2')
    A('s_mul_i32 %s, %s, %d' % (s(sT2), s(sWIDX), 16 * 1280))
    A('s_mul_i32 %s, %s, 320' % (s(sT), s(sWAVE)))
    A('s_add_u32 %s, %s, %s' % (s(sT), s(sT), s(sT2)))
    for k in range(5):
        A('buffer_load_dwordx4 %s, v2, %s, %s offen offset:%d' % (v(H_P + 4 * k, 4), srd(SRD_C), s(sT), k * 64))


def h_stage(A, bail):
    X, P, MS, MC, T, vW, vR = H_X, H_P, 16, 144, 8, 6, 7
    ln_addresses(A, vW, vR)
    unpack(A, X, P, 20)
    layernorm(A, X, T, vW, vR, 0)
    wait_init(A, bail)
    wait_mod(A, bail, 2)
    load_mod40(A, MS, 0, 3)
    load_mod40(A, MC, 1, 3)
    A('s_waitcnt vmcnt(0)')
    modulate(A, X, MS, MC, P)
    A('s_mul_i32 %s, %s, %d' % (s(sT2), s(sWIDX), 16 * 1280))
    A('s_mul_i32 %s, %s, 5120' % (s(sT), s(sWAVE)))
    A('s_add_u32 %s, %s, %s' % (s(sT), s(sT), s(sT2)))
    A('s_add_u32 %s, %s, 0x%x' % (s(sT), s(sT), WS_H))
    A('s_add_u32 %s, %s, 4096' % (s(sT2), s(sT)))
    for k in range(5):
        A('buffer_store_dwordx4 %s, v%d, %s, %s offen offset:%d sc1'
          % (v(P + 4 * k, 4), vLIN, WS, s(sT if k < 4 else sT2), (k % 4) * 1024))


def h_signal(A):
    A('s_waitcnt vmcnt(40)')
    A('s_barrier')

    def fn():
        A('s_lshl_b32 %s, %s, 2' % (s(sT), s(sWIDX)))
        A('s_add_u32 %s, %s, %d' % (s(sT), s(sT), WS_FLAG + F_H))
        A('s_cmp_lt_u32 %s, 128' % s(sWIDX))
        A('s_cselect_b32 %s, %s, 0x%x' % (s(sT), s(sT), OOB))
        signal(A, SRD_WS, s(sT), '1')
    on_wave0(A, fn)
    A('s_waitcnt vmcnt(0)')


def qkv_stage(A, bail):
    W, ACC, HS, vH, vD = 192, 16, 48, 8, 9
    sMAT, sHD, sGRP, sSRC, sDST, sBUF, sPR = sCOPY, sSLICE, sRT, sOFF, sOFF2, sOFF3, sFL
    A('s_and_b32 %s, %s, 1' % (s(sGRP), s(sWIDX)))
    A('s_lshr_b32 %s, %s, 1' % (s(sT), s(sWIDX)))
    A('s_and_b32 %s, %s, 31' % (s(sHD), s(sT)))
    A('s_lshr_b32 %s, %s, 5' % (s(sMAT), s(sT)))
    build_srd(A, SRD_A, 'wk')
    for m, n in ((1, 'wv'), (2, 'wq')):
        A('s_cmp_eq_u32 %s, %d' % (s(sMAT), m))
        A('s_cselect_b32 %s, %s, %s' % (s(SRD_A), s(PTR[n]), s(SRD_A)))
        A('s_cselect_b32 %s, %s, %s' % (s(SRD_A + 1), s(PTR[n] + 1), s(SRD_A + 1)))
    A('s_and_b32 %s, %s, 0xffff' % (s(SRD_A + 1), s(SRD_A + 1)))
    A('s_lshl_b32 %s, %s, 8' % (s(sT3), s(sHD)))

    def wreg(p):
        return lambda c, b: W + (c * 4 + p * 2 + b) * 4

    for val in (False, True):
        tag = 'qkv_v' if val else 'qkv_qk'
        if not val:
            A('s_cmp_eq_u32 %s, 1' % s(sMAT))
            A('s_cbranch_scc1 qkv_v')
        A('%s:' % tag)
        stage_wide(A, SRD_A, 8192, sT3, val, R=96, between=lambda: h_signal(A))
        for p in range(2):
            A('s_and_b32 %s, %s, 1' % (s(sT2), s(sWAVE)))
            A('s_lshl_b32 %s, %s, 1' % (s(sT2), s(sT2)))
            A('s_add_u32 %s, %s, %d' % (s(sT2), s(sT2), p))
            read_wide(A, sT2, wreg(p))
        mark(A, 3, sWIDX)
        A('v_lshlrev_b32 v3, 2, v%d' % vL)
        wait_init(A, bail, 4)
        for k in range(2):
            A('s_mov_b32 %s, %d' % (s(sT), WS_FLAG + F_H + 256 * k))
            wait_ge(A, bail, SRD_WS, 3, s(sT), 64, '1')
        A('s_barrier')
        A('s_mul_i32 %s, %s, 20480' % (s(sT), s(sWAVE)))
        A('s_mov_b32 %s, %s' % (s(sBUF), s(sT)))
        A('s_mul_i32 %s, %s, 81920' % (s(sSRC), s(sGRP)))
        A('s_add_u32 %s, %s, %s' % (s(sSRC), s(sSRC), s(sT)))
        A('s_add_u32 %s, %s, 0x%x' % (s(sSRC), s(sSRC), WS_H))
        A('s_lshr_b32 %s, %s, 1' % (s(sT), s(sWAVE)))
        A('s_mul_i32 %s, %s, 40960' % (s(sT2), s(sT)))
        A('v_add_u32 v%d, %s, v%d' % (vH, s(sT2), vLIN))
        A('v_mov_b32 v%d, 81920' % vD)
        A('s_lshl_b32 %s, %s, 1' % (s(sT2), s(sGRP)))
        A('s_add_u32 %s, %s, %s' % (s(sT), s(sT), s(sT2)))
        A('s_lshl_b32 %s, %s, 5' % (s(sT), s(sT)))
        A('s_add_u32 %s, %s, %s' % (s(sT), s(sT), s(sHD)))
        A('s_lshl_b32 %s, %s, 13' % (s(sDST), s(sT)))
        A('s_and_b32 %s, %s, 1' % (s(sT), s(sWAVE)))
        A('s_lshl_b32 %s, %s, %d' % (s(sT), s(sT), 12 if val else 11))
        A('s_add_u32 %s, %s, %s' % (s(sDST), s(sDST), s(sT)))
        if val:
            A('s_add_u32 %s, %s, 0x%x' % (s(sDST), s(sDST), WS_V))
        else:
            A('s_cmp_eq_u32 %s, 0' % s(sMAT))
            A('s_mov_b32 %s, 0x%x' % (s(sT), WS_Q))
            A('s_cselect_b32 %s, 0x%x, %s' % (s(sT), WS_K, s(sT)))
            A('s_add_u32 %s, %s, %s' % (s(sDST), s(sDST), s(sT)))
        A('s_add_u32 %s, %s, 1' % (s(sT), s(sMAT)))
        A('s_cmp_eq_u32 %s, 3' % s(sT))
        A('s_cselect_b32 %s, 0, %s' % (s(sT), s(sT)))
        A('s_lshl_b32 %s, %s, 1' % (s(sT), s(sT)))
        A('s_add_u32 %s, %s, %s' % (s(sT), s(sT), s(sGRP)))
        A('s_lshl_b32 %s, %s, 3' % (s(sPR), s(sHD)))
        A('s_add_u32 %s, %s, %s' % (s(sPR), s(sPR), s(sT)))
        A('s_lshl_b32 %s, %s, 2' % (s(sPR), s(sPR)))
        A('s_add_u32 %s, %s, %d' % (s(sPR), s(sPR), WS_FLAG + F_QKV))
        A('s_mov_b32 %s, 0' % s(sI))
        A('s_mov_b32 %s, 81920' % s(sM + 1))

        def dma():
            out = []
            for k in range(5):
                out.append('s_add_u32 m0, %s, %d' % (s(sBUF), k * 4096))
                out.append('s_add_u32 %s, %s, %d' % (s(sT), s(sSRC), k * 4096))
                out += ['buffer_load_dwordx4 v%d, %s, %s offen offset:%d sc1 lds' % (vLIN, WS, s(sT), j * 1024)
                        for j in range(4)]
            return out

        def flip():
            A('s_add_u32 %s, %s, %s' % (s(sBUF), s(sBUF), s(sM + 1)))
            A('s_sub_u32 %s, 0, %s' % (s(sM + 1), s(sM + 1)))
            A('s_add_u32 %s, %s, %d' % (s(sSRC), s(sSRC), 2 * 81920))
        for x in dma():
            A(x)
        flip()
        A('s_waitcnt vmcnt(0)')
        mark(A, 4, sWIDX)
        A('%s_loop:' % tag)
        A('s_cmp_lg_u32 %s, 1' % s(sI))
        A('s_cbranch_scc1 %s_lag' % tag)
        A('s_waitcnt vmcnt(0)')
        A('%s_lag:' % tag)
        A('s_waitcnt vmcnt(4)')
        A('s_barrier')
        A('s_max_u32 %s, %s, 2' % (s(sT2), s(sI)))
        A('s_sub_u32 %s, %s, 1' % (s(sT2), s(sT2)))
        A('s_min_u32 %s, %s, %s' % (s(sT2), s(sT2), s(sI)))
        on_wave0(A, lambda: signal(A, SRD_WS, s(sPR), s(sT2)))
        A('s_cmp_lt_u32 %s, 15' % s(sI))
        A('s_cselect_b32 %s, %s, 0x%x' % (s(sSRC), s(sSRC), OOB))

        def rd(c):
            return ['ds_read_b128 %s, v%d offset:%d' % (v(HS + 8 * (c % 3) + 4 * tt, 4), vH, tt * 20480 + c * 1024)
                    for tt in range(2)]
        for x in rd(0) + rd(1):
            A(x)
        req = dma() if OPT.get('p2', 0) != 2 else []
        for c in range(20):
            fill = (rd(c + 2) if c + 2 < 20 else []) + req[:2]
            req = req[2:]
            A('s_waitcnt lgkmcnt(%d)' % (2 if c < 19 else 0))
            for tt in range(2):
                for k in range(4):
                    h, w = HS + 8 * (c % 3) + 4 * tt, W + (c * 4 + k) * 4
                    a_ = ACC + (k * 2 + tt) * 4
                    A(mfma(a_, h, w, c == 0) if val else mfma(a_, w, h, c == 0))
                    if fill and k >= 1:
                        A(fill.pop(0))
        A('v_add_u32 v%d, v%d, v%d' % (vH, vH, vD))
        A('v_sub_u32 v%d, 0, v%d' % (vD, vD))
        flip()
        O = HS
        for k in range(4):
            if val:
                lo, hi = ACC + (k * 2) * 4, ACC + (k * 2 + 1) * 4
                off = k * 1024
            else:
                p, tt = k >> 1, k & 1
                lo, hi = ACC + (p * 4 + tt) * 4, ACC + (p * 4 + 2 + tt) * 4
                off = p * 1024
            o = O + 4 * k
            A('v_cvt_pk_bf16_f32 v%d, v%d, v%d' % (o, lo, lo + 1))
            A('v_cvt_pk_bf16_f32 v%d, v%d, v%d' % (o + 1, lo + 2, lo + 3))
            A('v_cvt_pk_bf16_f32 v%d, v%d, v%d' % (o + 2, hi, hi + 1))
            A('v_cvt_pk_bf16_f32 v%d, v%d, v%d' % (o + 3, hi + 2, hi + 3))
            so = sDST
            if not val and tt:
                A('s_add_u32 %s, %s, 4096' % (s(sT), s(sDST)))
                so = sT
            if OPT.get('p2', 0) != 1:
                A('buffer_store_dwordx4 %s, v%d, %s, %s offen offset:%d%s'
                  % (v(o, 4), vLIN, WS, s(so), off, '' if OPT.get('p2', 0) == 3 else ' sc1'))
        A('s_add_u32 %s, %s, 0x%x' % (s(sDST), s(sDST), 4 * 32 * 8192))
        A('s_add_u32 %s, %s, 1' % (s(sI), s(sI)))
        A('s_cmp_lt_u32 %s, 16' % s(sI))
        A('s_cbranch_scc1 %s_loop' % tag)
        A('s_waitcnt vmcnt(0)')
        A('s_barrier')
        on_wave0(A, lambda: signal(A, SRD_WS, s(sPR), '16'))
        if not val:
            A('s_branch qkv_done')
    A('qkv_done:')
```

```python
import math
from common import *
from wk import *

sSTEP_RT, sLDS = 100, 101
LOG2E = math.log2(math.e)


def next_tile(A, tag):
    A('s_add_u32 %s, %s, %s' % (s(sRT), s(sRT), s(sSTEP_RT)))
    A('s_cmp_lt_u32 %s, 128' % s(sRT))
    A('s_cbranch_scc1 %s_loop' % tag)
    A('s_waitcnt vmcnt(0)')
    mark(A, 7, sWIDX)
    A('s_waitcnt vmcnt(0)')
    A('s_endpgm')


def flag_off(A, dst, base, shift, add=None):
    A('s_lshl_b32 %s, %s, %d' % (s(dst), s(sRT), shift))
    if add is not None:
        A('s_lshl_b32 %s, %s, 2' % (s(sT3), s(add)))
        A('s_add_u32 %s, %s, %s' % (s(dst), s(dst), s(sT3)))
    A('s_add_u32 %s, %s, %d' % (s(dst), s(dst), WS_FLAG + base))


def done_flag(A, base, shift):
    A('s_waitcnt vmcnt(0)')
    A('s_barrier')

    def fn():
        flag_off(A, sT, base, shift, sSLICE)
        signal(A, SRD_WS, s(sT), '1')
    on_wave0(A, fn)


def attention(A, bail):
    Q, K0, K1, V, KM, VM, KD, S0, S1, SM, P, PL, PH, O, T = 16, 32, 48, 64, 96, 112, 120, 128, 132, 136, 140, 144, 146, 148, 180
    vQW, vQR, vL8, vFL, vNEG, vF7 = 8, 9, 10, 11, 12, 13
    sHD, sQT, sB, sKM = sSLICE, sCOPY, sOFF, sOFF2
    A('att:')
    A('s_lshl_b32 %s, %s, 2' % (s(sT), s(sSLICE)))
    A('s_add_u32 %s, %s, %s' % (s(sT), s(sT), s(sWAVE)))
    A('s_and_b32 %s, %s, 1' % (s(sQT), s(sT)))
    A('s_lshr_b32 %s, %s, 6' % (s(sRT), s(sT)))
    A('s_lshl_b32 %s, %s, 1' % (s(sRT), s(sRT)))
    A('s_add_u32 %s, %s, %s' % (s(sRT), s(sRT), s(sQT)))
    A('s_bfe_u32 %s, %s, 0x50001' % (s(sHD), s(sT)))
    A('s_mov_b32 %s, 4' % s(sSTEP_RT))
    n, g, t = 2, 3, 4
    A('v_and_b32 v%d, 15, v%d' % (n, vL))
    A('v_lshrrev_b32 v%d, 4, v%d' % (g, vL))
    A('v_bfe_u32 v%d, v%d, 2, 2' % (t, vL))
    A('s_mul_i32 %s, %s, 2304' % (s(sT), s(sWAVE)))
    A('v_lshrrev_b32 v%d, 1, v%d' % (vQW, g))
    A('v_mul_u32_u24 v%d, 288, v%d' % (vQW, vQW))
    A('v_lshl_add_u32 v%d, v%d, 4, v%d' % (vQW, n, vQW))
    A('v_and_b32 v5, 1, v%d' % g)
    A('v_lshl_add_u32 v%d, v5, 3, v%d' % (vQW, vQW))
    A('v_add_u32 v%d, %s, v%d' % (vQW, s(sT), vQW))
    A('v_and_b32 v%d, 1, v%d' % (vQR, t))
    A('v_mul_u32_u24 v%d, 288, v%d' % (vQR, vQR))
    A('v_lshrrev_b32 v5, 1, v%d' % t)
    A('v_lshl_add_u32 v5, v%d, 2, v5' % g)
    A('v_lshl_add_u32 v%d, v5, 4, v%d' % (vQR, vQR))
    A('v_and_b32 v5, 1, v%d' % vL)
    A('v_lshl_add_u32 v%d, v5, 3, v%d' % (vQR, vQR))
    A('v_add_u32 v%d, %s, v%d' % (vQR, s(sT), vQR))
    A('v_lshlrev_b32 v%d, 3, v%d' % (vL8, vL))
    A('v_lshlrev_b32 v%d, 2, v%d' % (vFL, vL))
    A('v_mov_b32 v%d, 0x%x' % (vNEG, f2u(-1e9)))
    A('v_and_b32 v%d, 1, v%d' % (vF7, vL))
    A('v_lshlrev_b32 v%d, 7, v%d' % (vF7, vF7))
    A('s_lshl_b32 %s, %s, 4' % (s(sT), s(sQT)))
    A('v_add_u32 v5, %s, v%d' % (s(sT), n))
    A('v_lshlrev_b32 v6, 2, v%d' % g)
    for k in range(8):
        A('v_add_u32 v7, %d, v6' % (16 * (k >> 2) + (k & 3)))
        A('v_cmp_le_u32 %s, v7, v5' % s(sM + 2 * k, 2))
    A('s_lshl_b32 %s, %s, 5' % (s(sT), s(sHD)))
    A('s_add_u32 %s, %s, %d' % (s(sT), s(sT), WS_FLAG + F_QKV))
    wait_ge(A, bail, SRD_WS, vFL, s(sT), 6, '16')
    mark(A, 6, sWIDX)
    A('att_loop:')
    A('s_lshr_b32 %s, %s, 1' % (s(sI), s(sRT)))
    A('s_lshl_b32 %s, %s, 5' % (s(sT), s(sI)))
    A('s_add_u32 %s, %s, %s' % (s(sT), s(sT), s(sHD)))
    A('s_lshl_b32 %s, %s, 11' % (s(sKM), s(sT)))
    A('s_lshl_b32 %s, %s, 13' % (s(sB), s(sT)))
    A('s_lshl_b32 %s, %s, 12' % (s(sT), s(sQT)))
    A('s_add_u32 %s, %s, %s' % (s(sT), s(sT), s(sB)))
    A('s_add_u32 %s, %s, 0x%x' % (s(sT), s(sT), WS_Q))
    for c in range(4):
        A('buffer_load_dwordx4 %s, v%d, %s, %s offen offset:%d sc1' % (v(Q + 4 * c, 4), vLIN, WS, s(sT), c * 1024))
    for base, regs in ((WS_K, K0), (WS_K + 4096, K1), (WS_V, V), (WS_V + 4096, V + 16)):
        A('s_add_u32 %s, %s, 0x%x' % (s(sT), s(sB), base))
        for c in range(4):
            A('buffer_load_dwordx4 %s, v%d, %s, %s offen offset:%d sc1' % (v(regs + 4 * c, 4), vLIN, WS, s(sT), c * 1024))
    A('s_waitcnt vmcnt(8)')
    for c in range(4):
        A(mfma(S0, K0 + 4 * c, Q + 4 * c, c == 0))
        A(mfma(S1, K1 + 4 * c, Q + 4 * c, c == 0))
    A('s_lshl_b32 %s, %s, 8' % (s(sT), s(sHD)))
    A('s_add_u32 %s, %s, %d' % (s(sT), s(sT), WS_FLAG + F_KM))
    A('s_add_u32 %s, %s, 1' % (s(sI), s(sI)))
    wait_ge(A, bail, SRD_WS, vF7, s(sT), 2, s(sI))
    mark(A, 8, sWIDX)
    for base, regs in ((WS_KM, KD), (WS_VM, VM)):
        A('s_add_u32 %s, %s, 0x%x' % (s(sT), s(sKM), base))
        for c in range(4):
            A('buffer_load_dwordx2 %s, v%d, %s, %s offen offset:%d sc1' % (v(regs + 2 * c, 2), vL8, WS, s(sT), c * 512))
    scale = f2u(128 ** -0.5)

    def scaled(regs):
        for r in regs:
            A(rnd(r, r))
        for r in regs:
            A('v_mul_f32 v%d, 0x%x, v%d' % (r, scale, r))
        for r in regs:
            A(rnd(r, r))
    xs = list(range(S0, S0 + 8))
    ms = list(range(SM, SM + 4))
    scaled(xs)
    for k, r in enumerate(xs):
        A('v_cndmask_b32 v%d, v%d, v%d, %s' % (r, vNEG, r, s(sM + 2 * k, 2)))
    A('v_max3_f32 v%d, v%d, v%d, v%d' % (T, xs[0], xs[1], xs[2]))
    A('v_max3_f32 v%d, v%d, v%d, v%d' % (T, T, xs[3], xs[4]))
    A('v_max3_f32 v%d, v%d, v%d, v%d' % (T, T, xs[5], xs[6]))
    A('v_max_f32 v%d, v%d, v%d' % (T, T, xs[7]))
    A('v_mov_b64 %s, 0' % v(PL, 2))
    A('v_mov_b64 %s, 0' % v(PH, 2))
    A('s_waitcnt vmcnt(4)')
    for c in range(4):
        A('ds_write_b64 v%d, %s offset:%d' % (vQW, v(KD + 2 * c, 2), c * 576))
    for c in range(4):
        for h in range(2):
            A('ds_read_b64_tr_b16 %s, v%d offset:%d' % (v(KM + 4 * c + 2 * h, 2), vQR, c * 576 + 32 * h))
    for c in range(4):
        A('s_waitcnt lgkmcnt(%d)' % (6 - 2 * c))
        A(mfma(SM, KM + 4 * c, Q + 4 * c, c == 0))
    scaled(ms)
    A('v_max3_f32 v%d, v%d, v%d, v%d' % (T, T, ms[0], ms[1]))
    A('v_max3_f32 v%d, v%d, v%d, v%d' % (T, T, ms[2], ms[3]))
    xor_reduce(A, T, T + 1, 'v_max_f32')
    for r in xs + ms:
        A('v_sub_f32 v%d, v%d, v%d' % (r, r, T))
    for r in xs + ms:
        A('v_mul_f32 v%d, 0x%x, v%d' % (r, f2u(LOG2E), r))
    for r in xs + ms:
        A('v_exp_f32 v%d, v%d' % (r, r))
    A('v_pk_add_f32 %s, %s, %s' % (v(T, 2), v(S0, 2), v(S0 + 2, 2)))
    A('v_pk_add_f32 %s, %s, %s' % (v(T + 2, 2), v(S1, 2), v(S1 + 2, 2)))
    A('v_pk_add_f32 %s, %s, %s' % (v(T + 4, 2), v(SM, 2), v(SM + 2, 2)))
    A('v_pk_add_f32 %s, %s, %s' % (v(T, 2), v(T, 2), v(T + 2, 2)))
    A('v_add_f32 v%d, v%d, v%d' % (T + 4, T + 4, T + 5))
    A('v_add_f32 v%d, v%d, v%d' % (T, T, T + 1))
    A('v_fma_f32 v%d, v%d, 0.5, v%d' % (T, T + 4, T))
    xor_reduce(A, T, T + 1, 'v_add_f32')
    A('v_rcp_f32 v%d, v%d' % (T, T))
    for r in range(S0, S0 + 12, 2):
        A('v_pk_mul_f32 %s, %s, %s op_sel_hi:[1,0]' % (v(r, 2), v(r, 2), v(T, 2)))
    for k in range(4):
        A('v_cvt_pk_bf16_f32 v%d, v%d, v%d' % (P + k, S0 + 2 * k, S0 + 2 * k + 1))
    for k in range(2):
        A('v_cvt_pk_bf16_f32 v%d, v%d, v%d' % (T + k, SM + 2 * k, SM + 2 * k + 1))
    for k in range(2):
        A('v_mov_b32_dpp v%d, v%d quad_perm:[0,1,2,3] row_mask:0x3 bank_mask:0xf' % (PL + k, T + k))
        A('v_mov_b32_dpp v%d, v%d quad_perm:[0,1,2,3] row_mask:0xc bank_mask:0xf' % (PH + k, T + k))
    for k in range(8):
        A(mfma(O + 4 * k, V + 4 * k, P, True))
    A('s_waitcnt vmcnt(0)')
    for k in range(8):
        A('v_mfma_f32_16x16x16_bf16 %s, %s, %s, %s'
          % (v(O + 4 * k, 4), v(VM + 2 * (k >> 1), 2), v(PH if k & 1 else PL, 2), v(O + 4 * k, 4)))
    A('s_lshl_b32 %s, %s, 5' % (s(sT), s(sRT)))
    A('s_add_u32 %s, %s, %s' % (s(sT), s(sT), s(sHD)))
    A('s_lshl_b32 %s, %s, 12' % (s(sT), s(sT)))
    A('s_add_u32 %s, %s, 0x%x' % (s(sT), s(sT), WS_O))
    for c in range(4):
        for r in range(4):
            A('v_cvt_pk_bf16_f32 v%d, v%d, v%d' % (Q + 4 * c + r, O + 8 * c + r, O + 8 * c + 4 + r))
        A('buffer_store_dwordx4 %s, v%d, %s, %s offen offset:%d sc1' % (v(Q + 4 * c, 4), vLIN, WS, s(sT), c * 1024))
    mark(A, 10, sWIDX)
    A('s_waitcnt vmcnt(0)')
    flag_off(A, sT, F_O, 7, sHD)
    signal(A, SRD_WS, s(sT), '1')
    next_tile(A, 'att')


def ksplit(A, bail, tag):
    t2 = tag == 't2'
    NK, TOT = (32, 128) if t2 else (14, 54)
    W = 512 - NK * 8
    AP, ACC, RED, E, G, T = 16, 144, 152, 176, 192, 200
    vX, vFL, vRW = 8, 9, 10
    sK0 = sOFF
    A('%s:' % tag)
    build_srd(A, SRD_A, 'wo' if t2 else 'w4')
    build_srd(A, SRD_B, 'x' if t2 else 'out')
    A('s_mov_b32 %s, %s' % (s(sRT), s(sCOPY)))
    A('s_mul_i32 %s, %s, %d' % (s(sK0), s(sWAVE), NK))
    A('v_lshrrev_b32 v2, 2, v%d' % vL)
    A('v_mul_u32_u24 v2, 1280, v2')
    A('v_and_b32 v3, 3, v%d' % vL)
    A('v_lshl_add_u32 v2, v3, 4, v2')
    A('s_lshl_b32 %s, %s, 15' % (s(sT), s(sWAVE)))
    A('v_add_u32 v4, %s, v%d' % (s(sT), vLIN))
    A('v_lshrrev_b32 v5, 4, v%d' % vL)
    A('v_bfe_u32 v6, v%d, 2, 2' % vL)
    A('v_lshl_add_u32 v5, v5, 3, v6')
    A('v_lshlrev_b32 v5, 6, v5')
    A('v_lshl_add_u32 v5, v3, 4, v5')
    A('v_add_u32 v5, %s, v5' % s(sT))
    A('s_mul_i32 %s, %s, %d' % (s(sT2), s(sK0), 32 * 1280))
    A('s_lshl_b32 %s, %s, 6' % (s(sT), s(sSLICE)))
    A('s_add_u32 %s, %s, %s' % (s(sT2), s(sT2), s(sT)))
    for k0 in range(0, NK, 16):
        nk = min(16, NK - k0)
        for i in range(2 * nk):
            A('s_add_u32 %s, %s, %d' % (s(sT), s(sT2), (32 * k0 + 16 * i) * 1280))
            A('buffer_load_dwordx4 %s, v2, %s, %s offen' % (v(AP + 4 * i, 4), srd(SRD_A), s(sT)))
        for i in range(2 * nk):
            A('s_waitcnt vmcnt(%d)' % (2 * nk - 1 - i))
            A('ds_write_b128 v4, %s offset:%d' % (v(AP + 4 * i, 4), i * 1024))
        for c in range(nk):
            for b in range(2):
                for h in range(2):
                    A('ds_read_b64_tr_b16 %s, v5 offset:%d'
                      % (u(W + ((k0 + c) * 2 + b) * 4 + 2 * h, 2), c * 2048 + h * 256 + b * 8))
            if c % 3 == 2:
                A('s_waitcnt lgkmcnt(0)')
        A('s_waitcnt lgkmcnt(0)')
    A('s_barrier')
    wait_mod(A, bail)
    A('v_lshrrev_b32 v3, 4, v%d' % vL)
    A('v_lshlrev_b32 v2, 5, v3')
    A('s_lshl_b32 %s, %s, 7' % (s(sT), s(sSLICE)))
    A('s_add_u32 %s, %s, 0x%x' % (s(sT), s(sT), WS_MOD + (2 if t2 else 5) * D * 4))
    for k in range(2):
        A('buffer_load_dwordx4 %s, v2, %s, %s offen offset:%d sc1' % (v(G + 4 * k, 4), WS, s(sT), 16 * k))
    A('v_and_b32 v%d, 15, v%d' % (vX, vL))
    A('v_mul_u32_u24 v%d, 1280, v%d' % (vX, vX))
    A('v_lshl_add_u32 v%d, v3, 4, v%d' % (vX, vX))
    A('s_lshl_b32 %s, %s, 6' % (s(sT), s(sSLICE)))
    A('v_add_u32 v%d, %s, v%d' % (vX, s(sT), vX))
    A('v_lshlrev_b32 v%d, 2, v%d' % (vFL, vL))
    A('s_lshl_b32 %s, %s, 11' % (s(sT), s(sWAVE)))
    A('v_add_u32 v%d, %s, v%d' % (vRW, s(sT), vLIN))
    A('s_waitcnt vmcnt(0)')

    mark(A, 6, sWIDX)
    A('%s_loop:' % tag)
    flag_off(A, sT, F_O if t2 else F_U, 7 if t2 else 6)
    wait_ge(A, bail, SRD_WS, vFL, s(sT), 32 if t2 else 7, '1')
    mark(A, 8, sWIDX)
    A('s_mul_i32 %s, %s, %d' % (s(sOFF2), s(sRT), 20480))

    def extras():
        if t2:
            A('buffer_load_dwordx4 %s, v%d, %s, %s offen' % (v(E, 4), vX, srd(SRD_B), s(sOFF2)))
            return
        A('s_lshl_b32 %s, %s, 10' % (s(sT), s(sSLICE)))
        A('s_add_u32 %s, %s, %s' % (s(sT), s(sT), s(sOFF2)))
        A('s_add_u32 %s, %s, 0x%x' % (s(sT2), s(sT), WS_X1))
        A('s_add_u32 %s, %s, 0x%x' % (s(sT), s(sT), WS_XA))
        A('buffer_load_dwordx4 %s, v%d, %s, %s offen sc1' % (v(E, 4), vLIN, WS, s(sT2)))
        A('buffer_load_dwordx4 %s, v%d, %s, %s offen sc1' % (v(E + 4, 4), vLIN, WS, s(sT)))
    on_wave0(A, extras)
    A('s_mul_i32 %s, %s, %d' % (s(sOFF3), s(sRT), TOT))
    A('s_add_u32 %s, %s, %s' % (s(sOFF3), s(sOFF3), s(sK0)))
    A('s_lshl_b32 %s, %s, 10' % (s(sOFF3), s(sOFF3)))
    A('s_add_u32 %s, %s, 0x%x' % (s(sOFF3), s(sOFF3), WS_O if t2 else WS_U))
    for c in range(NK):
        if c % 4 == 0:
            A('s_add_u32 %s, %s, %d' % (s(sT), s(sOFF3), c * 1024))
            if not t2 and c == 12:
                A('s_cmp_eq_u32 %s, 3' % s(sWAVE))
                A('s_cselect_b32 %s, 0x%x, %s' % (s(sT), OOB, s(sT)))
        A('buffer_load_dwordx4 %s, v%d, %s, %s offen offset:%d sc1' % (v(AP + 4 * c, 4), vLIN, WS, s(sT), (c % 4) * 1024))
    for c in range(NK):
        A('s_waitcnt vmcnt(%d)' % (NK - 1 - c))
        for b in range(2):
            A(mfma(ACC + 4 * b, W + (c * 2 + b) * 4, AP + 4 * c, c == 0))
    mark(A, 9, sWIDX)
    w0, join = A.label('w0'), A.label('join')
    A('s_cmp_eq_u32 %s, 0' % s(sWAVE))
    A('s_cbranch_scc1 %s' % w0)
    for b in range(2):
        A('ds_write_b128 v%d, %s offset:%d' % (vRW, v(ACC + 4 * b, 4), b * 1024))
    A('s_waitcnt lgkmcnt(0)')
    A('s_barrier')
    A('s_barrier')
    A('s_branch %s' % join)
    A('%s:' % w0)
    A('s_barrier')
    for k in range(6):
        A('ds_read_b128 %s, v%d offset:%d' % (v(RED + 4 * k, 4), vLIN, 2048 + k * 1024))
    X, Y = T, T + 8
    unpack(A, X, E, 4)
    if not t2:
        unpack(A, Y, E + 4, 4)
    A('s_waitcnt lgkmcnt(0)')
    A('s_barrier')
    for k in range(3):
        for r in range(0, 8, 2):
            A('v_pk_add_f32 %s, %s, %s' % (v(ACC + r, 2), v(ACC + r, 2), v(RED + 8 * k + r, 2)))
    for r in range(8):
        A(rnd(ACC + r, ACC + r))
    if not t2:
        for r in range(0, 8, 2):
            A('v_pk_add_f32 %s, %s, %s' % (v(ACC + r, 2), v(ACC + r, 2), v(X + r, 2)))
        for r in range(8):
            A(rnd(ACC + r, ACC + r))
    for r in range(0, 8, 2):
        A('v_pk_mul_f32 %s, %s, %s' % (v(ACC + r, 2), v(ACC + r, 2), v(G + r, 2)))
    for r in range(8):
        A(rnd(ACC + r, ACC + r))
    for r in range(0, 8, 2):
        A('v_pk_add_f32 %s, %s, %s' % (v(ACC + r, 2), v(ACC + r, 2), v((X if t2 else Y) + r, 2)))
    for k in range(4):
        A('v_cvt_pk_bf16_f32 v%d, v%d, v%d' % (E + k, ACC + 2 * k, ACC + 2 * k + 1))
    mark(A, 10, sWIDX)
    if t2:
        A('s_lshl_b32 %s, %s, 10' % (s(sT), s(sSLICE)))
        A('s_add_u32 %s, %s, %s' % (s(sT), s(sT), s(sOFF2)))
        A('s_add_u32 %s, %s, 0x%x' % (s(sT), s(sT), WS_XA))
        A('buffer_store_dwordx4 %s, v%d, %s, %s offen sc1' % (v(E, 4), vLIN, WS, s(sT)))
        A('s_waitcnt vmcnt(0)')
        flag_off(A, sT, F_XA, 7, sSLICE)
        signal(A, SRD_WS, s(sT), '1')
    else:
        A('buffer_store_dwordx4 %s, v%d, %s, %s offen' % (v(E, 4), vX, srd(SRD_B), s(sOFF2)))
    A('%s:' % join)
    next_tile(A, tag)


def nsplit(A, bail, tag):
    NP = 2 if tag == 't5' else 1
    W = 512 - 160 * NP
    X, P, T, MS, MC, HS, ACC, G, E = 16, 56, 8, 80, 120, 160, 80 if NP == 2 else 172, 100 if NP == 2 else 180, 120 if NP == 2 else 192
    vW, vR, vFL, vH = 6, 7, 76, 77
    SH = 78
    name, stride = {'t3': ('w1', 1280), 't4': ('w2', 1280), 't5': ('w3', 3456)}[tag]
    A('%s:' % tag)
    build_srd(A, SRD_A, name)
    A('s_mov_b32 %s, %s' % (s(sRT), s(sCOPY)))
    for p in range(NP):
        A('s_lshl_b32 %s, %s, %d' % (s(sT3), s(sSLICE), 7 + NP))
        A('s_add_u32 %s, %s, %d' % (s(sT3), s(sT3), 256 * p))
        stage_wide(A, SRD_A, stride, sT3, False)
        read_wide(A, sWAVE, lambda c, b: W + ((c * NP + p) * 2 + b) * 4)
        A('s_barrier')
    A('v_lshlrev_b32 v%d, 2, v%d' % (vFL, vL))
    A('s_mul_i32 %s, %s, 5120' % (s(sLDS), s(sWAVE)))
    A('s_add_u32 %s, %s, 1024' % (s(sT), s(sLDS)))
    A('v_add_u32 v%d, %s, v%d' % (vH, s(sT), vLIN))
    A('s_lshl_b32 %s, %s, %d' % (s(sOFF), s(sSLICE), 1 + NP))
    A('s_add_u32 %s, %s, %s' % (s(sOFF), s(sOFF), s(sWAVE)))
    if NP == 2:
        A('s_add_u32 %s, %s, 4' % (s(sM + 2), s(sOFF)))
        A('s_cmp_lt_u32 %s, 54' % s(sM + 2))
        A('s_cselect_b32 %s, %s, 0x%x' % (s(sM + 2), s(sM + 2), OOB >> 10))
        A('s_lshl_b32 %s, %s, 10' % (s(sM + 2), s(sM + 2)))
    A('s_lshl_b32 %s, %s, 10' % (s(sOFF), s(sOFF)))
    if tag == 't4':
        A('v_and_b32 v2, 7, v%d' % vL)
        A('v_cmp_gt_u32 %s, 5, v2' % s(sM + 2, 2))
        A('s_and_b32 %s, %s, 0xffffff' % (s(sM + 2), s(sM + 2)))
        A('s_and_b32 %s, %s, 1' % (s(sT), s(sWAVE)))
        A('s_lshl_b32 %s, %s, 1' % (s(sT), s(sT)))
        A('s_sub_u32 %s, %s, 1' % (s(sT), s(sT)))
        A('s_lshr_b32 %s, %s, 1' % (s(sT2), s(sWAVE)))
        A('s_lshl_b32 %s, %s, %s' % (s(sT), s(sT), s(sT2)))
        A('v_and_b32 v2, 15, v%d' % vL)
        A('v_add_u32 v%d, %s, v2' % (SH, s(sT)))
    else:
        ln_addresses(A, vW, vR)
    if tag == 't3':
        wait_mod(A, bail)
        load_mod40(A, MS, 3, 3)
        load_mod40(A, MC, 4, 3)
        A('s_waitcnt vmcnt(0)')

    mark(A, 6, sWIDX)
    A('%s_loop:' % tag)
    A('s_mul_i32 %s, %s, 20480' % (s(sOFF2), s(sRT)))
    if tag == 't4':
        top, ok = A.label('wait'), A.label('ready')
        A('s_mov_b32 %s, %s' % (s(sM + 4), s(sM + 2)))
        A('s_cmp_eq_u32 %s, 0' % s(sRT))
        A('s_cselect_b32 %s, 0xffff00, -1' % s(sT))
        A('s_and_b32 %s, %s, %s' % (s(sM + 4), s(sM + 4), s(sT)))
        A('s_cmp_eq_u32 %s, 127' % s(sRT))
        A('s_cselect_b32 %s, 0xffff, -1' % s(sT))
        A('s_and_b32 %s, %s, %s' % (s(sM + 4), s(sM + 4), s(sT)))
        flag_off(A, sT, F_T, 5)
        A('%s:' % top)
        A('buffer_load_dword v2, v%d, %s, %s offen sc1' % (vFL, WS, s(sT)))
        A('s_waitcnt vmcnt(0)')
        A('v_cmp_eq_u32 vcc, 0, v2')
        A('s_and_b32 %s, vcc_lo, %s' % (s(sT2), s(sM + 4)))
        A('s_cbranch_scc0 %s' % ok)
        A('s_sleep 1')
        spin_guard(A, sSP, top, bail)
        A('%s:' % ok)
        mark(A, 8, sWIDX)
        A('s_lshl_b32 %s, %s, 4' % (s(sT), s(sRT)))
        A('v_add_u32 v2, %s, v%d' % (s(sT), SH))
        A('v_lshrrev_b32 v3, 4, v2')
        A('v_mul_u32_u24 v3, 20480, v3')
        A('v_and_b32 v4, 15, v2')
        A('v_and_b32 v5, 48, v%d' % vL)
        A('v_add_u32 v4, v4, v5')
        A('v_lshl_add_u32 v3, v4, 4, v3')
        A('v_cmp_gt_u32 vcc, %d, v2' % S)
        A('v_mov_b32 v4, 0x%x' % OOB)
        A('v_cndmask_b32 v3, v4, v3, vcc')
        A('s_add_u32 %s, %s, 0x%x' % (s(sT), s(sLDS), WS_T))
        A('s_add_u32 m0, %s, 1024' % s(sLDS))
        for k in range(5):
            if k == 4:
                A('s_add_u32 %s, %s, 4096' % (s(sT), s(sT)))
                A('s_add_u32 m0, %s, 5120' % s(sLDS))
            A('buffer_load_dwordx4 v3, %s, %s offen offset:%d sc1 lds' % (WS, s(sT), (k % 4) * 1024))
        A('s_add_u32 %s, %s, %s' % (s(sT), s(sOFF), s(sOFF2)))
        A('s_add_u32 %s, %s, 0x%x' % (s(sT), s(sT), WS_H2))
        A('buffer_load_dwordx4 %s, v%d, %s, %s offen sc1' % (v(E, 4), vLIN, WS, s(sT)))
        A('s_waitcnt vmcnt(0)')
    else:
        t3 = tag == 't3'
        flag_off(A, sT, F_XA if t3 else F_X1, 7 if t3 else 5)
        wait_ge(A, bail, SRD_WS, vFL, s(sT), 20 if t3 else 5, '1')
        mark(A, 8, sWIDX)
        A('s_add_u32 %s, %s, %s' % (s(sOFF3), s(sLDS), s(sOFF2)))
        A('s_add_u32 %s, %s, 0x%x' % (s(sT), s(sOFF3), WS_XA if t3 else WS_X1))
        A('s_add_u32 %s, %s, 4096' % (s(sT2), s(sT)))
        for k in range(5):
            A('buffer_load_dwordx4 %s, v%d, %s, %s offen offset:%d sc1'
              % (v(P + 4 * k, 4), vLIN, WS, s(sT if k < 4 else sT2), (k % 4) * 1024))
        A('s_waitcnt vmcnt(0)')
        mark(A, 11, sWIDX)
        unpack(A, X, P, 20)
        if t3:
            layernorm(A, X, T, vW, vR, 0)
            modulate(A, X, MS, MC, P)
            A('s_add_u32 %s, %s, 0x%x' % (s(sT), s(sOFF3), WS_H2))
            A('s_cmp_eq_u32 %s, 0' % s(sSLICE))
            A('s_cselect_b32 %s, %s, 0x%x' % (s(sT), s(sT), OOB))
            A('s_add_u32 %s, %s, 4096' % (s(sT2), s(sT)))
            for k in range(5):
                A('buffer_store_dwordx4 %s, v%d, %s, %s offen offset:%d sc1'
                  % (v(P + 4 * k, 4), vLIN, WS, s(sT if k < 4 else sT2), (k % 4) * 1024))
            unpack(A, X, P, 20)
        layernorm(A, X, T, vW, vR, 0, pack_to=P)
        for k in range(5):
            A('ds_write_b128 v%d, %s offset:%d' % (vH, v(P + 4 * k, 4), k * 1024))
        A('s_waitcnt lgkmcnt(0)')
    A('s_barrier')

    mark(A, 9, sWIDX)

    def rd(c):
        return 'ds_read_b128 %s, v%d offset:%d' % (v(HS + 4 * (c % 3), 4), vLIN, 1024 + c * 1024)
    A(rd(0))
    A(rd(1))
    for c in range(20):
        A('s_waitcnt lgkmcnt(%d)' % (1 if c < 19 else 0))
        for k in range(2 * NP):
            A(mfma(ACC + 4 * k, W + (c * 2 * NP + k) * 4, HS + 4 * (c % 3), c == 0))
            if k == 0 and c + 2 < 20:
                A(rd(c + 2))
    if tag == 't4':
        unpack(A, G, E, 4)
        for r in range(8):
            A(rnd(ACC + r, ACC + r))
        for r in range(0, 8, 2):
            A('v_pk_add_f32 %s, %s, %s' % (v(ACC + r, 2), v(ACC + r, 2), v(G + r, 2)))
    else:
        gelu(A, ACC, 8 * NP, G)
    for k in range(4 * NP):
        A('v_cvt_pk_bf16_f32 v%d, v%d, v%d' % (E + k, ACC + 2 * k, ACC + 2 * k + 1))
    if tag == 't5':
        A('s_mul_i32 %s, %s, %d' % (s(sOFF2), s(sRT), 54 * 1024))
    A('s_add_u32 %s, %s, 0x%x' % (s(sOFF2), s(sOFF2), {'t3': WS_T, 't4': WS_X1, 't5': WS_U}[tag]))
    for p in range(NP):
        A('s_add_u32 %s, %s, %s' % (s(sT), s(sM + 2 if p else sOFF), s(sOFF2)))
        A('buffer_store_dwordx4 %s, v%d, %s, %s offen sc1' % (v(E + 4 * p, 4), vLIN, WS, s(sT)))
    mark(A, 10, sWIDX)
    done_flag(A, *{'t3': (F_T + 32, 5), 't4': (F_X1, 5), 't5': (F_U, 6)}[tag])
    next_tile(A, tag)


ROLES = [(20, 't2', 0), (5, 't3', 0), (7, 't5', 0),
         (20, 't2', 1), (5, 't3', 1), (7, 't5', 1),
         (20, 't2', 2), (5, 't3', 2), (7, 't5', 2),
         (20, 't6', 0), (5, 't3', 3), (5, 't4', 0), (2, 'att', 0),
         (20, 't6', 1), (5, 't4', 1), (7, 'att', 2),
         (23, 'att', 9), (7, 't5', 3)]
COPIES = {'t2': 3, 't3': 4, 't4': 2, 't5': 4, 't6': 2}


def dispatch(A, enabled):
    start = 0
    for i, (n, role, arg) in enumerate(ROLES):
        nxt = A.label('role')
        A('s_cmp_ge_u32 %s, %d' % (s(sWIDX), start + n))
        A('s_cbranch_scc1 %s' % nxt)
        if role in enabled:
            if role == 'att':
                A('s_sub_u32 %s, %s, %d' % (s(sSLICE), s(sWIDX), start - arg))
            else:
                A('s_sub_u32 %s, %s, %d' % (s(sSLICE), s(sWIDX), start))
                A('s_mov_b32 %s, %d' % (s(sCOPY), arg))
                A('s_mov_b32 %s, %d' % (s(sSTEP_RT), COPIES[role]))
            A('s_branch %s' % role)
        else:
            A('s_endpgm')
        A('%s:' % nxt)
        start += n
    A('s_endpgm')


def emit_trailing(A, bail, enabled):
    dispatch(A, enabled)
    if 'att' in enabled:
        attention(A, bail)
    for tag in ('t2', 't6'):
        if tag in enabled:
            ksplit(A, bail, tag)
    for tag in ('t3', 't4', 't5'):
        if tag in enabled:
            nsplit(A, bail, tag)
```

```python
import sys
from common import *
import rec, roles, wk, wk2

NAME = 'adaLN_cond__memory_aug_recurrent_mem_tr__mixer_s_mlp__prompt_kernel'


class Hooks:
    t = rec.AST

    def ready(self, A, bail, need):
        t, a_, b_ = self.t, rec.sOWN, rec.sLATE
        top, ok = A.label('kv'), A.label('kvok')
        A('s_cmp_ge_u32 %s, %s' % (s(rec.sKVOK), s(need)))
        A('s_cbranch_scc1 %s' % ok)
        A('v_lshrrev_b32 v%d, 2, v%d' % (t + 1, rec.vLIN))
        A('%s:' % top)
        A('buffer_load_dword v%d, v%d, %s, %s offen sc1' % (t, t + 1, srd(SRD_WS), s(rec.sFLG)))
        A('s_waitcnt vmcnt(0)')
        A('v_readlane_b32 %s, v%d, 2' % (s(a_), t))
        A('v_readlane_b32 %s, v%d, 4' % (s(b_), t))
        A('s_min_u32 %s, %s, %s' % (s(rec.sKVOK), s(a_), s(b_)))
        A('v_readlane_b32 %s, v%d, 3' % (s(a_), t))
        A('v_readlane_b32 %s, v%d, 5' % (s(b_), t))
        A('s_min_u32 %s, %s, %s' % (s(a_), s(a_), s(b_)))
        A('s_lshl_b32 %s, %s, 1' % (s(rec.sKVOK), s(rec.sKVOK)))
        A('s_lshl_b32 %s, %s, 1' % (s(a_), s(a_)))
        A('s_add_u32 %s, %s, 1' % (s(a_), s(a_)))
        A('s_min_u32 %s, %s, %s' % (s(rec.sKVOK), s(rec.sKVOK), s(a_)))
        A('s_cmp_ge_u32 %s, %s' % (s(rec.sKVOK), s(need)))
        A('s_cbranch_scc1 %s' % ok)
        spin_guard(A, rec.sSPIN, top, bail)
        A('%s:' % ok)

    def rec_wait_start(self, A, bail):
        t = self.t
        roles.confirm(A, bail, t, rec.sSPIN, (rec.sOWN, rec.sLATE))
        A('v_lshrrev_b32 v%d, 4, v%d' % (t + 1, rec.vLIN))
        A('v_and_b32 v%d, 7, v%d' % (t + 1, t + 1))
        A('v_lshlrev_b32 v%d, 5, v%d' % (t + 1, t + 1))
        wk.wait_ge(A, bail, SRD_DBG, t + 1, str(wk.DBG_INIT), 8, '24', t, sp=rec.sSPIN)
        A('s_lshl_b32 %s, %s, 5' % (s(rec.sFLG), s(sHEAD)))
        A('s_add_u32 %s, %s, %d' % (s(rec.sFLG), s(rec.sFLG), WS_FLAG + wk.F_QKV))
        A('s_mov_b32 %s, 0' % s(rec.sKVOK))
        A('s_mov_b32 %s, 1' % s(rec.sT))
        self.ready(A, bail, rec.sT)
        A('s_lshl_b32 %s, %s, 1' % (s(5), s(sHEAD)))
        A('s_add_u32 %s, %s, %s' % (s(5), s(5), s(sTEAM)))
        A('s_lshl_b32 %s, %s, 7' % (s(5), s(5)))
        A('s_add_u32 %s, %s, %d' % (s(5), s(5), WS_FLAG + wk.F_KM))
        A('s_cmp_eq_u32 %s, 3' % s(sWAVE))
        A('s_cselect_b32 %s, %s, 0x%x' % (s(7), s(5), wk.OOB))

    def rec_progress(self, cls):
        if cls == 0:
            return []
        return ['v_mov_b32 v%d, %s' % (rec.vSEL, s(rec.sSTEP)),
                'buffer_store_dword v%d, off, %s, %s sc1' % (rec.vSEL, srd(SRD_WS), s(7))]

    def rec_chores(self, A, bail):
        def fn():
            A('s_lshr_b32 %s, %s, 1' % (s(rec.sT), s(rec.sSTEP)))
            A('s_add_u32 %s, %s, 2' % (s(rec.sT), s(rec.sT)))
            A('s_min_u32 %s, %s, 32' % (s(rec.sT), s(rec.sT)))
            self.ready(A, bail, rec.sT)
        wk.on_wave0(A, fn)

    def rec_signal_last(self, A):
        A('s_barrier')
        wk.on_wave0(A, lambda: wk.signal(A, SRD_WS, s(5), '64', self.t))
        A('s_waitcnt vmcnt(0)')


def generate(path, enabled=('att', 't2', 't3', 't4', 't5', 't6'), stamps=False, name=NAME, force_slow=False):
    A = Asm()
    bail = name + '_exit'
    kernel_entry(A, name, 256)
    mark(A, 0, 2, 256)
    roles.take_ticket(A, 'rec_jump')
    roles.assign_roles(A, bail, 'rec_jump', 'worker')
    A('rec_jump:')
    A('s_branch rec_role')
    A('reassign:')
    A('s_barrier')
    A('v_mbcnt_lo_u32_b32 v0, -1, 0')
    A('v_mbcnt_hi_u32_b32 v0, -1, v0')
    A('s_lshl_b32 s72, %s, 6' % s(sWAVE))
    A('v_add_u32 v0, s72, v0')
    A('s_branch assign')
    kernel_exit(A, name)
    A('worker:')
    A('v_and_b32 v0, 63, v0')
    A('v_lshlrev_b32 v1, 4, v0')
    A('s_mov_b32 %s, 0' % s(wk.sSP))
    mark(A, 0, sWIDX)
    A('s_cmp_lt_u32 %s, 128' % s(sWIDX))
    A('s_cbranch_scc1 h_worker')
    wk.mod_request(A)
    wk.mod_finish(A)
    mark(A, 2, sWIDX)
    wk.init_workspace(A)
    wk.init_done(A)
    A('s_branch do_qkv')
    A('h_worker:')
    wk.h_request(A)
    wk.init_workspace(A)
    wk.init_done(A)
    wk.h_stage(A, bail)
    mark(A, 12, sWIDX)
    A('do_qkv:')
    wk.qkv_stage(A, bail)
    A('s_barrier')
    mark(A, 5, sWIDX)
    wk2.emit_trailing(A, 'bail2', enabled)
    A('bail2:')
    A('s_endpgm')
    A('rec_role:')
    if DIAG['on']:
        A('s_lshl_b32 %s, %s, 5' % (s(sWIDX), s(sTEAM)))
        A('s_add_u32 %s, %s, %s' % (s(sWIDX), s(sWIDX), s(sHEAD)))
        mark(A, 0, sWIDX, 192)
    if force_slow == 1:
        A('s_mov_b32 %s, 0' % s(sFAST))
    rec.emit_rec(A, Hooks(), 'bail2', stamps)
    n = A.pad_hazards()
    pr = A.check_waits([name])
    print('nops added', n, 'wait problems', len(pr), 'instructions', len(A.ins))
    for p in pr[:20]:
        print(p)
    head = open('adaLN_cond__memory_aug_recurrent_mem_tr__mixer_s_mlp__prompt.s.ref').read()
    head = head[:head.index('; Override launch geometry')]
    head += '; @launch grid=(256,1,1) block=(256,1,1) lds=163840\n'
    head += '.amdgcn_target "amdgcn-amd-amdhsa--gfx950"\n.text\n.globl %s\n.type %s,@function\n' % (name, name)
    text = head + A.text() + '.section .rodata,"a"\n.p2align 6\n' + descriptor(name)
    open(path, 'w').write(text)
    print(path, len(text), 'bytes')


if __name__ == '__main__':
    rec.OPT.update(xfirst=1, d_own=20, d_red=16, latei=0, smask=0)
    kw = {}
    for kv in sys.argv[2:]:
        k_, v_ = kv.split('=')
        if k_ == 'enabled':
            kw['enabled'] = tuple(v_.split(','))
        elif k_ == 'diag':
            DIAG['on'] = bool(int(v_))
        elif k_ in ('stamps', 'force_slow'):
            kw[k_] = bool(int(v_))
        else:
            rec.OPT[k_] = wk.OPT[k_] = int(v_)
    generate(sys.argv[1], **kw)
```

```python
from asmlib import Asm, v, a, s, u

S, D, H, DH, M, SEG, NSEG, F = 2048, 640, 32, 128, 8, 32, 64, 1728

WS_BYTES = 268435456
ACT = S * D * 2
WS_FLAG = 0x0
FLAG_BYTES = 0x20000
WS_MOD = 0x20000
WS_STAMP = 0x28000
WS_PART = 0x40000
WS_MEMO = 0x100000
WS_MEMX = 0x1A0000
WS_KM = 0x240000
WS_VM = 0x640000
WS_H = 0xA40000
WS_XA = WS_H + ACT
WS_H2 = WS_XA + ACT
WS_HN = WS_H2 + ACT
WS_T = WS_HN + ACT
WS_X1 = WS_T + ACT
WS_U = 0x1A00000
WS_Q = 0x2200000
WS_K = 0x3200000
WS_V = 0x4200000
WS_O = 0x5200000
assert WS_X1 + ACT <= WS_U and WS_U + S * F * 2 <= WS_Q

PTR = {n: 32 + 2 * i for i, n in enumerate(
    ['x', 'mem0', 'wq', 'wk', 'wv', 'wo', 'seglen', 'bx', 'w1', 'w2', 'w3', 'w4', 'c', 'wmod', 'out', 'dbg', 'ws'])}
NBYTES = {'x': ACT, 'mem0': M * D * 2, 'wq': D * 4096 * 2, 'wk': D * 4096 * 2, 'wv': D * 4096 * 2,
          'wo': D * 4096 * 2, 'w1': D * D * 2, 'w2': D * D * 2, 'w3': D * F * 2, 'w4': D * F * 2,
          'c': D * 2, 'wmod': D * 6 * D * 2, 'out': ACT, 'dbg': 256, 'ws': WS_BYTES}
SRD_WS, SRD_A, SRD_B, SRD_C, SRD_D, SRD_DBG = 8, 12, 16, 20, 24, 28
sWAVE, sTEAM, sHEAD, sFAST, sWIDX = 66, 67, 68, 69, 70
SPIN_LIMIT = 1 << 18
WS_TRACE = 0x6200000
WS_TL = 0x30000
DIAG = {'on': False}


def srd(n):
    return s(n, 4)


def build_srd(A, dst, name):
    p = PTR[name]
    A('s_mov_b32 %s, %s' % (s(dst), s(p)))
    A('s_and_b32 %s, %s, 0xffff' % (s(dst + 1), s(p + 1)))
    A('s_mov_b32 %s, 0x%x' % (s(dst + 2), NBYTES[name]))
    A('s_mov_b32 %s, 0x20000' % s(dst + 3))


def kernel_entry(A, name, nwg):
    A('.p2align 8')
    A('%s:' % name)
    A('s_cmp_ge_u32 s2, %d' % nwg)
    A('s_cbranch_scc1 %s_exit' % name)
    A('s_load_dwordx16 s[32:47], s[0:1], 0')
    A('s_load_dwordx16 s[48:63], s[0:1], 64')
    A('s_load_dwordx2 s[64:65], s[0:1], 128')
    A('v_lshrrev_b32 v1, 6, v0')
    A('s_nop 0')
    A('v_readfirstlane_b32 %s, v1' % s(sWAVE))
    A('s_waitcnt lgkmcnt(0)')
    build_srd(A, SRD_WS, 'ws')
    build_srd(A, SRD_DBG, 'dbg')
    for r in (SRD_A, SRD_B, SRD_C, SRD_D):
        build_srd(A, r, 'ws')


def kernel_exit(A, name):
    A('%s_exit:' % name)
    A('s_endpgm')


def descriptor(name, vgpr=512, accum=256):
    return '\n'.join([
        '.amdhsa_kernel %s' % name,
        '  .amdhsa_next_free_vgpr %d' % vgpr,
        '  .amdhsa_next_free_sgpr 102',
        '  .amdhsa_accum_offset %d' % accum,
        '  .amdhsa_group_segment_fixed_size 0',
        '  .amdhsa_kernarg_size 136',
        '  .amdhsa_user_sgpr_count 2',
        '  .amdhsa_user_sgpr_kernarg_segment_ptr 1',
        '  .amdhsa_system_sgpr_workgroup_id_x 1',
        '  .amdhsa_float_denorm_mode_32 3',
        '.end_amdhsa_kernel', ''])


def spin_guard(A, cnt, back, bail):
    A('s_add_u32 %s, %s, 1' % (s(cnt), s(cnt)))
    A('s_cmp_lt_u32 %s, 0x%x' % (s(cnt), SPIN_LIMIT))
    A('s_cbranch_scc1 %s' % back)
    A('s_branch %s' % bail)


def f2u(x):
    import struct
    return struct.unpack('<I', struct.pack('<f', x))[0]


def mark(A, k, idx_sreg, base=0):
    if not DIAG['on'] or (DIAG['on'] == 2 and not (k == 7 or base == 256)):
        return
    skip = A.label('nomark')
    A('s_cmp_lg_u32 %s, 0' % s(sWAVE))
    A('s_cbranch_scc1 %s' % skip)
    A('s_memrealtime s[46:47]')
    A('s_waitcnt lgkmcnt(0)')
    A('v_mov_b32 v2, s46')
    A('s_lshl_b32 s46, %s, 6' % s(idx_sreg))
    A('s_add_u32 s46, s46, %d' % (WS_TL + base * 64 + 4 * k))
    A('v_mov_b32 v3, 0')
    A('s_mov_b64 exec, 1')
    A('buffer_store_dword v2, v3, %s, s46 offen' % srd(SRD_WS))
    A('s_mov_b64 exec, -1')
    A('%s:' % skip)
```

```python
import math
from common import *
from asmlib import interleave

L_MEMT = 0
L_OX = 0
L_QT = 10240
L_KT = L_QT + 2304
L_TCH = L_KT + 2304
L_KX = 16384
L_WL = L_KX + 16384
L_END = L_WL + 131072
assert L_TCH + 512 <= L_KX and L_END <= 163840

vKXR, vIDX, vAR, vBL, vQW, vQR, vLIN, vOXW, vSEL, vPST, vTCH, vMST, vML4, vML2, vVX, vPUB = range(16)
VX, VXN = 16, 24
ACCV, ACCQ, ACCK = 32, 36, 40
AST = 44
BST = 56
T0 = 72
WREG = 80

sSTEP, sTAG, sSPIN, sMO, sMX, sMOW, sMXW, sKVK, sPUB, sT, sPT0, sPT1, sPT2, sPL, sRED, sOWN, sLATE, sFLG = range(72, 90)
sEXM = 90
sST = 92
sSTAMP = 32
sKVOK, sKXM, sPUBV, sPLP, sKVV, sTOF = 96, 97, 100, 101, 3, 4
sSCL = 98

OPT = {}
SCL = 128 ** -0.5 * math.log2(math.e)


def smf(acc, areg, breg):
    return 'v_smfmac_f32_16x16x64_bf16 %s, %s, %s, %s' % (v(acc, 4), v(areg, 4), u(breg, 8), v(vIDX))


class Rec:
    def __init__(self, A, cls, fast, hooks, stamps=False):
        self.A, self.cls, self.fast, self.hooks, self.stamps = A, cls, fast, hooks, stamps
        self.ntile = 3 if cls == 0 else 2
        klds = (3, 7) if cls == 0 else ()
        self.a_ops = []
        for c in range(10):
            if c in klds:
                self.a_ops.append(('k', c))
            self.a_ops.append(('v', c))
        self.d_ops = [(0, 0), (0, 1), (0, 2), (1, 3)] + ([(2, 0), (2, 1)] if cls == 0 else [])
        self.lds_ops = self.a_ops + self.d_ops
        self.nlds = len(self.lds_ops)
        self.slots = [BST, BST + 8, T0] if cls == 0 else [BST, BST + 8]
        self.d_slots = [VX, AST, T0]
        r = WREG
        self.w, self.wo = {}, {}
        for m in 'qkv':
            for c in range(20):
                if (m, c) not in self.lds_ops:
                    self.w[m, c] = r
                    r += 8
        for t in range(self.ntile):
            for c in range(4):
                if (t, c) not in self.lds_ops:
                    self.wo[t, c] = r
                    r += 8
        assert r == 512
        self.tag = 'rec%d%s' % (cls, 'f' if fast else 's')

    def stamp(self, k, step=40):
        if not self.stamps or not (OPT.get('smask', 0xffff) >> k) & 1:
            return
        A = self.A
        skip = A.label('nostamp')
        A('s_cmp_lg_u32 %s, %d' % (s(sSTEP), step))
        A('s_cbranch_scc1 %s' % skip)
        A('s_memtime %s' % s(sST, 2))
        A('s_waitcnt lgkmcnt(0)')
        A('s_mov_b32 %s, %s' % (s(sSTAMP + k), s(sST)))
        A('%s:' % skip)

    def trace(self, reg):
        if not OPT.get('trace', 0):
            return
        A = self.A
        A('s_memrealtime %s' % s(sST, 2))
        A('s_waitcnt lgkmcnt(0)')
        A('s_mov_b32 m0, %s' % s(sSTEP))
        A('s_nop 0')
        A('v_writelane_b32 v%d, %s, m0' % (reg, s(sST)))

    def load_weights(self):
        A = self.A
        vW, vWo, vSW, vSR, vSO = T0, T0 + 1, T0 + 2, T0 + 3, T0 + 4
        t0, t1 = T0 + 5, T0 + 6
        A('s_lshl_b32 %s, %s, 3' % (s(sT), s(sWAVE)))
        A('v_lshrrev_b32 v%d, 4, v0' % t0)
        A('v_add_u32 v%d, %s, v%d' % (t0, s(sT), t0))
        A('v_and_b32 v%d, 15, v0' % t1)
        A('v_lshlrev_b32 v%d, 13, v%d' % (vW, t0))
        A('v_lshl_add_u32 v%d, v%d, 4, v%d' % (vW, t1, vW))
        A('v_lshrrev_b32 v%d, 2, v0' % t0)
        A('v_and_b32 v%d, 3, v0' % t1)
        A('v_mul_u32_u24 v%d, 1280, v%d' % (vWo, t0))
        A('v_lshl_add_u32 v%d, v%d, 4, v%d' % (vWo, t1, vWo))
        A('s_lshl_b32 %s, %s, 11' % (s(sT), s(sWAVE)))
        A('s_add_u32 %s, %s, %d' % (s(sT), s(sT), L_KX))
        A('v_add_u32 v%d, %s, v%d' % (vSW, s(sT), vLIN))
        A('v_and_b32 v%d, 15, v0' % t0)
        A('v_lshl_add_u32 v%d, v%d, 2, %s' % (t0, t0, s(sT)))
        A('v_and_b32 v%d, 15, v0' % vSR)
        A('s_lshl_b32 %s, %s, 6' % (s(sT), s(sWAVE)))
        A('s_add_u32 %s, %s, %d' % (s(sT), s(sT), L_KX))
        A('v_lshl_add_u32 v%d, v%d, 2, %s' % (vSR, vSR, s(sT)))
        A('v_bfe_u32 v%d, v0, 4, 1' % t1)
        A('v_lshl_add_u32 v%d, v%d, 9, v%d' % (vSR, t1, vSR))
        A('v_lshrrev_b32 v%d, 5, v0' % t1)
        A('v_lshl_add_u32 v%d, v%d, 8, v%d' % (vSR, t1, vSR))
        A('v_lshrrev_b32 v%d, 4, v0' % t1)
        A('v_lshl_add_u32 v%d, v%d, 8, v%d' % (vSO, t1, t0))
        A('s_lshl_b32 %s, %s, 8' % (s(sT), s(sHEAD)))
        A('s_mul_i32 %s, %s, %d' % (s(sOWN), s(sTEAM), 320 * 8192))
        A('s_sub_u32 %s, %d, %s' % (s(sLATE), 320 * 8192, s(sOWN)))
        A('s_add_u32 %s, %s, %s' % (s(sOWN), s(sOWN), s(sT)))
        A('s_add_u32 %s, %s, %s' % (s(sLATE), s(sLATE), s(sT)))

        if self.cls == 0:
            A('s_mul_i32 %s, %s, 3' % (s(sPT0), s(sWAVE)))
        else:
            A('s_lshl_b32 %s, %s, 1' % (s(sPT0), s(sWAVE)))
            A('s_add_u32 %s, %s, 2' % (s(sPT0), s(sPT0)))
        A('s_mul_i32 %s, %s, %d' % (s(sPT1), s(sHEAD), 128 * 1280))
        A('s_mul_i32 %s, %s, 640' % (s(sT), s(sTEAM)))
        A('s_add_u32 %s, %s, %s' % (s(sPT1), s(sPT1), s(sT)))
        A('s_lshl_b32 %s, %s, 6' % (s(sT), s(sPT0)))
        A('s_add_u32 %s, %s, %s' % (s(sPT1), s(sPT1), s(sT)))

        nt = ' nt' if OPT.get('nt', 0) else ''

        def request(op, dst):
            for h in range(2):
                if op[0] in ('q', 'k', 'v'):
                    c = op[1]
                    A('s_add_u32 %s, %s, 0x%x' % (s(sT), s(sOWN if c < 10 else sLATE), (32 * (c % 10) + 4 * h) * 8192))
                    A('buffer_load_dwordx4 %s, v%d, %s, %s offen%s'
                      % (u(dst + 4 * h, 4), vW, srd({'q': SRD_A, 'k': SRD_B, 'v': SRD_C}[op[0]]), s(sT), nt))
                else:
                    A('s_add_u32 %s, %s, %d' % (s(sT), s(sPT1), (32 * op[1] + 16 * h) * 1280 + 64 * op[0]))
                    A('buffer_load_dwordx4 %s, v%d, %s, %s offen%s' % (u(dst + 4 * h, 4), vWo, srd(SRD_D), s(sT), nt))

        def arrange(i, op, dst):
            shared = op[0] in ('q', 'k', 'v')
            base = (i % 2) * 8192 if shared else 0
            for h in range(2):
                A('ds_write_b128 v%d, %s offset:%d' % (vSW, u(dst + 4 * h, 4), base + h * 1024))
            if shared:
                A('s_waitcnt lgkmcnt(0)')
                A('s_barrier')
            for k in range(4):
                if shared:
                    o = base // 256 + 8 * k
                    A('ds_read2st64_b32 %s, v%d offset0:%d offset1:%d' % (u(dst + 2 * k, 2), vSR, o, o + 4))
                else:
                    A('ds_read2_b32 %s, v%d offset0:%d offset1:%d'
                      % (u(dst + 2 * k, 2), vSO if k < 2 else t0, 32 * (k & 1), 32 * (k & 1) + 16))
        A('v_add_u32 v%d, 1024, v%d' % (t0, vSO))
        first = [('v', c) for c in range(10)] + [('k', 3), ('k', 7)]
        rest = [(m, c) for c in range(20) for m in 'qkv' if (m, c) not in first]
        todo = [(op, self.w.get(op, self.w[rest[-12 + i]])) for i, op in enumerate(first)]
        todo += [(op, self.w[op]) for op in rest]
        todo += [(op, VX + 8 * i) for i, op in enumerate(self.d_ops)] + list(self.wo.items())
        issued, DEPTH = 0, 28
        for i, (op, r) in enumerate(todo):
            while issued < min(len(todo), i + DEPTH):
                request(*todo[issued])
                issued += 1
            A('s_waitcnt vmcnt(%d)' % (2 * (issued - i - 1)))
            if i == 60:
                A('s_waitcnt lgkmcnt(0)')
                A('s_barrier')
            arrange(i, op, r)
            if op in self.lds_ops:
                k = self.lds_ops.index(op)
                A('s_waitcnt lgkmcnt(0)')
                A('ds_write_b128 v%d, %s offset:%d' % (vBL, u(r, 4), k * 2048))
                A('ds_write_b128 v%d, %s offset:%d' % (vBL, u(r + 4, 4), k * 2048 + 1024))
            elif i >= 60:
                A('s_waitcnt lgkmcnt(6)')
        A('s_waitcnt lgkmcnt(0)')
        A('s_barrier')
        A('v_add_u32 v%d, %d, v%d' % (vKXR, L_KX, vLIN))
        A('s_mul_i32 %s, %s, %d' % (s(sT), s(sTEAM), 40 * 4096))
        A('s_lshl_b32 %s, %s, 14' % (s(sPT0), s(sPT0)))
        A('s_add_u32 %s, %s, %s' % (s(sPT0), s(sPT0), s(sT)))
        A('s_lshl_b32 %s, %s, 7' % (s(sT), s(sHEAD)))
        A('s_add_u32 %s, %s, %s' % (s(sPT0), s(sPT0), s(sT)))
        A('s_add_u32 %s, %s, 0x%x' % (s(sPT0), s(sPT0), WS_PART))
        A('s_add_u32 %s, %s, 0x4000' % (s(sPT1), s(sPT0)))
        A('s_add_u32 %s, %s, 0x8000' % (s(sPT2), s(sPT0)))

    def a_read(self, c, r):
        return 'ds_read_b128 %s, v%d offset:%d' % (v(r, 4), vAR, L_MEMT + c * 512)

    def w_reads(self, i, r):
        return ['ds_read_b128 %s, v%d offset:%d' % (v(r, 4), vBL, i * 2048),
                'ds_read_b128 %s, v%d offset:%d' % (v(r + 4, 4), vBL, i * 2048 + 1024)]

    def b_reads(self, i):
        return self.w_reads(i, self.slots[i % len(self.slots)]) if i < len(self.a_ops) else []

    def d_reads(self, i):
        return self.w_reads(len(self.a_ops) + i, self.d_slots[i % 3]) if i < len(self.d_ops) else []

    def b_first(self):
        for i in range(len(self.slots)):
            for x in self.b_reads(i):
                self.A(x)

    def mem_issue(self, soff, R):
        A = self.A
        A('buffer_load_dwordx4 %s, v%d, %s, %s offen sc1' % (v(R[0], 4), vML4, srd(SRD_WS), s(soff)))
        A('buffer_load_dwordx4 %s, v%d, %s, %s offen offset:1024 sc1' % (v(R[1], 4), vML4, srd(SRD_WS), s(soff)))
        A('buffer_load_dwordx2 %s, v%d, %s, %s offen sc1' % (v(R[2], 2), vML2, srd(SRD_WS), s(soff)))

    def mem_check(self, R):
        A, t, w = self.A, VXN + 6, VXN + 7
        x = [R[0] + i for i in range(4)] + [R[1] + i for i in range(4)] + [R[2], R[2] + 1]
        A('v_max3_u32 v%d, v%d, v%d, v%d' % (t, x[0], x[1], x[2]))
        A('v_max3_u32 v%d, v%d, v%d, v%d' % (w, x[3], x[4], x[5]))
        A('v_max3_u32 v%d, v%d, v%d, v%d' % (t, t, x[6], x[7]))
        A('v_max3_u32 v%d, v%d, v%d, v%d' % (w, w, x[8], x[9]))
        A('v_max_u32 v%d, v%d, v%d' % (t, t, w))
        A('v_cmp_eq_u32 vcc, -1, v%d' % t)

    def mem_write(self, R, lds_off):
        A = self.A
        A('ds_write_b128 v%d, %s offset:%d' % (vML4, v(R[0], 4), lds_off))
        A('ds_write_b128 v%d, %s offset:%d' % (vML4, v(R[1], 4), lds_off + 1024))
        A('ds_write_b64 v%d, %s offset:%d' % (vML2, v(R[2], 2), lds_off))

    OWN = (AST, AST + 4, AST + 8)
    LATE = (T0, T0 + 4, VXN)

    def retry_loop(self, name, issue, nloads, check, finish, back):
        def body(bail):
            A = self.A
            loop = A.label(name + '_loop')
            depth = OPT.get('depth', 2)
            A('s_mov_b64 exec, vcc')
            for _ in range(depth - 1):
                issue()
            A('%s:' % loop)
            A('s_mov_b64 exec, vcc')
            issue()
            A('s_mov_b64 exec, -1')
            A('s_waitcnt vmcnt(%d) ; racy-ok' % (nloads * (depth - 1)))
            check()
            done = A.label(name + '_done')
            A('s_cbranch_vccz %s' % done)
            spin_guard(A, sSPIN, loop, bail)
            A('%s:' % done)
            finish()
            A('s_branch %s' % back)
        return body

    def warm(self, n):
        for _ in range(n):
            self.A('v_mov_b32 v%d, v%d' % (vIDX, vIDX))
            self.A('s_nop 1')

    def poll_own(self):
        A = self.A
        top, retry = A.label('own'), A.label('own_retry')
        self.warm(OPT.get('d_own', 0))
        self.mem_issue(sMO, self.OWN)
        self.warm(OPT.get('d_own2', 0))
        A('s_waitcnt vmcnt(0)')
        self.mem_check(self.OWN)
        A('s_cbranch_vccnz %s' % retry)
        self.mem_write(self.OWN, L_MEMT)
        A('%s:' % top)
        self.cold.append((retry, self.retry_loop(
            'own', lambda: self.mem_issue(sMO, self.OWN), 3, lambda: self.mem_check(self.OWN),
            lambda: (self.mem_write(self.OWN, L_MEMT), A('s_waitcnt vmcnt(0)')), top)))
        if OPT.get('latei', 0) == -1:
            self.mem_issue(sMX, self.LATE)
        A('s_waitcnt lgkmcnt(0)')

    def take_late(self):
        A = self.A
        top, retry = A.label('late'), A.label('late_retry')
        A('s_waitcnt vmcnt(0)')
        self.mem_check(self.LATE)
        A('s_cbranch_vccnz %s' % retry)
        self.mem_write(self.LATE, L_MEMT + 5120)
        A('%s:' % top)
        self.cold.append((retry, self.retry_loop(
            'late', lambda: self.mem_issue(sMX, self.LATE), 3, lambda: self.mem_check(self.LATE),
            lambda: (self.mem_write(self.LATE, L_MEMT + 5120), A('s_waitcnt vmcnt(0)')), top)))

    def phase_a1(self):
        A = self.A
        ns = len(self.slots)
        q = [('b', i) for i in range(ns) for _ in range(2)]

        def issue(x, tagc):
            A(x)
            q.append(tagc)

        def need(tagc):
            if tagc in q:
                k = max(i for i, x in enumerate(q) if x == tagc)
                A('s_waitcnt lgkmcnt(%d)' % (len(q) - 1 - k))
                del q[:k + 1]
        for c in range(2):
            issue(self.a_read(c, AST + 4 * c), ('a', c))
        later = []
        for c in range(10):
            ar = AST + 4 * (c % 3)
            need(('a', c))
            for m, acc in (('q', ACCQ), ('k', ACCK), ('v', ACCV)):
                reload = []
                if (m, c) in self.w:
                    A(smf(acc, ar, self.w[m, c]))
                else:
                    i = self.lds_ops.index((m, c))
                    need(('b', i))
                    A(smf(acc, ar, self.slots[i % ns]))
                    reload = [(x, ('b', i + ns)) for x in self.b_reads(i + ns)]
                if m == 'q' and c + 2 < 10:
                    later.insert(0, (self.a_read(c + 2, AST + 4 * ((c + 2) % 3)), ('a', c + 2)))
                for x in later[:2]:
                    issue(*x)
                later = later[2:] + reload
            if c == OPT.get('latei', 0) and self.cls == 1:
                self.mem_issue(sMX, self.LATE)
            if c == OPT.get('latec', 8) and self.cls == 1:
                self.stamp(3)
                self.take_late()
                q += [None] * 3

    def prefetch(self):
        ws = srd(SRD_WS)
        x = ['buffer_load_dwordx4 %s, v%d, %s, %s offen offset:%d sc1' % (v(VXN + 4 * i, 4), vVX, ws, s(sKVV), i * 1024)
             for i in range(2)]
        x.append('s_mov_b32 m0, %s' % s(sKXM))
        x += ['buffer_load_dwordx4 v%d, %s, %s offen offset:%d sc1 lds' % (vVX, ws, s(sKVK), i * 1024) for i in range(2)]
        if self.cls == 0:
            x.append('s_mov_b32 m0, %d' % L_TCH)
            x.append('buffer_load_dword v%d, %s, %s offen sc1 lds' % (vTCH, ws, s(sTOF)))
        return x + (self.hooks.rec_progress(self.cls) or [])

    def kx_read(self, c):
        kx = BST + 8 * (c % 2)
        return ['ds_read_b128 %s, v%d offset:%d' % (v(kx, 4), vKXR, c * 1024),
                'ds_read_b128 %s, v%d offset:%d' % (v(kx + 4, 4), vKXR, (4 + c) * 1024)]

    def phase_a2(self):
        A = self.A
        ar = {10 + i: r for i, r in enumerate(list(range(AST, BST + 16, 4)) + [T0, T0 + 4])}
        ar[19] = ar[10]
        for c in range(10, 13):
            A(self.a_read(c, ar[c]))
        fill = [self.a_read(c, ar[c]) for c in range(13, 20)] + self.prefetch()
        waits = {10: 2, 11: 2, 12: 2, 13: 2, 14: 2, 15: 1, 17: 0}
        for c in range(10, 20):
            if c in waits:
                A('s_waitcnt lgkmcnt(%d)' % waits[c])
            elif fill:
                A(fill.pop(0))
            if c == 10:
                A(smf(ACCV, ar[c], self.w['v', c]))
                A(fill.pop(0))
            A(smf(ACCQ, ar[c], self.w['q', c]))
            if fill:
                A(fill.pop(0))
            A(smf(ACCK, ar[c], self.w['k', c]))
        for x in fill:
            A(x)
        vs = [smf(ACCV, ar[c], self.w['v', c]) for c in (13, 14, 15, 16, 11, 12, 17, 18, 19)]
        for x in vs[:3]:
            A(x)
        for acc, off in ((ACCQ, 0), (ACCK, 2304)):
            A('v_cvt_pk_bf16_f32 v%d, v%d, v%d' % (acc, acc, acc + 1))
            A('v_cvt_pk_bf16_f32 v%d, v%d, v%d' % (acc + 1, acc + 2, acc + 3))
            A('ds_write_b64 v%d, %s offset:%d' % (vQW, v(acc, 2), off))
        fill = [None, None] + self.kx_read(0) + self.kx_read(1)
        for x, y in zip(vs[3:], fill):
            A(x)
            if y:
                A(y)
        A('s_waitcnt lgkmcnt(4)')
        A('s_barrier')

    def publish(self, reg, soff):
        self.A('buffer_store_dwordx2 %s, v%d, %s, %s offen sc1' % (v(reg, 2), vPUB, srd(SRD_WS), s(soff)))

    def phase_s(self):
        A = self.A
        SX0, SX1, SM = ACCQ, ACCK, T0
        qk = [(AST, AST + 4), (AST + 8, T0 + 4)]

        def rd(c):
            q, k = qk[c % 2]
            return ['ds_read_b64_tr_b16 %s, v%d offset:%d' % (v(q, 2), vQR, c * 576),
                    'ds_read_b64_tr_b16 %s, v%d offset:%d' % (v(q + 2, 2), vQR, c * 576 + 32),
                    'ds_read_b64_tr_b16 %s, v%d offset:%d' % (v(k, 2), vQR, 2304 + c * 576),
                    'ds_read_b64_tr_b16 %s, v%d offset:%d' % (v(k + 2, 2), vQR, 2304 + c * 576 + 32)]
        for x in rd(0) + rd(1):
            A(x)
        self.publish(ACCK, sPUB)
        A('v_cvt_pk_bf16_f32 v%d, v%d, v%d' % (ACCV, ACCV, ACCV + 1))
        A('v_cvt_pk_bf16_f32 v%d, v%d, v%d' % (ACCV + 1, ACCV + 2, ACCV + 3))

        def mm(c, i):
            q, k = qk[c % 2]
            kx = BST + 8 * (c % 2)
            acc, areg = ((SX0, kx), (SX1, kx + 4), (SM, k))[i]
            A('v_mfma_f32_16x16x32_bf16 %s, %s, %s, %s' % (v(acc, 4), v(areg, 4), v(q, 4), v(acc, 4) if c else '0'))
        A('s_waitcnt lgkmcnt(4)')
        for i in range(3):
            mm(0, i)
        A('s_waitcnt lgkmcnt(0)')
        nxt = rd(2) + self.kx_read(2)
        for i in range(3):
            mm(1, i)
            A(nxt[2 * i])
            A(nxt[2 * i + 1])
        nxt = rd(3) + self.kx_read(3)
        for x in nxt[:2]:
            A(x)
        A('s_waitcnt lgkmcnt(2)')
        mm(2, 0)
        A(nxt[2])
        A(nxt[3])
        mm(2, 1)
        A(nxt[4])
        A(nxt[5])
        mm(2, 2)
        self.publish(ACCV, sPUBV)
        A('s_waitcnt lgkmcnt(0)')
        mm(3, 2)
        A('v_xor_b32 v%d, 0x%x, v%d' % (vKXR, L_KX ^ (L_KX + 8192), vKXR))
        mm(3, 0)
        mm(3, 1)

    def softmax_pv(self):
        A = self.A
        X, Y, SM = ACCQ, ACCK, T0
        t, w = T0 + 4, T0 + 5
        P, PL, PH = Y, SM + 2, T0 + 6
        O0, O1, L, ONE, VM = AST + 4, BST + 8, AST + 8, AST, ACCV
        idm = 'quad_perm:[0,1,2,3]'
        full = 'row_mask:0xf bank_mask:0xf'
        for r in range(4):
            A('v_mov_b32 v%d, 0x3f803f80' % (ONE + r))
        A('v_mov_b64 %s, 0' % v(PH, 2))
        for r in range(2):
            A('v_mov_b32_dpp v%d, v%d %s row_mask:0xf bank_mask:0xc' % (SM + r, SM + 2 + r, idm))
        for r in range(4):
            A('v_mov_b32_dpp v%d, v%d %s row_mask:0xf bank_mask:0xc' % (X + r, Y + r, idm))
        A('v_max3_f32 v%d, v%d, v%d, v%d' % (t, SM, SM + 1, X))
        A('v_max3_f32 v%d, v%d, v%d, v%d' % (w, X + 1, X + 2, X + 3))
        A('v_max_f32 v%d, v%d, v%d' % (t, t, w))
        A('v_mov_b64 %s, 0' % v(PL, 2))
        A('v_max_f32_dpp v%d, v%d, v%d row_ror:8 %s' % (t, t, t, full))
        for sw in ('v_permlane16_swap_b32', 'v_permlane32_swap_b32'):
            A('v_mov_b32 v%d, v%d' % (w, t))
            A('%s v%d, v%d' % (sw, t, w))
            A('v_max_f32 v%d, v%d, v%d' % (t, t, w))
        A('v_mul_f32 v%d, 0x%x, v%d' % (t, f2u(-SCL), t))
        for r in (X, X + 2, SM):
            A('v_pk_fma_f32 %s, %s, %s, %s op_sel_hi:[1,0,0]' % (v(r, 2), v(r, 2), s(sSCL, 2), v(t, 2)))
        for r in (X, X + 1, X + 2, X + 3, SM, SM + 1):
            A('v_exp_f32 v%d, v%d' % (r, r))
        A('v_cvt_pk_bf16_f32 v%d, v%d, v%d' % (P, X, X + 1))
        A('v_cvt_pk_bf16_f32 v%d, v%d, v%d' % (P + 1, X + 2, X + 3))
        A('v_cvt_pk_bf16_f32 v%d, v%d, v%d' % (t, SM, SM + 1))
        A('v_mov_b32_dpp v%d, v%d row_ror:8 %s' % (P + 2, P, full))
        A('v_mov_b32_dpp v%d, v%d row_ror:8 %s' % (P + 3, P + 1, full))
        A('v_mov_b32_dpp v%d, v%d %s row_mask:0x3 bank_mask:0xf' % (PL, t, idm))
        A('v_mov_b32_dpp v%d, v%d row_ror:8 row_mask:0x3 bank_mask:0xf' % (PL + 1, t))
        A('v_mfma_f32_16x16x32_bf16 %s, %s, %s, 0' % (v(L, 4), v(ONE, 4), v(P, 4)))
        A('v_mov_b32_dpp v%d, v%d %s row_mask:0xc bank_mask:0xf' % (PH, t, idm))
        A('v_mov_b32_dpp v%d, v%d row_ror:8 row_mask:0xc bank_mask:0xf' % (PH + 1, t))
        A('v_mfma_f32_16x16x32_bf16 %s, %s, %s, 0' % (v(O0, 4), v(VX, 4), v(P, 4)))
        A('v_mov_b64 %s, 0' % v(X, 2))
        A('v_mov_b64 %s, 0' % v(X + 2, 2))
        A('v_mfma_f32_16x16x32_bf16 %s, %s, %s, 0' % (v(O1, 4), v(VX + 4, 4), v(P, 4)))
        A('v_mfma_f32_16x16x16_bf16 %s, %s, %s, %s' % (v(L, 4), v(ONE, 2), v(PL, 2), v(L, 4)))
        if self.ntile == 3:
            A('v_mov_b64 %s, 0' % v(Y, 2))
            A('v_mov_b64 %s, 0' % v(Y + 2, 2))
        A('v_mfma_f32_16x16x16_bf16 %s, %s, %s, %s' % (v(O0, 4), v(VM, 2), v(PL, 2), v(O0, 4)))
        A('v_mfma_f32_16x16x16_bf16 %s, %s, %s, %s' % (v(O1, 4), v(VM, 2), v(PH, 2), v(O1, 4)))
        A('v_mov_b64 %s, 0' % v(ACCV, 2))
        A('v_mov_b64 %s, 0' % v(ACCV + 2, 2))
        A('v_rcp_f32 v%d, v%d' % (t, L))
        for r in (O0, O0 + 2, O1, O1 + 2):
            A('v_pk_mul_f32 %s, %s, %s op_sel_hi:[1,0]' % (v(r, 2), v(r, 2), v(t, 2)))
        for r in range(4):
            A('v_cvt_pk_bf16_f32 v%d, v%d, v%d' % (T0 + r, O0 + r, O1 + r))
        A('ds_write_b128 v%d, %s' % (vOXW, v(T0, 4)))
        for i in range(3):
            for x in self.d_reads(i):
                A(x)
        A('s_waitcnt lgkmcnt(6)')
        A('s_barrier')

    def phase_d(self):
        A = self.A
        for c in range(4):
            A('ds_read_b128 %s, v%d offset:%d' % (v(BST + 4 * c, 4), vAR, L_OX + c * 512))
        flav = '' if self.fast else ' sc1'

        def put(t):
            r = ACCV + 4 * t
            A('v_cvt_pk_bf16_f32 v%d, v%d, v%d' % (r, r, r + 1))
            A('v_cvt_pk_bf16_f32 v%d, v%d, v%d' % (r + 1, r + 2, r + 3))
            A('buffer_store_dwordx2 %s, v%d, %s, %s offen%s' % (v(r, 2), vPST, srd(SRD_WS), s(sPT0 + t), flav))
        q, later = ['a0', 'a1', 'a2', 'a3'], []

        def need(x):
            if x in q:
                k = max(i for i, y in enumerate(q) if y == x)
                A('s_waitcnt lgkmcnt(%d)' % (len(q) - 1 - k))
                del q[:k + 1]
        for t in range(self.ntile):
            for c in range(4):
                need('a%d' % c)
                reload = []
                if (t, c) in self.wo:
                    A(smf(ACCV + 4 * t, BST + 4 * c, self.wo[t, c]))
                else:
                    i = self.d_ops.index((t, c))
                    need(i)
                    A(smf(ACCV + 4 * t, BST + 4 * c, self.d_slots[i % 3]))
                    reload = [(x, i + 3) for x in self.d_reads(i + 3)]
                for x, tg in later[:1]:
                    A(x)
                    q.append(tg)
                later = later[1:] + reload
            if t == 2:
                put(0)
        for t in range(1 if self.ntile == 3 else 0, self.ntile):
            put(t)

    def reduce(self):
        A = self.A
        top, retry = A.label('red'), A.label('red_retry')
        R, SEL, Z, t = BST, AST, AST + 4, AST + 8
        A('v_mov_b64 %s, 0' % v(SEL, 2))
        A('v_mov_b64 %s, 0' % v(SEL + 2, 2))
        for r in range(4):
            A('v_mov_b32_dpp v%d, v%d quad_perm:[0,1,2,3] row_mask:0xf bank_mask:0x%x' % (SEL + r, vSEL, 1 << r))
        def issue():
            for i in range(4):
                A('buffer_load_dwordx4 %s, v%d, %s, %s offen offset:%d sc1'
                  % (v(R + 4 * i, 4), vLIN, srd(SRD_WS), s(sPL), i * 1024))

        def prod(i):
            A('v_mfma_f32_16x16x32_bf16 %s, %s, %s, %s' % (v(Z, 4), v(R + 4 * i, 4), v(SEL, 4), v(Z, 4) if i else '0'))

        def scan(i):
            x = R + 4 * i
            if i == 0:
                A('v_max3_u32 v%d, v%d, v%d, v%d' % (t, x, x + 1, x + 2))
                A('v_max_u32 v%d, v%d, v%d' % (t, t, x + 3))
            else:
                A('v_max3_u32 v%d, v%d, v%d, v%d' % (t, t, x, x + 1))
                A('v_max3_u32 v%d, v%d, v%d, v%d' % (t, t, x + 2, x + 3))
            if i == 3:
                A('v_cmp_eq_u32 vcc, -1, v%d' % t)
        self.warm(OPT.get('d_red', 0))
        if OPT.get('redwait', 0) >= 0:
            A('s_waitcnt vmcnt(%d)' % OPT.get('redwait', 0))
        issue()
        self.warm(OPT.get('d_red2', 0))
        for i in range(4):
            A('s_waitcnt vmcnt(%d)' % (3 - i))
            prod(i)
            scan(i)
        A('s_cbranch_vccnz %s' % retry)
        A('%s:' % top)
        self.cold.append((retry, self.retry_loop(
            'red', issue, 4, lambda: [scan(i) for i in range(4)], lambda: [prod(i) for i in range(4)], top)))
        A('v_permlane32_swap_b32 v%d, v%d' % (Z, Z + 2))
        A('v_permlane32_swap_b32 v%d, v%d' % (Z + 1, Z + 3))
        A('v_pk_add_f32 %s, %s, %s' % (v(Z, 2), v(Z, 2), v(Z + 2, 2)))
        A('v_cvt_pk_bf16_f32 v%d, v%d, v%d' % (t, Z, Z + 1))
        A('s_mov_b64 exec, %s' % s(sEXM, 2))
        own = 'buffer_store_dword v%d, v%d, %s, %s offen%s' % (t, vMST, srd(SRD_WS), s(sMOW), '' if self.fast else ' sc1')
        other = 'buffer_store_dword v%d, v%d, %s, %s offen sc1' % (t, vMST, srd(SRD_WS), s(sMXW))
        for x in ((own, other) if OPT.get('ownfirst', 0) else (other, own)):
            A(x)
        A('s_mov_b64 exec, -1')
        if OPT.get('ownwait', 0):
            A('s_waitcnt vmcnt(1)')

    def repoison(self):
        A = self.A
        A('v_mov_b64 %s, -1' % v(T0, 2))
        A('v_mov_b64 %s, -1' % v(T0 + 2, 2))
        for i in range(4):
            A('buffer_store_dwordx4 %s, v%d, %s, %s offen offset:%d%s'
              % (v(T0, 4), vLIN, srd(SRD_WS), s(sPLP), i * 1024, '' if self.fast else ' sc1'))

    def advance(self, first=False):
        A = self.A
        for r in range(0, 8, 2):
            A('v_mov_b64 %s, %s' % (v(VX + r, 2), v(VXN + r, 2)))
        for r in range(0, 12, 2):
            A('v_mov_b64 %s, 0' % v(ACCV + r, 2))
        A('s_xor_b32 %s, %s, 0x%x' % (s(sKXM), s(sKXM), 8192))
        for r in (sKVK, sKVV):
            A('s_add_u32 %s, %s, 0x%x' % (s(r), s(r), 32 * 8192))
        if not first:
            A('s_add_u32 %s, %s, 1' % (s(sSTEP), s(sSTEP)))
            A('s_mov_b32 %s, %s' % (s(sPLP), s(sPL)))
            for r in (sPT0, sPT1, sPT2, sPL):
                A('s_add_u32 %s, %s, %s' % (s(r), s(r), s(sTAG)))
            A('s_sub_u32 %s, 0, %s' % (s(sTAG), s(sTAG)))
            for r in (sMO, sMX, sMOW, sMXW):
                A('s_add_u32 %s, %s, 5120' % (s(r), s(r)))
            A('s_add_u32 %s, %s, 0x%x' % (s(sPUB), s(sPUB), 32 * 2048))
            A('s_add_u32 %s, %s, 0x%x' % (s(sPUBV), s(sPUBV), 32 * 2048))
        A('s_add_u32 %s, %s, 5120' % (s(sTOF), s(sMOW)))

    def prologue(self, bail):
        A = self.A
        A('rec_load%d:' % self.cls)
        self.load_weights()
        if DIAG['on']:
            A('s_waitcnt vmcnt(0)')
            A('s_memrealtime %s' % s(sST, 2))
            A('s_waitcnt lgkmcnt(0)')
        self.hooks.rec_wait_start(A, bail)
        if DIAG['on']:
            A('s_mov_b32 %s, %s' % (s(sSTAMP + 14), s(sST)))
        for x in self.prefetch()[:5]:
            A(x)
        A('s_waitcnt vmcnt(0)')
        self.advance(first=True)
        A('s_barrier')
        if self.cls == 1:
            R = self.LATE
            A('ds_read_b128 %s, v%d offset:%d' % (v(R[0], 4), vML4, L_MEMT + 5120))
            A('ds_read_b128 %s, v%d offset:%d' % (v(R[1], 4), vML4, L_MEMT + 6144))
            A('ds_read_b64 %s, v%d offset:%d' % (v(R[2], 2), vML2, L_MEMT + 5120))
            A('s_waitcnt lgkmcnt(0)')
            for r in list(range(R[0], R[0] + 8)) + [R[2], R[2] + 1]:
                A('v_min_u32 v%d, -2, v%d' % (r, r))
            A('buffer_store_dwordx4 %s, v%d, %s, %s offen sc1' % (v(R[0], 4), vML4, srd(SRD_WS), s(sMX)))
            A('buffer_store_dwordx4 %s, v%d, %s, %s offen offset:1024 sc1' % (v(R[1], 4), vML4, srd(SRD_WS), s(sMX)))
            A('buffer_store_dwordx2 %s, v%d, %s, %s offen sc1' % (v(R[2], 2), vML2, srd(SRD_WS), s(sMX)))
            A('s_waitcnt vmcnt(0)')
        if self.stamps:
            A('s_memrealtime %s' % s(sST, 2))
            A('s_memtime %s' % s(sST + 2, 2))
            A('s_waitcnt lgkmcnt(0)')
            A('s_mov_b32 %s, %s' % (s(sSTAMP + 10), s(sST)))
            A('s_mov_b32 %s, %s' % (s(sSTAMP + 11), s(sST + 2)))
            A('s_mov_b32 %s, 0' % s(sSTAMP + 15))
        self.b_first()
        A('s_cmp_lg_u32 %s, 0' % s(sFAST))
        A('s_cbranch_scc1 rec%df_a1' % self.cls)
        A('s_branch rec%ds_a1' % self.cls)

    def emit(self, bail):
        A = self.A
        self.cold = []
        tag = self.tag
        A('%s_step:' % tag)
        if self.cls == 0:
            self.advance()
            A('s_waitcnt vmcnt(2)')
            self.b_first()
            if OPT.get('parklate', 1):
                A('s_barrier')
                self.hooks.rec_chores(A, bail)
        else:
            A('s_barrier')
            if OPT.get('advlate', 1):
                self.advance()
                self.b_first()
            if OPT.get('sigearly', 4):
                usual = A.label('usual')
                A('s_cmp_lt_u32 %s, %d' % (s(sSTEP), NSEG - OPT.get('sigearly', 4)))
                A('s_cbranch_scc1 %s' % usual)
                for x in self.hooks.rec_progress(1) or []:
                    A(x)
                A('%s:' % usual)
            self.stamp(8, 41)
        if self.cls == 1:
            self.poll_own()
        if self.cls == 1:
            self.trace(vMST)
        self.stamp(0, 41)
        A('s_barrier')
        self.stamp(14, 41)
        A('%s_a1:' % tag)
        self.stamp(1)
        self.phase_a1()
        if self.cls == 0:
            self.stamp(3)
            if not OPT.get('rp1', 0):
                self.repoison()
        A('s_waitcnt lgkmcnt(0)')
        if self.cls == 1:
            self.trace(vTCH)
        A('s_barrier')
        self.stamp(2)
        self.phase_a2()
        self.stamp(4)
        self.phase_s()
        A('s_cmp_eq_u32 %s, %d' % (s(sSTEP), NSEG - 1))
        A('s_cbranch_scc1 %s_last' % tag)
        self.stamp(5)
        self.softmax_pv()
        self.stamp(6)
        self.phase_d()
        self.trace(vML4 if self.cls == 0 else vSEL)
        self.stamp(7)
        if self.cls == 1:
            A('s_waitcnt vmcnt(2)')
            if not OPT.get('advlate', 1):
                self.advance()
                self.b_first()
            A('s_branch %s_step' % tag)
        else:
            idle = A.label('idle')
            A('s_cmp_ge_u32 %s, 40' % s(sRED))
            A('s_cbranch_scc1 %s' % idle)
            self.reduce()
            self.trace(vML2)
            self.stamp(8)
            if not OPT.get('parklate', 1):
                A('s_barrier')
                self.hooks.rec_chores(A, bail)
            A('s_branch %s_step' % tag)
            A('%s:' % idle)
            A('s_waitcnt vmcnt(2)')
            if not OPT.get('parklate', 1):
                A('s_barrier')
            A('s_branch %s_step' % tag)

        A('%s_last:' % tag)
        A('s_waitcnt vmcnt(0)')
        self.hooks.rec_signal_last(A)
        if self.stamps:
            A('s_memrealtime %s' % s(sST, 2))
            A('s_memtime %s' % s(sST + 2, 2))
            A('s_waitcnt lgkmcnt(0)')
            A('s_mov_b32 %s, %s' % (s(sSTAMP + 12), s(sST)))
            A('s_mov_b32 %s, %s' % (s(sSTAMP + 13), s(sST + 2)))
            A('s_mov_b32 %s, %s' % (s(sSTAMP + 9), s(sSPIN)))
            for k in range(16):
                A('v_writelane_b32 v%d, %s, %d' % (T0 + 1, s(sSTAMP + k), k))
            A('s_lshl_b32 %s, %s, 5' % (s(sT), s(sTEAM)))
            A('s_add_u32 %s, %s, %s' % (s(sT), s(sT), s(sHEAD)))
            A('s_lshl_b32 %s, %s, 2' % (s(sT), s(sT)))
            A('s_add_u32 %s, %s, %s' % (s(sT), s(sT), s(sWAVE)))
            A('s_lshl_b32 %s, %s, 7' % (s(sT), s(sT)))
            A('s_add_u32 %s, %s, 0x%x' % (s(sT), s(sT), WS_STAMP))
            A('v_lshrrev_b32 v%d, 2, v%d' % (T0, vLIN))
            if OPT.get('trace', 0):
                A('s_sub_u32 %s, %s, 0x%x' % (s(sOWN), s(sT), WS_STAMP))
                A('s_lshl_b32 %s, %s, 3' % (s(sOWN), s(sOWN)))
                A('s_add_u32 %s, %s, 0x%x' % (s(sOWN), s(sOWN), WS_TRACE))
                for k, r in enumerate((vML4, vML2, vML2) if self.cls == 0 else (vMST, vTCH, vSEL)):
                    A('buffer_store_dword v%d, v%d, %s, %s offen offset:%d' % (r, T0, srd(SRD_WS), s(sOWN), k * 256))
            A('s_mov_b32 exec_hi, 0')
            A('buffer_store_dword v%d, v%d, %s, %s offen' % (T0 + 1, T0, srd(SRD_WS), s(sT)))
            A('s_waitcnt vmcnt(0)')
            A('s_mov_b64 exec, -1')
        self.hooks.rec_done(A)
        A('s_endpgm')
        for name, body in self.cold:
            A('%s:' % name)
            body(bail)


def rec_setup(A):
    build_srd(A, SRD_A, 'mem0')
    t0, t1, t2, t3 = T0, T0 + 1, T0 + 2, T0 + 3
    A('v_and_b32 v%d, 7, v0' % t0)
    A('v_lshrrev_b32 v%d, 3, v0' % t1)
    A('v_lshrrev_b32 v%d, 3, v%d' % (t2, t1))
    A('v_lshl_add_u32 v%d, v%d, 3, v%d' % (t2, t2, t0))
    A('v_and_b32 v1, 7, v%d' % t1)
    A('v_lshlrev_b32 v%d, 4, v%d' % (t2, t2))
    A('v_lshl_add_u32 v%d, v1, 1, v%d' % (t2, t2))
    A('v_and_b32 v%d, 16, v%d' % (t3, t1))
    A('v_and_b32 v1, 3, v%d' % t1)
    A('v_lshl_add_u32 v%d, v1, 2, v%d' % (t3, t3))
    A('v_bfe_u32 v1, v%d, 2, 1' % t1)
    A('v_lshl_add_u32 v%d, v1, 1, v%d' % (t3, t3))
    A('v_bfe_u32 v1, v%d, 3, 1' % t1)
    A('v_add_u32 v%d, v1, v%d' % (t3, t3))
    A('v_mul_u32_u24 v%d, 640, v%d' % (t0, t0))
    A('v_add_lshl_u32 v%d, v%d, v%d, 1' % (t0, t0, t3))
    A('s_mul_i32 %s, %s, 640' % (s(sOWN), s(sTEAM)))
    A('s_sub_u32 %s, 640, %s' % (s(sLATE), s(sOWN)))
    for T in range(20):
        A('buffer_load_ushort v%d, v%d, %s, %s offen offset:%d'
          % (32 + T, t0, srd(SRD_A), s(sOWN if T < 10 else sLATE), (T % 10) * 64))
    for T in range(20):
        A('s_waitcnt vmcnt(%d)' % (19 - T))
        A('ds_write_b16 v%d, v%d offset:%d' % (t2, 32 + T, L_MEMT + T * 512))
    for r, n in ((SRD_A, 'wq'), (SRD_B, 'wk'), (SRD_C, 'wv'), (SRD_D, 'wo')):
        build_srd(A, r, n)
    A('v_and_b32 v0, 63, v0')
    n, g, tt, aa = T0, T0 + 1, T0 + 2, T0 + 3
    w = s(sWAVE)
    A('v_and_b32 v%d, 15, v0' % n)
    A('v_lshrrev_b32 v%d, 4, v0' % g)
    A('v_bfe_u32 v%d, v0, 2, 2' % tt)
    A('v_and_b32 v%d, 1, v0' % aa)
    A('v_bfe_u32 v%d, v0, 3, 1' % vIDX)
    A('v_mul_u32_u24 v%d, 0x5555, v%d' % (vIDX, vIDX))
    A('v_add_u32 v%d, 0x8888, v%d' % (vIDX, vIDX))
    A('v_lshlrev_b32 v%d, 4, v0' % vLIN)
    A('v_and_b32 v%d, 7, v0' % vAR)
    A('v_lshl_add_u32 v%d, v%d, 3, v%d' % (vAR, g, vAR))
    A('v_lshlrev_b32 v%d, 4, v%d' % (vAR, vAR))
    A('s_mul_i32 %s, %s, %d' % (s(sT), w, 18 * 2048))
    A('s_mul_i32 %s, %s, %d' % (s(sOWN), w, 14 * 2048))
    A('s_add_u32 %s, %s, %d' % (s(sOWN), s(sOWN), 8 * 2048))
    A('s_cmp_lt_u32 %s, 2' % w)
    A('s_cselect_b32 %s, %s, %s' % (s(sT), s(sT), s(sOWN)))
    A('s_add_u32 %s, %s, %d' % (s(sT), s(sT), L_WL))
    A('v_add_u32 v%d, %s, v%d' % (vBL, s(sT), vLIN))
    A('v_lshrrev_b32 v%d, 1, v%d' % (vQW, g))
    A('v_mul_u32_u24 v%d, 288, v%d' % (vQW, vQW))
    A('v_lshl_add_u32 v%d, v%d, 4, v%d' % (vQW, n, vQW))
    A('v_and_b32 v%d, 1, v%d' % (T0 + 4, g))
    A('v_lshl_add_u32 v%d, v%d, 3, v%d' % (vQW, T0 + 4, vQW))
    A('s_mul_i32 %s, %s, 576' % (s(sT), w))
    A('s_add_u32 %s, %s, %d' % (s(sT), s(sT), L_QT))
    A('v_add_u32 v%d, %s, v%d' % (vQW, s(sT), vQW))
    A('v_and_b32 v%d, 1, v%d' % (vQR, tt))
    A('v_mul_u32_u24 v%d, 288, v%d' % (vQR, vQR))
    A('v_lshrrev_b32 v%d, 1, v%d' % (T0 + 5, tt))
    A('v_lshl_add_u32 v%d, v%d, 2, v%d' % (T0 + 5, g, T0 + 5))
    A('v_lshl_add_u32 v%d, v%d, 4, v%d' % (vQR, T0 + 5, vQR))
    A('v_lshl_add_u32 v%d, v%d, 3, v%d' % (vQR, aa, vQR))
    A('v_add_u32 v%d, %d, v%d' % (vQR, L_QT, vQR))
    A('s_lshl_b32 %s, %s, 9' % (s(sT), w))
    A('s_add_u32 %s, %s, %d' % (s(sT), s(sT), L_OX))
    A('v_bfe_u32 v%d, v0, 3, 1' % vOXW)
    A('v_lshl_add_u32 v%d, v%d, 11, v%d' % (vOXW, vOXW, vAR))
    A('v_add_u32 v%d, %s, v%d' % (vOXW, s(sT), vOXW))
    A('v_lshlrev_b32 v%d, 4, v%d' % (vSEL, aa))
    A('v_mov_b32 v%d, 0x3f80' % (T0 + 5))
    A('v_lshlrev_b32 v%d, v%d, v%d' % (vSEL, vSEL, T0 + 5))
    A('v_lshrrev_b32 v%d, 3, v%d' % (vPST, n))
    A('v_lshrrev_b32 v%d, 1, v%d' % (T0 + 5, g))
    A('v_lshl_add_u32 v%d, v%d, 1, v%d' % (vPST, vPST, T0 + 5))
    A('v_lshlrev_b32 v%d, 12, v%d' % (vPST, vPST))
    A('v_lshl_add_u32 v%d, v%d, 6, v%d' % (vPST, T0 + 4, vPST))
    A('v_and_b32 v%d, 7, v0' % (T0 + 5))
    A('v_lshl_add_u32 v%d, v%d, 3, v%d' % (vPST, T0 + 5, vPST))
    A('v_min_u32 v%d, 39, v0' % vTCH)
    A('v_lshlrev_b32 v%d, 7, v%d' % (vTCH, vTCH))
    A('s_and_b32 %s, %s, 1' % (s(sRED), w))
    A('s_lshl_b32 %s, %s, 5' % (s(sRED), s(sRED)))
    A('s_add_u32 %s, %s, %s' % (s(sRED), s(sRED), s(sHEAD)))
    A('s_mul_i32 %s, %s, 40' % (s(sPL), s(sTEAM)))
    A('s_add_u32 %s, %s, %s' % (s(sPL), s(sPL), s(sRED)))
    A('s_lshl_b32 %s, %s, 12' % (s(sPL), s(sPL)))
    A('s_add_u32 %s, %s, 0x%x' % (s(sPL), s(sPL), WS_PART))
    A('s_cmp_lt_u32 %s, 40' % s(sRED))
    A('s_cselect_b32 %s, %s, 0x40000000' % (s(sPL), s(sPL)))
    A('s_mov_b32 %s, 0x40000000' % s(sPLP))
    A('v_bfe_u32 v%d, v0, 2, 1' % (T0 + 5))
    A('v_lshl_add_u32 v%d, v%d, 1, v%d' % (vMST, T0 + 4, T0 + 5))
    A('v_lshl_add_u32 v%d, v%d, 1, v%d' % (vMST, vMST, aa))
    A('v_bfe_u32 v%d, v0, 3, 1' % (T0 + 5))
    A('v_lshl_add_u32 v%d, v%d, 1, v%d' % (vMST, vMST, T0 + 5))
    A('v_lshrrev_b32 v%d, 5, v0' % (T0 + 5))
    A('v_lshl_add_u32 v%d, v%d, 1, v%d' % (vMST, vMST, T0 + 5))
    A('s_lshl_b32 %s, %s, 7' % (s(sT), s(sRED)))
    A('v_lshl_add_u32 v%d, v%d, 2, %s' % (vMST, vMST, s(sT)))
    A('s_mov_b32 %s, 0x33333333' % s(sEXM))
    A('s_mov_b32 %s, 0x33333333' % s(sEXM + 1))
    A('s_and_b32 %s, %s, 1' % (s(sT), w))
    A('s_mul_i32 %s, %s, 2560' % (s(sT), s(sT)))
    A('v_add_u32 v%d, %s, v%d' % (vML4, s(sT), vLIN))
    A('s_add_u32 %s, %s, 2048' % (s(sT), s(sT)))
    A('v_lshl_add_u32 v%d, v0, 3, %s' % (vML2, s(sT)))
    A('s_lshl_b32 %s, %s, 11' % (s(sT), w))
    A('v_add_u32 v%d, %s, v%d' % (vVX, s(sT), vLIN))
    A('s_add_u32 %s, %s, %d' % (s(sKXM), s(sT), L_KX))
    A('s_lshl_b32 %s, %s, 9' % (s(sT), w))
    A('v_lshl_add_u32 v%d, v0, 3, %s' % (vPUB, s(sT)))
    A('s_mov_b32 %s, 0x%x' % (s(sSCL), f2u(SCL)))
    A('s_mov_b32 %s, 0x%x' % (s(sSCL + 1), f2u(SCL)))
    A('s_mov_b32 %s, 0' % s(sSTEP))
    A('s_mov_b32 %s, %d' % (s(sTAG), 80 * 4096))
    A('s_mov_b32 %s, 0' % s(sSPIN))
    A('s_mul_i32 %s, %s, %d' % (s(sMO), s(sTEAM), 64 * 5120))
    A('s_sub_u32 %s, %d, %s' % (s(sMXW), WS_MEMX + 65 * 5120, s(sMO)))
    A('s_cmp_lt_u32 %s, 40' % s(sRED))
    A('s_cselect_b32 %s, %s, 0x40000000' % (s(sMXW), s(sMXW)))
    A('s_add_u32 %s, %s, 0x%x' % (s(sMX), s(sMO), WS_MEMX))
    A('s_add_u32 %s, %s, 0x%x' % (s(sMO), s(sMO), WS_MEMO))
    A('s_add_u32 %s, %s, 5120' % (s(sMOW), s(sMO)))
    A('s_lshl_b32 %s, %s, 13' % (s(sKVK), s(sHEAD)))
    A('s_add_u32 %s, %s, 0x%x' % (s(sKVV), s(sKVK), WS_V))
    A('s_add_u32 %s, %s, 0x%x' % (s(sKVK), s(sKVK), WS_K))
    A('s_lshl_b32 %s, %s, 11' % (s(sT), s(sHEAD)))
    A('s_add_u32 %s, %s, 0x%x' % (s(sPUB), s(sT), WS_KM))
    A('s_add_u32 %s, %s, 0x%x' % (s(sPUBV), s(sT), WS_VM))
    A('s_cmp_eq_u32 %s, 0' % s(sTEAM))
    A('s_cselect_b32 %s, %s, 0x40000000' % (s(sPUB), s(sPUB)))
    A('s_cselect_b32 %s, 0x40000000, %s' % (s(sPUBV), s(sPUBV)))
    A('s_waitcnt lgkmcnt(0)')


def emit_rec(A, hooks, bail, stamps=False):
    rec_setup(A)
    A('s_cmp_ge_u32 %s, 2' % s(sWAVE))
    A('s_cbranch_scc1 rec_load1')
    for cls in (0, 1):
        Rec(A, cls, True, hooks, stamps).prologue(bail)
        for fast in (True, False):
            Rec(A, cls, fast, hooks, stamps).emit(bail)
```

```python
import math
from common import *

F_H = 0
F_QKV = 128
F_KM = 384
F_O = 448
F_XA = 576
F_T = 640
F_X1 = 672
F_U = 692
F_NEAR = 727
F_END = 728 * 128
DBG_INIT = 4

sSP, sT, sT2, sT3, sI, sOFF, sOFF2, sOFF3, sCOPY, sSLICE, sRT, sFL = range(72, 84)
sPRE = 6
sM = 84
vL, vLIN, vT = 0, 1, 2

OOB = 0x40000000
OPT = {}
WS = srd(SRD_WS)


def mfma(acc, x, y, first=False):
    return 'v_mfma_f32_16x16x32_bf16 %s, %s, %s, %s' % (v(acc, 4), u(x, 4), u(y, 4), '0' if first else v(acc, 4))


def rnd(d, x):
    return 'v_cvt_pk_bf16_f32 v%d, 0, v%d' % (d, x)


def unpack(A, dst, src, n):
    for i in reversed(range(n)):
        A('v_and_b32 v%d, 0xffff0000, v%d' % (dst + 2 * i + 1, src + i))
        A('v_lshlrev_b32 v%d, 16, v%d' % (dst + 2 * i, src + i))


def wait_ge(A, bail, srd_n, voff, soff, nlanes, need, tmp=vT, sleep=1, sp=sSP, first=None):
    top, ok, test = A.label('wait'), A.label('ready'), A.label('test')
    if first:
        A('buffer_load_dword v%d, v%d, %s, %s offen sc1' % (tmp, voff, srd(srd_n), soff))
        A('s_waitcnt vmcnt(0)')
        first()
        A('s_branch %s' % test)
    A('%s:' % top)
    A('buffer_load_dword v%d, v%d, %s, %s offen sc1' % (tmp, voff, srd(srd_n), soff))
    A('s_waitcnt vmcnt(0)')
    A('%s:' % test)
    A('v_cmp_gt_u32 vcc, %s, v%d' % (need, tmp))
    if nlanes < 64:
        A('s_and_b32 vcc_lo, vcc_lo, 0x%x' % ((1 << min(nlanes, 32)) - 1))
        A('s_and_b32 vcc_hi, vcc_hi, 0x%x' % ((1 << max(nlanes - 32, 0)) - 1))
    A('s_cmp_eq_u64 vcc, 0')
    A('s_cbranch_scc1 %s' % ok)
    if sleep:
        A('s_sleep %d' % sleep)
    spin_guard(A, sp, top, bail)
    A('%s:' % ok)


def signal(A, srd_n, soff, val, tmp=vT):
    A('v_mov_b32 v%d, %s' % (tmp, val))
    A('v_mov_b32 v%d, 0' % (tmp + 1))
    A('s_mov_b64 exec, 1')
    A('buffer_store_dword v%d, v%d, %s, %s offen sc1' % (tmp, tmp + 1, srd(srd_n), soff))
    A('s_mov_b64 exec, -1')


def on_wave0(A, fn):
    skip = A.label('notw0')
    A('s_cmp_lg_u32 %s, 0' % s(sWAVE))
    A('s_cbranch_scc1 %s' % skip)
    fn()
    A('%s:' % skip)


def wait_init(A, bail, tmp=vT):
    A('v_and_b32 v%d, 7, v%d' % (tmp + 1, vL))
    A('v_lshlrev_b32 v%d, 5, v%d' % (tmp + 1, tmp + 1))
    wait_ge(A, bail, SRD_DBG, tmp + 1, str(DBG_INIT), 8, '24', tmp, sleep=6)


def until_written(A, bail, request, regs, tmp):
    top, ok = A.label('poll'), A.label('written')
    A('%s:' % top)
    request()
    A('s_waitcnt vmcnt(0)')
    A('v_max_u32 v%d, v%d, v%d' % (tmp, regs[0], regs[1]))
    for i in range(2, len(regs), 2):
        A('v_max3_u32 v%d, v%d, v%d, v%d' % (tmp, tmp, regs[i], regs[i + 1]))
    A('v_cmp_eq_u32 vcc, -1, v%d' % tmp)
    A('s_cbranch_vccz %s' % ok)
    A('s_sleep 6')
    spin_guard(A, sSP, top, bail)
    A('%s:' % ok)


def load_mod80(A, bail, MS, MC, ws_, wc):
    until_written(A, bail, lambda: (load_mod40(A, MS, ws_, 3), load_mod40(A, MC, wc, 3)),
                  list(range(MS, MS + 40)) + list(range(MC, MC + 40)), 2)


def xor_reduce(A, x, tmp, op):
    for sw in ('v_permlane16_swap_b32', 'v_permlane32_swap_b32'):
        A('v_mov_b32 v%d, v%d' % (tmp, x))
        A('%s v%d, v%d' % (sw, x, tmp))
        A('%s v%d, v%d, v%d' % (op, x, x, tmp))


def row_sum(A, X, n, acc, vW, vR, lds, square_from=None):
    if square_from is None:
        A('v_pk_add_f32 %s, %s, %s' % (v(acc, 2), v(X, 2), v(X + 2, 2)))
        for i in range(4, n, 2):
            A('v_pk_add_f32 %s, %s, %s' % (v(acc, 2), v(acc, 2), v(X + i, 2)))
    else:
        d = acc + 2
        for i in range(0, n, 2):
            A('v_pk_add_f32 %s, %s, %s op_sel_hi:[1,0] neg_lo:[0,1] neg_hi:[0,1]' % (v(d, 2), v(X + i, 2), v(square_from, 2)))
            if i == 0:
                A('v_pk_mul_f32 %s, %s, %s' % (v(acc, 2), v(d, 2), v(d, 2)))
            else:
                A('v_pk_fma_f32 %s, %s, %s, %s' % (v(acc, 2), v(d, 2), v(d, 2), v(acc, 2)))
    A('v_add_f32 v%d, v%d, v%d' % (acc, acc, acc + 1))
    xor_reduce(A, acc, acc + 1, 'v_add_f32')
    A('ds_write_b32 v%d, v%d offset:%d' % (vW, acc, lds))
    A('s_waitcnt lgkmcnt(0)')
    A('s_barrier')
    A('ds_read_b128 %s, v%d offset:%d' % (v(acc, 4), vR, lds))
    A('s_waitcnt lgkmcnt(0)')
    A('v_pk_add_f32 %s, %s, %s' % (v(acc, 2), v(acc, 2), v(acc + 2, 2)))
    A('v_add_f32 v%d, v%d, v%d' % (acc, acc, acc + 1))
    A('v_mul_f32 v%d, 0x%x, v%d' % (acc, f2u(1.0 / D), acc))


def layernorm(A, X, T, vW, vR, lds, pack_to=None):
    mean, acc = T, T + 2
    row_sum(A, X, 40, acc, vW, vR, lds)
    A('v_mov_b32 v%d, v%d' % (mean, acc))
    row_sum(A, X, 40, acc, vW, vR, lds + 256, square_from=mean)
    A(rnd(acc, acc))
    A('v_add_f32 v%d, 0x%x, v%d' % (acc, f2u(1e-5), acc))
    A(rnd(acc, acc))
    A('v_sqrt_f32 v%d, v%d' % (acc, acc))
    A(rnd(mean, mean))
    A(rnd(acc, acc))
    A('v_rcp_f32 v%d, v%d' % (acc, acc))
    for i in range(0, 40, 2):
        A('v_pk_add_f32 %s, %s, %s op_sel_hi:[1,0] neg_lo:[0,1] neg_hi:[0,1]' % (v(X + i, 2), v(X + i, 2), v(mean, 2)))
    for i in range(40):
        A(rnd(X + i, X + i))
    for i in range(0, 40, 2):
        A('v_pk_mul_f32 %s, %s, %s op_sel_hi:[1,0]' % (v(X + i, 2), v(X + i, 2), v(acc, 2)))
    if pack_to is None:
        for i in range(40):
            A(rnd(X + i, X + i))
    else:
        for i in range(20):
            A('v_cvt_pk_bf16_f32 v%d, v%d, v%d' % (pack_to + i, X + 2 * i, X + 2 * i + 1))


def modulate(A, X, MS, MC, P):
    for i in range(0, 40, 2):
        A('v_pk_mul_f32 %s, %s, %s' % (v(X + i, 2), v(X + i, 2), v(MC + i, 2)))
    for i in range(40):
        A(rnd(X + i, X + i))
    for i in range(0, 40, 2):
        A('v_pk_add_f32 %s, %s, %s' % (v(X + i, 2), v(X + i, 2), v(MS + i, 2)))
    for i in range(20):
        A('v_cvt_pk_bf16_f32 v%d, v%d, v%d' % (P + i, X + 2 * i, X + 2 * i + 1))


def ln_addresses(A, vW, vR):
    A('v_and_b32 v%d, 15, v%d' % (vR, vL))
    A('v_lshlrev_b32 v%d, 4, v%d' % (vR, vR))
    A('s_lshl_b32 %s, %s, 2' % (s(sT), s(sWAVE)))
    A('v_add_u32 v%d, %s, v%d' % (vW, s(sT), vR))


def load_mod40(A, dst, which, tmp):
    A('v_lshrrev_b32 v%d, 4, v%d' % (tmp, vL))
    A('v_lshlrev_b32 v%d, 5, v%d' % (tmp, tmp))
    A('s_mul_i32 %s, %s, 640' % (s(sT), s(sWAVE)))
    A('s_add_u32 %s, %s, 0x%x' % (s(sT), s(sT), WS_MOD + which * D * 4))
    for k in range(10):
        A('buffer_load_dwordx4 %s, v%d, %s, %s offen offset:%d sc1'
          % (v(dst + 4 * k, 4), tmp, WS, s(sT), (k >> 1) * 128 + (k & 1) * 16))


def gelu(A, X, n, t0):
    k0 = math.sqrt(2.0 / math.pi) * -2.0 * math.log2(math.e)
    A('s_mov_b32 %s, 0x%x' % (s(sM), f2u(k0 * 0.044715)))
    A('v_mov_b32 v%d, 0x%x' % (t0 + n, f2u(k0)))
    for i in range(n):
        A(rnd(X + i, X + i))
    for i in range(n):
        A('v_mul_f32 v%d, v%d, v%d' % (t0 + i, X + i, X + i))
    for i in range(n):
        A('v_fma_f32 v%d, v%d, %s, v%d' % (t0 + i, t0 + i, s(sM), t0 + n))
    for i in range(n):
        A('v_mul_f32 v%d, v%d, v%d' % (t0 + i, t0 + i, X + i))
    for i in range(n):
        A('v_exp_f32 v%d, v%d' % (t0 + i, t0 + i))
    for i in range(n):
        A('v_add_f32 v%d, 1.0, v%d' % (t0 + i, t0 + i))
    for i in range(n):
        A('v_rcp_f32 v%d, v%d' % (t0 + i, t0 + i))
    for i in range(n):
        A('v_mul_f32 v%d, v%d, v%d' % (X + i, X + i, t0 + i))


def stage_wide(A, srd_n, stride, scol, split, R=16, between=None):
    vG, vS = vT + 4, vT + 5
    A('s_lshl_b32 %s, %s, 2' % (s(sT), s(sWAVE)))
    A('v_lshrrev_b32 v%d, 4, v%d' % (vS, vL))
    A('v_add_u32 v%d, %s, v%d' % (vT + 2, s(sT), vS))
    A('v_and_b32 v%d, 15, v%d' % (vT + 3, vL))
    A('s_mov_b32 %s, %d' % (s(sT), stride))
    A('v_mul_lo_u32 v%d, v%d, %s' % (vG, vT + 2, s(sT)))
    A('v_lshl_add_u32 v%d, v%d, 4, v%d' % (vG, vT + 3, vG))
    A('v_lshlrev_b32 v%d, 2, v%d' % (vS, vS))
    A('v_xor_b32 v%d, v%d, v%d' % (vS, vS, vT + 3))
    A('v_lshlrev_b32 v%d, 4, v%d' % (vS, vS))
    A('v_lshl_add_u32 v%d, v%d, 8, v%d' % (vS, vT + 2, vS))
    for i in range(40):
        A('s_add_u32 %s, %s, %d' % (s(sT), s(scol), i * 16 * stride))
        A('buffer_load_dwordx4 %s, v%d, %s, %s offen' % (u(R + 4 * i, 4), vG, srd(srd_n), s(sT)))
    if between:
        between()
    if split:
        A('s_mov_b32 %s, 0x05040100' % s(sT))
        A('s_mov_b32 %s, 0x07060302' % s(sT2))
    for i in range(40):
        r = R + 4 * i
        A('s_waitcnt vmcnt(%d)' % (39 - i))
        src = r
        if split:
            src = 8 + 4 * (i % 2)
            A('v_perm_b32 v%d, v%d, v%d, %s' % (src, r + 1, r, s(sT)))
            A('v_perm_b32 v%d, v%d, v%d, %s' % (src + 1, r + 3, r + 2, s(sT)))
            A('v_perm_b32 v%d, v%d, v%d, %s' % (src + 2, r + 1, r, s(sT2)))
            A('v_perm_b32 v%d, v%d, v%d, %s' % (src + 3, r + 3, r + 2, s(sT2)))
        A('ds_write_b128 v%d, %s offset:%d' % (vS, u(src, 4), (i % 16) * 4096))
        if i % 16 == 15:
            A('v_add_u32 v%d, 0x10000, v%d' % (vS, vS))
    A('s_waitcnt lgkmcnt(0)')
    A('s_barrier')


def read_wide(A, spair, dst):
    vB = vT
    A('v_bfe_u32 v%d, v%d, 2, 2' % (vT + 1, vL))
    A('v_lshrrev_b32 v%d, 4, v%d' % (vB, vL))
    A('v_lshl_add_u32 v%d, v%d, 3, v%d' % (vB, vB, vT + 1))
    A('v_lshlrev_b32 v%d, 8, v%d' % (vB, vB))
    A('v_xor_b32 v%d, %s, v%d' % (vT + 1, s(spair), vT + 1))
    A('v_lshl_add_u32 v%d, v%d, 6, v%d' % (vB, vT + 1, vB))
    A('v_and_b32 v%d, 3, v%d' % (vT + 1, vL))
    A('v_lshl_add_u32 v%d, v%d, 4, v%d' % (vB, vT + 1, vB))
    for c in range(20):
        for b in range(2):
            for h in range(2):
                A('ds_read_b64_tr_b16 %s, v%d offset:%d' % (u(dst(c, b) + 2 * h, 2), vB, (c % 8) * 8192 + h * 1024 + b * 8))
        if c % 8 == 7:
            A('v_add_u32 v%d, 0x10000, v%d' % (vB, vB))
        if c % 3 == 2:
            A('s_waitcnt lgkmcnt(0)')
    A('s_waitcnt lgkmcnt(0)')


def init_workspace(A):
    n16 = (WS_KM - WS_PART + 16 * 192 * 256 - 1) // (16 * 192 * 256)
    A('s_mul_i32 %s, %s, %d' % (s(sT), s(sWIDX), n16 * 4096))
    A('s_lshl_b32 %s, %s, 10' % (s(sT2), s(sWAVE)))
    A('s_add_u32 %s, %s, %s' % (s(sT), s(sT), s(sT2)))
    A('s_add_u32 %s, %s, 0x%x' % (s(sT), s(sT), WS_PART))
    for r in range(4):
        A('v_mov_b32 v%d, -1' % (12 + r))
        A('v_mov_b32 v%d, 0' % (8 + r))
    for i in range(n16):
        A('s_cmp_lt_u32 %s, 0x%x' % (s(sT), WS_KM))
        A('s_cselect_b32 %s, %s, 0x%x' % (s(sT3), s(sT), OOB))
        A('buffer_store_dwordx4 v[12:15], v%d, %s, %s offen sc1' % (vLIN, WS, s(sT3)))
        A('s_add_u32 %s, %s, 4096' % (s(sT), s(sT)))
    A('s_lshl_b32 %s, %s, 12' % (s(sT), s(sWIDX)))
    A('s_add_u32 %s, %s, %s' % (s(sT), s(sT), s(sT2)))
    A('s_cmp_lt_u32 %s, 0x%x' % (s(sT), F_END))
    A('s_cselect_b32 %s, %s, 0x%x' % (s(sT3), s(sT), OOB))
    A('buffer_store_dwordx4 v[8:11], v%d, %s, %s offen sc1' % (vLIN, WS, s(sT3)))
    A('s_sub_u32 %s, %s, 0x%x' % (s(sT3), s(sT), WS_MOD))
    A('s_cmp_lt_u32 %s, 0x%x' % (s(sT3), 6 * D * 4))
    A('s_cselect_b32 %s, %s, 0x%x' % (s(sT3), s(sT), OOB))
    A('buffer_store_dwordx4 v[12:15], v%d, %s, %s offen sc1' % (vLIN, WS, s(sT3)))


def init_done(A, younger):
    def fn():
        A('s_and_b32 %s, %s, 7' % (s(sT), s(sWIDX)))
        A('s_lshl_b32 %s, %s, 5' % (s(sT), s(sT)))
        A('s_add_u32 %s, %s, %d' % (s(sT), s(sT), DBG_INIT))
        A('v_mov_b32 v2, 1')
        A('v_mov_b32 v3, 0')
        A('s_mov_b64 exec, 1')
        A('buffer_atomic_add v2, v3, %s, %s offen' % (srd(SRD_DBG), s(sT)))
        A('s_mov_b64 exec, -1')
    A('s_waitcnt vmcnt(%d)' % younger)
    A('s_barrier')
    on_wave0(A, fn)
    A('s_waitcnt vmcnt(0)')


MODW = 96


def mod_request(A):
    build_srd(A, SRD_A, 'wmod')
    build_srd(A, SRD_B, 'c')
    A('v_lshrrev_b32 v4, 3, v%d' % vL)
    A('v_mul_u32_u24 v4, 7680, v4')
    A('v_and_b32 v5, 7, v%d' % vL)
    A('v_lshl_add_u32 v4, v5, 4, v4')
    A('s_lshl_b32 %s, %s, 7' % (s(sOFF), s(sPRE)))
    A('s_mul_i32 %s, %s, %d' % (s(sT), s(sWAVE), 160 * 7680))
    A('s_add_u32 %s, %s, %s' % (s(sOFF), s(sOFF), s(sT)))
    A('s_cmp_lt_u32 %s, 60' % s(sPRE))
    A('s_cselect_b32 %s, %s, 0x%x' % (s(sOFF), s(sOFF), OOB))
    A('s_lshl_b32 %s, %s, 7' % (s(sT), s(sWAVE)))
    A('v_lshl_add_u32 v19, v%d, 1, %s' % (vL, s(sT)))
    for k in range(3):
        A('buffer_load_ushort v%d, v19, %s, 0 offen offset:%d' % (16 + k, srd(SRD_B), k * 512))
    for i in range(20):
        A('s_add_u32 %s, %s, %d' % (s(sT), s(sOFF), 8 * i * 7680))
        A('buffer_load_dwordx4 %s, v4, %s, %s offen%s'
          % (v(MODW + 4 * i, 4), srd(SRD_A), s(sT), ' nt' if OPT.get('modnt', 0) else ''))


def mod_finish(A, bail):
    W, AC, AO = MODW, 24, 12
    A('v_and_b32 v2, 15, v%d' % vL)
    A('v_lshrrev_b32 v3, 4, v%d' % vL)
    A('s_lshl_b32 %s, %s, 12' % (s(sT), s(sWAVE)))
    A('s_add_u32 %s, %s, 2048' % (s(sT), s(sT)))
    A('v_add_u32 v90, %s, v%d' % (s(sT), vLIN))
    A('v_lshl_add_u32 v91, v2, 2, %s' % s(sT))
    A('v_lshl_add_u32 v91, v3, 9, v91')
    A('v_add_u32 v92, 2048, v91')
    for k in range(3):
        x, t = 16 + k, 20 + k
        A('v_lshlrev_b32 v%d, 16, v%d' % (x, x))
        A('v_mul_f32 v%d, 0x%x, v%d' % (t, f2u(-math.log2(math.e)), x))
        A('v_exp_f32 v%d, v%d' % (t, t))
        A('v_add_f32 v%d, 1.0, v%d' % (t, t))
        A('v_rcp_f32 v%d, v%d' % (t, t))
        A('v_mul_f32 v%d, v%d, v%d' % (x, x, t))
        A('v_cvt_pk_bf16_f32 v%d, v%d, v%d' % (x, x, x))
        A('ds_write_b16 v19, v%d offset:%d' % (x, k * 512))
    A('v_bfe_u32 v6, v%d, 3, 1' % vL)
    A('v_mul_u32_u24 v6, 0x5555, v6')
    A('v_add_u32 v6, 0x8888, v6')
    A('s_mul_i32 %s, %s, 320' % (s(sT), s(sWAVE)))
    A('v_lshl_add_u32 v7, v3, 4, %s' % s(sT))
    A('v_lshrrev_b32 v3, 1, v3')
    A('v_lshl_add_u32 v2, v2, 1, v3')
    A('v_lshlrev_b32 v93, 2, v2')
    A('s_lshl_b32 %s, %s, 2' % (s(sT), s(sWAVE)))
    A('v_add_u32 v94, %s, v%d' % (s(sT), vLIN))
    for r in range(0, 8, 2):
        A('v_mov_b64 %s, 0' % v(AC + r, 2))
    A('s_waitcnt lgkmcnt(0)')
    A('s_barrier')
    for c in range(5):
        r = W + 16 * c
        for h in range(4):
            A('ds_write_b128 v90, %s offset:%d' % (v(r + 4 * h, 4), h * 1024))
        for p in range(2):
            for k in range(4):
                o = 64 * (k & 1) + 16 * p
                A('ds_read2_b32 %s, v%d offset0:%d offset1:%d' % (v(r + 8 * p + 2 * k, 2), 91 + (k >> 1), o, o + 32))
        A('ds_read_b128 %s, v7 offset:%d' % (v(AO, 4), c * 64))
        A('s_waitcnt lgkmcnt(0)')
        for p in range(2):
            A('v_smfmac_f32_16x16x64_bf16 %s, %s, %s, v6' % (v(AC + 4 * p, 4), v(AO, 4), v(r + 8 * p, 8)))
    for p in range(2):
        A('ds_write_b32 v94, v%d offset:%d' % (AC + 4 * p, 20480 + 1024 * p))
    A('s_waitcnt lgkmcnt(0)')
    A('s_barrier')
    skip = A.label('modskip')
    A('s_cmp_ge_u32 %s, 2' % s(sWAVE))
    A('s_cbranch_scc1 %s' % skip)
    A('s_cmp_ge_u32 %s, 60' % s(sPRE))
    A('s_cbranch_scc1 %s' % skip)
    A('s_lshl_b32 %s, %s, 10' % (s(sT), s(sWAVE)))
    A('v_add_u32 v94, %s, v%d' % (s(sT), vLIN))
    A('ds_read_b128 %s, v94 offset:20480' % v(AC, 4))
    wait_init(A, bail, 4)
    A('s_waitcnt lgkmcnt(0)')
    A('v_pk_add_f32 %s, %s, %s' % (v(AC, 2), v(AC, 2), v(AC + 2, 2)))
    A('v_add_f32 v%d, v%d, v%d' % (AC, AC, AC + 1))
    A(rnd(AC, AC))
    A('v_add_f32 v%d, 1.0, v%d' % (AC + 1, AC))
    A(rnd(AC + 1, AC + 1))
    A('s_mul_i32 %s, %s, 205' % (s(sT2), s(sPRE)))
    A('s_lshr_b32 %s, %s, 11' % (s(sT2), s(sT2)))
    A('s_bitcmp1_b32 0x12, %s' % s(sT2))
    A('s_cselect_b64 vcc, -1, 0')
    A('v_cndmask_b32 v%d, v%d, v%d, vcc' % (AC, AC, AC + 1))
    A('s_lshl_b32 %s, %s, 1' % (s(sT), s(sPRE)))
    A('s_add_u32 %s, %s, %s' % (s(sT), s(sT), s(sWAVE)))
    A('s_lshl_b32 %s, %s, 7' % (s(sT), s(sT)))
    A('s_add_u32 %s, %s, 0x%x' % (s(sT), s(sT), WS_MOD))
    A('s_mov_b32 exec_lo, 0xffff')
    A('s_mov_b32 exec_hi, 0xffff')
    A('buffer_store_dword v%d, v93, %s, %s offen sc1' % (AC, WS, s(sT)))
    A('s_mov_b64 exec, -1')
    A('%s:' % skip)
    A('s_barrier')


H_X, H_P = 16, 56


def h_request(A):
    build_srd(A, SRD_C, 'x')
    A('v_and_b32 v2, 15, v%d' % vL)
    A('v_mul_u32_u24 v2, 1280, v2')
    A('v_lshrrev_b32 v3, 4, v%d' % vL)
    A('v_lshl_add_u32 v2, v3, 4, v2')
    A('s_mul_i32 %s, %s, %d' % (s(sT2), s(sPRE), 16 * 1280))
    A('s_mul_i32 %s, %s, 320' % (s(sT), s(sWAVE)))
    A('s_add_u32 %s, %s, %s' % (s(sT), s(sT), s(sT2)))
    for k in range(5):
        A('buffer_load_dwordx4 %s, v2, %s, %s offen offset:%d' % (v(H_P + 4 * k, 4), srd(SRD_C), s(sT), k * 64))


def h_norm(A):
    skip = A.label('nonorm')
    A('s_cmp_ge_u32 %s, 128' % s(sPRE))
    A('s_cbranch_scc1 %s' % skip)
    ln_addresses(A, 76, 77)
    unpack(A, H_X, H_P, 20)
    layernorm(A, H_X, 80, 76, 77, 0)
    A('s_barrier')
    A('%s:' % skip)


def h_finish(A, bail):
    X, P, MS, MC = H_X, H_P, 96, 136
    skip = A.label('noh')
    A('s_cmp_ge_u32 %s, 128' % s(sPRE))
    A('s_cbranch_scc1 %s' % skip)
    load_mod80(A, bail, MS, MC, 0, 1)
    modulate(A, X, MS, MC, P)
    A('s_mul_i32 %s, %s, %d' % (s(sT2), s(sPRE), 16 * 1280))
    A('s_mul_i32 %s, %s, 5120' % (s(sT), s(sWAVE)))
    A('s_add_u32 %s, %s, %s' % (s(sT), s(sT), s(sT2)))
    A('s_add_u32 %s, %s, 0x%x' % (s(sT), s(sT), WS_H))
    A('s_add_u32 %s, %s, 4096' % (s(sT2), s(sT)))
    for k in range(5):
        A('buffer_store_dwordx4 %s, v%d, %s, %s offen offset:%d sc1'
          % (v(P + 4 * k, 4), vLIN, WS, s(sT if k < 4 else sT2), (k % 4) * 1024))
    A('s_waitcnt vmcnt(0)')
    A('s_barrier')

    def fn():
        A('s_lshl_b32 %s, %s, 7' % (s(sT), s(sPRE)))
        A('s_add_u32 %s, %s, %d' % (s(sT), s(sT), WS_FLAG + F_H * 128))
        signal(A, SRD_WS, s(sT), '1')
    on_wave0(A, fn)
    A('%s:' % skip)


def qkv_stage(A, bail):
    W, ACC, HS, vH, vD = 192, 16, 48, 8, 9
    sMAT, sHD, sGRP, sSRC, sDST, sBUF, sPR = sCOPY, sSLICE, sRT, sOFF, sOFF2, sOFF3, sFL
    A('s_and_b32 %s, %s, 1' % (s(sGRP), s(sWIDX)))
    A('s_lshr_b32 %s, %s, 1' % (s(sT), s(sWIDX)))
    A('s_and_b32 %s, %s, 31' % (s(sHD), s(sT)))
    A('s_lshr_b32 %s, %s, 5' % (s(sMAT), s(sT)))
    build_srd(A, SRD_A, 'wk')
    for m, n in ((1, 'wv'), (2, 'wq')):
        A('s_cmp_eq_u32 %s, %d' % (s(sMAT), m))
        A('s_cselect_b32 %s, %s, %s' % (s(SRD_A), s(PTR[n]), s(SRD_A)))
        A('s_cselect_b32 %s, %s, %s' % (s(SRD_A + 1), s(PTR[n] + 1), s(SRD_A + 1)))
    A('s_and_b32 %s, %s, 0xffff' % (s(SRD_A + 1), s(SRD_A + 1)))
    A('s_lshl_b32 %s, %s, 8' % (s(sT3), s(sHD)))

    def wreg(p):
        return lambda c, b: W + (c * 4 + p * 2 + b) * 4

    for val in (False, True):
        tag = 'qkv_v' if val else 'qkv_qk'
        if not val:
            A('s_cmp_eq_u32 %s, 1' % s(sMAT))
            A('s_cbranch_scc1 qkv_v')
        A('%s:' % tag)
        stage_wide(A, SRD_A, 8192, sT3, val, R=96, between=lambda: h_norm(A))
        for p in range(2):
            A('s_and_b32 %s, %s, 1' % (s(sT2), s(sWAVE)))
            A('s_lshl_b32 %s, %s, 1' % (s(sT2), s(sT2)))
            A('s_add_u32 %s, %s, %d' % (s(sT2), s(sT2), p))
            read_wide(A, sT2, wreg(p))
        mark(A, 3, sWIDX)
        wait_init(A, bail, 4)
        h_finish(A, bail)
        mark(A, 12, sWIDX)
        A('v_and_b32 v3, 31, v%d' % vL)
        A('v_lshlrev_b32 v3, 7, v3')
        A('s_lshl_b32 %s, %s, 12' % (s(sT), s(sWAVE)))
        A('s_add_u32 %s, %s, %d' % (s(sT), s(sT), WS_FLAG + F_H * 128))
        wait_ge(A, bail, SRD_WS, 3, s(sT), 32, '1', sleep=3)
        A('s_barrier')
        A('s_mul_i32 %s, %s, 20480' % (s(sT), s(sWAVE)))
        A('s_mov_b32 %s, %s' % (s(sBUF), s(sT)))
        A('s_mul_i32 %s, %s, 81920' % (s(sSRC), s(sGRP)))
        A('s_add_u32 %s, %s, %s' % (s(sSRC), s(sSRC), s(sT)))
        A('s_add_u32 %s, %s, 0x%x' % (s(sSRC), s(sSRC), WS_H))
        A('s_lshr_b32 %s, %s, 1' % (s(sT), s(sWAVE)))
        A('s_mul_i32 %s, %s, 40960' % (s(sT2), s(sT)))
        A('v_add_u32 v%d, %s, v%d' % (vH, s(sT2), vLIN))
        A('v_mov_b32 v%d, 81920' % vD)
        A('s_lshl_b32 %s, %s, 1' % (s(sT2), s(sGRP)))
        A('s_add_u32 %s, %s, %s' % (s(sT), s(sT), s(sT2)))
        A('s_lshl_b32 %s, %s, 5' % (s(sT), s(sT)))
        A('s_add_u32 %s, %s, %s' % (s(sT), s(sT), s(sHD)))
        A('s_lshl_b32 %s, %s, 13' % (s(sDST), s(sT)))
        A('s_and_b32 %s, %s, 1' % (s(sT), s(sWAVE)))
        A('s_lshl_b32 %s, %s, %d' % (s(sT), s(sT), 12 if val else 11))
        A('s_add_u32 %s, %s, %s' % (s(sDST), s(sDST), s(sT)))
        if val:
            A('s_add_u32 %s, %s, 0x%x' % (s(sDST), s(sDST), WS_V))
        else:
            A('s_cmp_eq_u32 %s, 0' % s(sMAT))
            A('s_mov_b32 %s, 0x%x' % (s(sT), WS_Q))
            A('s_cselect_b32 %s, 0x%x, %s' % (s(sT), WS_K, s(sT)))
            A('s_add_u32 %s, %s, %s' % (s(sDST), s(sDST), s(sT)))
        A('s_add_u32 %s, %s, 1' % (s(sT), s(sMAT)))
        A('s_cmp_eq_u32 %s, 3' % s(sT))
        A('s_cselect_b32 %s, 0, %s' % (s(sT), s(sT)))
        A('s_lshl_b32 %s, %s, 1' % (s(sT), s(sT)))
        A('s_add_u32 %s, %s, %s' % (s(sT), s(sT), s(sGRP)))
        A('s_lshl_b32 %s, %s, 3' % (s(sPR), s(sHD)))
        A('s_add_u32 %s, %s, %s' % (s(sPR), s(sPR), s(sT)))
        A('s_lshl_b32 %s, %s, 7' % (s(sPR), s(sPR)))
        A('s_add_u32 %s, %s, %d' % (s(sPR), s(sPR), WS_FLAG + F_QKV * 128))
        A('s_mov_b32 %s, 0' % s(sI))
        A('s_mov_b32 %s, 81920' % s(sM + 1))

        def dma():
            out = []
            for k in range(5):
                out.append('s_add_u32 m0, %s, %d' % (s(sBUF), k * 4096))
                out.append('s_add_u32 %s, %s, %d' % (s(sT), s(sSRC), k * 4096))
                out += ['buffer_load_dwordx4 v%d, %s, %s offen offset:%d sc1 lds' % (vLIN, WS, s(sT), j * 1024)
                        for j in range(4)]
            return out

        def flip():
            A('s_add_u32 %s, %s, %s' % (s(sBUF), s(sBUF), s(sM + 1)))
            A('s_sub_u32 %s, 0, %s' % (s(sM + 1), s(sM + 1)))
            A('s_add_u32 %s, %s, %d' % (s(sSRC), s(sSRC), 2 * 81920))
        for x in dma():
            A(x)
        flip()
        A('s_waitcnt vmcnt(0)')
        mark(A, 4, sWIDX)
        A('%s_loop:' % tag)
        A('s_cmp_lg_u32 %s, 1' % s(sI))
        A('s_cbranch_scc1 %s_lag' % tag)
        A('s_waitcnt vmcnt(0)')
        A('%s_lag:' % tag)
        A('s_waitcnt vmcnt(4)')
        A('s_barrier')
        A('s_max_u32 %s, %s, 2' % (s(sT2), s(sI)))
        A('s_sub_u32 %s, %s, 1' % (s(sT2), s(sT2)))
        A('s_min_u32 %s, %s, %s' % (s(sT2), s(sT2), s(sI)))
        on_wave0(A, lambda: signal(A, SRD_WS, s(sPR), s(sT2)))
        A('s_cmp_lt_u32 %s, 15' % s(sI))
        A('s_cselect_b32 %s, %s, 0x%x' % (s(sSRC), s(sSRC), OOB))

        def rd(c):
            return ['ds_read_b128 %s, v%d offset:%d' % (v(HS + 8 * (c % 3) + 4 * tt, 4), vH, tt * 20480 + c * 1024)
                    for tt in range(2)]
        for x in rd(0) + rd(1):
            A(x)
        req = dma() if OPT.get('p2', 0) != 2 else []
        for c in range(20):
            fill = (rd(c + 2) if c + 2 < 20 else []) + req[:2]
            req = req[2:]
            A('s_waitcnt lgkmcnt(%d)' % (2 if c < 19 else 0))
            for tt in range(2):
                for k in range(4):
                    h, w = HS + 8 * (c % 3) + 4 * tt, W + (c * 4 + k) * 4
                    a_ = ACC + (k * 2 + tt) * 4
                    A(mfma(a_, h, w, c == 0) if val else mfma(a_, w, h, c == 0))
                    if fill and k >= 1:
                        A(fill.pop(0))
        A('v_add_u32 v%d, v%d, v%d' % (vH, vH, vD))
        A('v_sub_u32 v%d, 0, v%d' % (vD, vD))
        flip()
        O = HS
        for k in range(4):
            if val:
                lo, hi = ACC + (k * 2) * 4, ACC + (k * 2 + 1) * 4
                off = k * 1024
            else:
                p, tt = k >> 1, k & 1
                lo, hi = ACC + (p * 4 + tt) * 4, ACC + (p * 4 + 2 + tt) * 4
                off = p * 1024
            o = O + 4 * k
            A('v_cvt_pk_bf16_f32 v%d, v%d, v%d' % (o, lo, lo + 1))
            A('v_cvt_pk_bf16_f32 v%d, v%d, v%d' % (o + 1, lo + 2, lo + 3))
            A('v_cvt_pk_bf16_f32 v%d, v%d, v%d' % (o + 2, hi, hi + 1))
            A('v_cvt_pk_bf16_f32 v%d, v%d, v%d' % (o + 3, hi + 2, hi + 3))
            so = sDST
            if not val and tt:
                A('s_add_u32 %s, %s, 4096' % (s(sT), s(sDST)))
                so = sT
            if OPT.get('p2', 0) != 1:
                A('buffer_store_dwordx4 %s, v%d, %s, %s offen offset:%d%s'
                  % (v(o, 4), vLIN, WS, s(so), off, '' if OPT.get('p2', 0) == 3 else ' sc1'))
        A('s_add_u32 %s, %s, 0x%x' % (s(sDST), s(sDST), 4 * 32 * 8192))
        A('s_add_u32 %s, %s, 1' % (s(sI), s(sI)))
        A('s_cmp_lt_u32 %s, 16' % s(sI))
        A('s_cbranch_scc1 %s_loop' % tag)
        A('s_waitcnt vmcnt(0)')
        A('s_barrier')
        on_wave0(A, lambda: signal(A, SRD_WS, s(sPR), '16'))
        if not val:
            A('s_branch qkv_done')
    A('qkv_done:')
```

```python
import math
from common import *
from wk import *

sSTEP_RT, sLDS, sPEND, sMINE, sNEED = 100, 101, 3, 4, 5
LOG2E = math.log2(math.e)
HELPED = {'t4': 124, 't6': 125}
COPIES = {'t2': 3, 't3': 6, 't4': 3, 't5': 5, 't6': 2}


def next_tile(A, tag, flush):
    A('s_add_u32 %s, %s, %s' % (s(sRT), s(sRT), s(sSTEP_RT)))
    if tag in HELPED:
        A('s_cmp_eq_u32 %s, %d' % (s(sRT), HELPED[tag]))
        A('s_cselect_b32 %s, 127, %s' % (s(sRT), s(sRT)))
    A('s_cmp_lt_u32 %s, 128' % s(sRT))
    A('s_cbranch_scc1 %s_loop' % tag)
    A('s_waitcnt vmcnt(0)')
    flush()
    mark(A, 7, sWIDX)
    A('s_waitcnt vmcnt(0)')
    A('s_endpgm')


def pending(A, barrier=False, wave0=True):
    def fn():
        if barrier:
            A('s_barrier')
        if wave0:
            on_wave0(A, lambda: signal(A, SRD_WS, s(sMINE), s(sPEND), vT + 2))
        else:
            signal(A, SRD_WS, s(sMINE), s(sPEND), vT + 2)
    return fn


def my_line(A, base, per_copy):
    A('s_mul_i32 %s, %s, %d' % (s(sMINE), s(sCOPY), per_copy))
    A('s_add_u32 %s, %s, %s' % (s(sMINE), s(sMINE), s(sSLICE)))
    A('s_lshl_b32 %s, %s, 7' % (s(sMINE), s(sMINE)))
    A('s_add_u32 %s, %s, %d' % (s(sMINE), s(sMINE), WS_FLAG + base * 128))
    A('s_mov_b32 %s, 0' % s(sPEND))


def their_lines(A, dst, tile, base, copies, per_copy):
    if copies == 4:
        A('s_and_b32 %s, %s, 3' % (s(dst), s(tile)))
    else:
        A('s_mul_i32 %s, %s, %d' % (s(dst), s(tile), {3: 171, 5: 205, 6: 171}[copies]))
        A('s_lshr_b32 %s, %s, %d' % (s(dst), s(dst), {3: 9, 5: 10, 6: 10}[copies]))
        A('s_mul_i32 %s, %s, %d' % (s(dst), s(dst), copies))
        A('s_sub_u32 %s, %s, %s' % (s(dst), s(tile), s(dst)))
    A('s_mul_i32 %s, %s, %d' % (s(dst), s(dst), per_copy * 128))
    A('s_add_u32 %s, %s, %d' % (s(dst), s(dst), WS_FLAG + base * 128))


def attention(A, bail):
    Q, K0, K1, V, KM, VM, KD, S0, S1, SM, P, PL, PH, O, T = 16, 32, 48, 64, 96, 112, 120, 128, 132, 136, 140, 144, 146, 148, 180
    vQW, vQR, vL8, vFL, vNEG, vF7 = 8, 9, 10, 11, 12, 13
    sHD, sQT, sB, sKM = sSLICE, sCOPY, sOFF, sOFF2
    A('att:')
    A('s_lshl_b32 %s, %s, 2' % (s(sT), s(sSLICE)))
    A('s_add_u32 %s, %s, %s' % (s(sT), s(sT), s(sWAVE)))
    A('s_and_b32 %s, %s, 1' % (s(sQT), s(sT)))
    A('s_lshr_b32 %s, %s, 6' % (s(sRT), s(sT)))
    A('s_lshl_b32 %s, %s, 1' % (s(sRT), s(sRT)))
    A('s_add_u32 %s, %s, %s' % (s(sRT), s(sRT), s(sQT)))
    A('s_bfe_u32 %s, %s, 0x50001' % (s(sHD), s(sT)))
    A('s_mov_b32 %s, 4' % s(sSTEP_RT))
    n, g, t = 2, 3, 4
    A('v_and_b32 v%d, 15, v%d' % (n, vL))
    A('v_lshrrev_b32 v%d, 4, v%d' % (g, vL))
    A('v_bfe_u32 v%d, v%d, 2, 2' % (t, vL))
    A('s_mul_i32 %s, %s, 2304' % (s(sT), s(sWAVE)))
    A('v_lshrrev_b32 v%d, 1, v%d' % (vQW, g))
    A('v_mul_u32_u24 v%d, 288, v%d' % (vQW, vQW))
    A('v_lshl_add_u32 v%d, v%d, 4, v%d' % (vQW, n, vQW))
    A('v_and_b32 v5, 1, v%d' % g)
    A('v_lshl_add_u32 v%d, v5, 3, v%d' % (vQW, vQW))
    A('v_add_u32 v%d, %s, v%d' % (vQW, s(sT), vQW))
    A('v_and_b32 v%d, 1, v%d' % (vQR, t))
    A('v_mul_u32_u24 v%d, 288, v%d' % (vQR, vQR))
    A('v_lshrrev_b32 v5, 1, v%d' % t)
    A('v_lshl_add_u32 v5, v%d, 2, v5' % g)
    A('v_lshl_add_u32 v%d, v5, 4, v%d' % (vQR, vQR))
    A('v_and_b32 v5, 1, v%d' % vL)
    A('v_lshl_add_u32 v%d, v5, 3, v%d' % (vQR, vQR))
    A('v_add_u32 v%d, %s, v%d' % (vQR, s(sT), vQR))
    A('v_lshlrev_b32 v%d, 3, v%d' % (vL8, vL))
    A('v_and_b32 v%d, 7, v%d' % (vFL, vL))
    A('v_lshlrev_b32 v%d, 7, v%d' % (vFL, vFL))
    A('v_mov_b32 v%d, 0x%x' % (vNEG, f2u(-1e9)))
    A('v_and_b32 v%d, 1, v%d' % (vF7, vL))
    A('v_lshlrev_b32 v%d, 7, v%d' % (vF7, vF7))
    A('s_lshl_b32 %s, %s, 4' % (s(sT), s(sQT)))
    A('v_add_u32 v5, %s, v%d' % (s(sT), n))
    A('v_lshlrev_b32 v6, 2, v%d' % g)
    for k in range(8):
        A('v_add_u32 v7, %d, v6' % (16 * (k >> 2) + (k & 3)))
        A('v_cmp_le_u32 %s, v7, v5' % s(sM + 2 * k, 2))
    A('s_lshl_b32 %s, %s, 10' % (s(sT), s(sHD)))
    A('s_add_u32 %s, %s, %d' % (s(sT), s(sT), WS_FLAG + F_QKV * 128))
    wait_ge(A, bail, SRD_WS, vFL, s(sT), 6, '16')
    A('s_lshl_b32 %s, %s, 5' % (s(sMINE), s(sRT)))
    A('s_add_u32 %s, %s, %s' % (s(sMINE), s(sMINE), s(sHD)))
    A('s_lshl_b32 %s, %s, 7' % (s(sMINE), s(sMINE)))
    A('s_add_u32 %s, %s, %d' % (s(sMINE), s(sMINE), WS_FLAG + F_O * 128))
    A('s_mov_b32 %s, 0' % s(sPEND))
    mark(A, 6, sWIDX)
    A('att_loop:')
    A('s_lshr_b32 %s, %s, 1' % (s(sI), s(sRT)))
    A('s_lshl_b32 %s, %s, 5' % (s(sT), s(sI)))
    A('s_add_u32 %s, %s, %s' % (s(sT), s(sT), s(sHD)))
    A('s_lshl_b32 %s, %s, 11' % (s(sKM), s(sT)))
    A('s_lshl_b32 %s, %s, 13' % (s(sB), s(sT)))
    A('s_lshl_b32 %s, %s, 12' % (s(sT), s(sQT)))
    A('s_add_u32 %s, %s, %s' % (s(sT), s(sT), s(sB)))
    A('s_add_u32 %s, %s, 0x%x' % (s(sT), s(sT), WS_Q))
    for c in range(4):
        A('buffer_load_dwordx4 %s, v%d, %s, %s offen offset:%d sc1' % (v(Q + 4 * c, 4), vLIN, WS, s(sT), c * 1024))
    for base, regs in ((WS_K, K0), (WS_K + 4096, K1), (WS_V, V), (WS_V + 4096, V + 16)):
        A('s_add_u32 %s, %s, 0x%x' % (s(sT), s(sB), base))
        for c in range(4):
            A('buffer_load_dwordx4 %s, v%d, %s, %s offen offset:%d sc1' % (v(regs + 4 * c, 4), vLIN, WS, s(sT), c * 1024))
    A('s_waitcnt vmcnt(20)')
    pending(A, wave0=False)()
    A('s_waitcnt vmcnt(9)')
    for c in range(4):
        A(mfma(S0, K0 + 4 * c, Q + 4 * c, c == 0))
        A(mfma(S1, K1 + 4 * c, Q + 4 * c, c == 0))
    A('s_lshl_b32 %s, %s, 8' % (s(sT), s(sHD)))
    A('s_add_u32 %s, %s, %d' % (s(sT), s(sT), WS_FLAG + F_KM * 128))
    A('s_add_u32 %s, %s, 1' % (s(sI), s(sI)))
    wait_ge(A, bail, SRD_WS, vF7, s(sT), 2, s(sI))
    mark(A, 8, sWIDX)
    for base, regs in ((WS_KM, KD), (WS_VM, VM)):
        A('s_add_u32 %s, %s, 0x%x' % (s(sT), s(sKM), base))
        for c in range(4):
            A('buffer_load_dwordx2 %s, v%d, %s, %s offen offset:%d sc1' % (v(regs + 2 * c, 2), vL8, WS, s(sT), c * 512))
    scale = f2u(128 ** -0.5)

    def scaled(regs):
        for r in regs:
            A(rnd(r, r))
        for r in regs:
            A('v_mul_f32 v%d, 0x%x, v%d' % (r, scale, r))
        for r in regs:
            A(rnd(r, r))
    xs = list(range(S0, S0 + 8))
    ms = list(range(SM, SM + 4))
    scaled(xs)
    for k, r in enumerate(xs):
        A('v_cndmask_b32 v%d, v%d, v%d, %s' % (r, vNEG, r, s(sM + 2 * k, 2)))
    A('v_max3_f32 v%d, v%d, v%d, v%d' % (T, xs[0], xs[1], xs[2]))
    A('v_max3_f32 v%d, v%d, v%d, v%d' % (T, T, xs[3], xs[4]))
    A('v_max3_f32 v%d, v%d, v%d, v%d' % (T, T, xs[5], xs[6]))
    A('v_max_f32 v%d, v%d, v%d' % (T, T, xs[7]))
    A('v_mov_b64 %s, 0' % v(PL, 2))
    A('v_mov_b64 %s, 0' % v(PH, 2))
    A('s_waitcnt vmcnt(4)')
    for c in range(4):
        A('ds_write_b64 v%d, %s offset:%d' % (vQW, v(KD + 2 * c, 2), c * 576))
    for c in range(4):
        for h in range(2):
            A('ds_read_b64_tr_b16 %s, v%d offset:%d' % (v(KM + 4 * c + 2 * h, 2), vQR, c * 576 + 32 * h))
    for c in range(4):
        A('s_waitcnt lgkmcnt(%d)' % (6 - 2 * c))
        A(mfma(SM, KM + 4 * c, Q + 4 * c, c == 0))
    scaled(ms)
    A('v_max3_f32 v%d, v%d, v%d, v%d' % (T, T, ms[0], ms[1]))
    A('v_max3_f32 v%d, v%d, v%d, v%d' % (T, T, ms[2], ms[3]))
    xor_reduce(A, T, T + 1, 'v_max_f32')
    for r in xs + ms:
        A('v_sub_f32 v%d, v%d, v%d' % (r, r, T))
    for r in xs + ms:
        A('v_mul_f32 v%d, 0x%x, v%d' % (r, f2u(LOG2E), r))
    for r in xs + ms:
        A('v_exp_f32 v%d, v%d' % (r, r))
    A('v_pk_add_f32 %s, %s, %s' % (v(T, 2), v(S0, 2), v(S0 + 2, 2)))
    A('v_pk_add_f32 %s, %s, %s' % (v(T + 2, 2), v(S1, 2), v(S1 + 2, 2)))
    A('v_pk_add_f32 %s, %s, %s' % (v(T + 4, 2), v(SM, 2), v(SM + 2, 2)))
    A('v_pk_add_f32 %s, %s, %s' % (v(T, 2), v(T, 2), v(T + 2, 2)))
    A('v_add_f32 v%d, v%d, v%d' % (T + 4, T + 4, T + 5))
    A('v_add_f32 v%d, v%d, v%d' % (T, T, T + 1))
    A('v_fma_f32 v%d, v%d, 0.5, v%d' % (T, T + 4, T))
    xor_reduce(A, T, T + 1, 'v_add_f32')
    A('v_rcp_f32 v%d, v%d' % (T, T))
    for r in range(S0, S0 + 12, 2):
        A('v_pk_mul_f32 %s, %s, %s op_sel_hi:[1,0]' % (v(r, 2), v(r, 2), v(T, 2)))
    for k in range(4):
        A('v_cvt_pk_bf16_f32 v%d, v%d, v%d' % (P + k, S0 + 2 * k, S0 + 2 * k + 1))
    for k in range(2):
        A('v_cvt_pk_bf16_f32 v%d, v%d, v%d' % (T + k, SM + 2 * k, SM + 2 * k + 1))
    for k in range(2):
        A('v_mov_b32_dpp v%d, v%d quad_perm:[0,1,2,3] row_mask:0x3 bank_mask:0xf' % (PL + k, T + k))
        A('v_mov_b32_dpp v%d, v%d quad_perm:[0,1,2,3] row_mask:0xc bank_mask:0xf' % (PH + k, T + k))
    for k in range(8):
        A(mfma(O + 4 * k, V + 4 * k, P, True))
    A('s_waitcnt vmcnt(0)')
    for k in range(8):
        A('v_mfma_f32_16x16x16_bf16 %s, %s, %s, %s'
          % (v(O + 4 * k, 4), v(VM + 2 * (k >> 1), 2), v(PH if k & 1 else PL, 2), v(O + 4 * k, 4)))
    A('s_lshl_b32 %s, %s, 5' % (s(sT), s(sRT)))
    A('s_add_u32 %s, %s, %s' % (s(sT), s(sT), s(sHD)))
    A('s_lshl_b32 %s, %s, 12' % (s(sT), s(sT)))
    A('s_add_u32 %s, %s, 0x%x' % (s(sT), s(sT), WS_O))
    for c in range(4):
        for r in range(4):
            A('v_cvt_pk_bf16_f32 v%d, v%d, v%d' % (KM + 4 * c + r, O + 8 * c + r, O + 8 * c + 4 + r))
        A('buffer_store_dwordx4 %s, v%d, %s, %s offen offset:%d sc1' % (v(KM + 4 * c, 4), vLIN, WS, s(sT), c * 1024))
    mark(A, 10, sWIDX)
    A('s_add_u32 %s, %s, 1' % (s(sPEND), s(sRT)))
    next_tile(A, 'att', pending(A, wave0=False))


def ksplit(A, bail, tag):
    t2 = tag == 't2'
    NK, TOT, NP = (32, 128, 1) if t2 else (14, 54, 2)
    W = 512 - NK * NP * 8
    AP, ACC, RED, E, G, T = 16, 144, 160, 184, 192, 200
    vX, vFL, vRW, vRR, vNX = 8, 9, 10, 11, 12
    sK0, sPC, sROT = sOFF, sM + 1, sM + 2
    seg, rows = 64 * NP, 16 // NP
    A('%s:' % tag)
    build_srd(A, SRD_A, 'wo' if t2 else 'w4')
    build_srd(A, SRD_B, 'x' if t2 else 'out')
    A('s_mov_b32 %s, %s' % (s(sRT), s(sCOPY)))
    A('s_mul_i32 %s, %s, %d' % (s(sK0), s(sWAVE), NK))
    A('v_lshrrev_b32 v2, %d, v%d' % (1 + NP, vL))
    A('v_mul_u32_u24 v2, 1280, v2')
    A('v_and_b32 v3, %d, v%d' % (4 * NP - 1, vL))
    A('v_lshl_add_u32 v2, v3, 4, v2')
    A('s_lshl_b32 %s, %s, 15' % (s(sT), s(sWAVE)))
    A('v_add_u32 v4, %s, v%d' % (s(sT), vLIN))
    A('v_lshrrev_b32 v5, 4, v%d' % vL)
    A('v_bfe_u32 v6, v%d, 2, 2' % vL)
    A('v_lshl_add_u32 v5, v5, 3, v6')
    A('v_lshlrev_b32 v5, %d, v5' % (5 + NP))
    A('v_and_b32 v3, 3, v%d' % vL)
    A('v_lshl_add_u32 v5, v3, 4, v5')
    A('v_add_u32 v5, %s, v5' % s(sT))
    A('s_mul_i32 %s, %s, %d' % (s(sT2), s(sK0), 32 * 1280))
    A('s_lshl_b32 %s, %s, %d' % (s(sT), s(sSLICE), 5 + NP))
    A('s_add_u32 %s, %s, %s' % (s(sT2), s(sT2), s(sT)))
    rot = t2 and OPT.get('rot', 0)
    if rot:
        A('s_and_b32 %s, %s, 7' % (s(sROT), s(sSLICE)))
        A('s_lshl_b32 %s, %s, 2' % (s(sROT), s(sROT)))
    for k0 in range(0, NK, rows):
        nk = min(rows, NK - k0)
        n = 2 * NP * nk
        for i in range(n):
            if rot:
                if i % 8 == 0:
                    A('s_add_u32 %s, %s, %d' % (s(sT3), s(sROT), k0 + i // 2))
                    A('s_and_b32 %s, %s, 31' % (s(sT3), s(sT3)))
                    A('s_mul_i32 %s, %s, %d' % (s(sT3), s(sT3), 32 * 1280))
                    A('s_add_u32 %s, %s, %s' % (s(sT3), s(sT3), s(sT2)))
                A('s_add_u32 %s, %s, %d' % (s(sT), s(sT3), rows * (i % 8) * 1280))
            else:
                A('s_add_u32 %s, %s, %d' % (s(sT), s(sT2), (32 * k0 + rows * i) * 1280))
            A('buffer_load_dwordx4 %s, v2, %s, %s offen' % (v(AP + 4 * i, 4), srd(SRD_A), s(sT)))
        for i in range(n):
            A('s_waitcnt vmcnt(%d)' % (n - 1 - i))
            A('ds_write_b128 v4, %s offset:%d' % (v(AP + 4 * i, 4), i * 1024))
        for c in range(nk):
            for p in range(NP):
                for b in range(2):
                    for h in range(2):
                        A('ds_read_b64_tr_b16 %s, v5 offset:%d'
                          % (u(W + (((k0 + c) * NP + p) * 2 + b) * 4 + 2 * h, 2), (32 * c + 4 * h) * seg + p * 64 + b * 8))
            if NP == 2 or c % 3 == 2:
                A('s_waitcnt lgkmcnt(0)')
        A('s_waitcnt lgkmcnt(0)')
    A('s_barrier')
    A('s_min_u32 %s, %s, %d' % (s(sPC), s(sWAVE), NP - 1))
    A('s_lshl_b32 %s, %s, 11' % (s(sT), s(sPC)))
    A('v_add_u32 v%d, %s, v%d' % (vRR, s(sT), vLIN))
    A('s_mul_i32 %s, %s, %d' % (s(sT), s(sSLICE), NP))
    A('s_add_u32 %s, %s, %s' % (s(sPC), s(sPC), s(sT)))
    A('v_lshrrev_b32 v3, 4, v%d' % vL)
    A('v_lshlrev_b32 v2, 5, v3')
    A('s_lshl_b32 %s, %s, 7' % (s(sT), s(sPC)))
    A('s_add_u32 %s, %s, 0x%x' % (s(sT), s(sT), WS_MOD + (2 if t2 else 5) * D * 4))
    until_written(A, bail, lambda: [A('buffer_load_dwordx4 %s, v2, %s, %s offen offset:%d sc1'
                                      % (v(G + 4 * k, 4), WS, s(sT), 16 * k)) for k in range(2)],
                  list(range(G, G + 8)), 4)
    A('v_and_b32 v%d, 15, v%d' % (vX, vL))
    A('v_mul_u32_u24 v%d, 1280, v%d' % (vX, vX))
    A('v_lshl_add_u32 v%d, v3, 4, v%d' % (vX, vX))
    A('s_lshl_b32 %s, %s, 6' % (s(sT), s(sPC)))
    A('v_add_u32 v%d, %s, v%d' % (vX, s(sT), vX))
    A('v_and_b32 v%d, 7, v%d' % (vFL, vL))
    A('v_lshlrev_b32 v%d, 7, v%d' % (vFL, vFL))
    if t2:
        A('s_lshl_b32 %s, %s, 10' % (s(sT), s(sWAVE)))
        A('v_add_u32 v%d, %s, v%d' % (vFL, s(sT), vFL))
        my_line(A, F_XA, 20)
        A('s_cmp_eq_u32 %s, 0' % s(sWAVE))
        A('s_cselect_b32 %s, %s, 0x%x' % (s(sMINE), s(sMINE), OOB))
    A('v_mov_b32 v%d, 0' % vNX)
    A('s_lshl_b32 %s, %s, %d' % (s(sT), s(sWAVE), 10 + NP))
    A('v_add_u32 v%d, %s, v%d' % (vRW, s(sT), vLIN))
    A('s_waitcnt vmcnt(0)')

    mark(A, 6, sWIDX)
    A('%s_loop:' % tag)
    src = (F_O, 4, 32) if t2 else (F_U, COPIES['t5'], 7)
    go, slow = A.label('go'), A.label('slow')
    A('s_add_u32 %s, %s, 1' % (s(sNEED), s(sRT)))
    A('v_cmp_gt_u32 vcc, %s, v%d' % (s(sNEED), vNX))
    A('s_and_b32 vcc_lo, vcc_lo, 0x%x' % (0xff if t2 else 0x7f))
    A('s_cbranch_scc1 %s' % slow)
    A('%s:' % go)
    mark(A, 8, sWIDX)
    A('s_mul_i32 %s, %s, %d' % (s(sOFF2), s(sRT), 20480))
    noext = A.label('noext')
    A('s_cmp_ge_u32 %s, %d' % (s(sWAVE), NP))
    A('s_cbranch_scc1 %s' % noext)
    A('s_lshl_b32 %s, %s, 10' % (s(sFL), s(sPC)))
    A('s_add_u32 %s, %s, %s' % (s(sFL), s(sFL), s(sOFF2)))
    A('s_add_u32 %s, %s, 0x%x' % (s(sFL), s(sFL), WS_XA))
    if t2:
        A('buffer_load_dwordx4 %s, v%d, %s, %s offen' % (v(E, 4), vX, srd(SRD_B), s(sOFF2)))
    else:
        A('s_add_u32 %s, %s, 0x%x' % (s(sT2), s(sFL), WS_X1 - WS_XA))
        A('buffer_load_dwordx4 %s, v%d, %s, %s offen sc1' % (v(E, 4), vLIN, WS, s(sT2)))
        A('buffer_load_dwordx4 %s, v%d, %s, %s offen sc1' % (v(E + 4, 4), vLIN, WS, s(sFL)))
    A('%s:' % noext)
    A('s_mul_i32 %s, %s, %d' % (s(sOFF3), s(sRT), TOT))
    A('s_add_u32 %s, %s, %s' % (s(sOFF3), s(sOFF3), s(sK0)))
    A('s_lshl_b32 %s, %s, 10' % (s(sOFF3), s(sOFF3)))
    A('s_add_u32 %s, %s, 0x%x' % (s(sOFF3), s(sOFF3), WS_O if t2 else WS_U))
    for c in range(NK):
        if c % 4 == 0 and rot:
            A('s_add_u32 %s, %s, %d' % (s(sT), s(sROT), c))
            A('s_and_b32 %s, %s, 31' % (s(sT), s(sT)))
            A('s_lshl_b32 %s, %s, 10' % (s(sT), s(sT)))
            A('s_add_u32 %s, %s, %s' % (s(sT), s(sT), s(sOFF3)))
        elif c % 4 == 0:
            A('s_add_u32 %s, %s, %d' % (s(sT), s(sOFF3), c * 1024))
            if not t2 and c == 12:
                A('s_cmp_eq_u32 %s, 3' % s(sWAVE))
                A('s_cselect_b32 %s, 0x%x, %s' % (s(sT), OOB, s(sT)))
        A('buffer_load_dwordx4 %s, v%d, %s, %s offen offset:%d sc1' % (v(AP + 4 * c, 4), vLIN, WS, s(sT), (c % 4) * 1024))
    A('s_add_u32 %s, %s, %s' % (s(sT2), s(sRT), s(sSTEP_RT)))
    if not t2:
        A('s_cmp_eq_u32 %s, 125' % s(sT2))
        A('s_cselect_b32 %s, 127, %s' % (s(sT2), s(sT2)))
        A('s_min_u32 %s, %s, 129' % (s(sT2), s(sT2)))
    their_lines(A, sT, sT2, *src)
    A('buffer_load_dword v%d, v%d, %s, %s offen sc1' % (vNX, vFL, WS, s(sT)))
    if t2:
        A('s_waitcnt vmcnt(%d)' % (NK + 1))
        signal(A, SRD_WS, s(sMINE), s(sPEND), vT + 2)
    for c in range(NK):
        A('s_waitcnt vmcnt(%d)' % (NK - c + (1 if t2 else 0)))
        for k in range(2 * NP):
            A(mfma(ACC + 4 * k, W + (c * 2 * NP + k) * 4, AP + 4 * c, c == 0))
    mark(A, 9, sWIDX)
    A('s_waitcnt vmcnt(%d)' % (1 if t2 else 0))
    for k in range(2 * NP):
        A('ds_write_b128 v%d, %s offset:%d' % (vRW, v(ACC + 4 * k, 4), k * 1024))
    A('s_waitcnt lgkmcnt(0)')
    A('s_barrier')
    fin, join = A.label('fin'), A.label('join')
    A('s_cmp_lt_u32 %s, %d' % (s(sWAVE), NP))
    A('s_cbranch_scc1 %s' % fin)
    A('s_barrier')
    A('s_branch %s' % join)
    A('%s:' % fin)
    for w in range(4):
        for b in range(2):
            A('ds_read_b128 %s, v%d offset:%d'
              % (v((RED + 8 * (w - 1) if w else ACC) + 4 * b, 4), vRR, w * 2048 * NP + b * 1024))
    X, Y = T, T + 8
    unpack(A, X, E, 4)
    if not t2:
        unpack(A, Y, E + 4, 4)
    A('s_waitcnt lgkmcnt(0)')
    A('s_barrier')
    for k in range(3):
        for r in range(0, 8, 2):
            A('v_pk_add_f32 %s, %s, %s' % (v(ACC + r, 2), v(ACC + r, 2), v(RED + 8 * k + r, 2)))
    for r in range(8):
        A(rnd(ACC + r, ACC + r))
    if not t2:
        for r in range(0, 8, 2):
            A('v_pk_add_f32 %s, %s, %s' % (v(ACC + r, 2), v(ACC + r, 2), v(X + r, 2)))
        for r in range(8):
            A(rnd(ACC + r, ACC + r))
    for r in range(0, 8, 2):
        A('v_pk_mul_f32 %s, %s, %s' % (v(ACC + r, 2), v(ACC + r, 2), v(G + r, 2)))
    for r in range(8):
        A(rnd(ACC + r, ACC + r))
    for r in range(0, 8, 2):
        A('v_pk_add_f32 %s, %s, %s' % (v(ACC + r, 2), v(ACC + r, 2), v((X if t2 else Y) + r, 2)))
    for k in range(4):
        A('v_cvt_pk_bf16_f32 v%d, v%d, v%d' % (RED + k, ACC + 2 * k, ACC + 2 * k + 1))
    mark(A, 10, sWIDX)
    if t2:
        A('buffer_store_dwordx4 %s, v%d, %s, %s offen sc1' % (v(RED, 4), vLIN, WS, s(sFL)))
        A('s_mov_b32 %s, %s' % (s(sPEND), s(sNEED)))
    else:
        A('buffer_store_dwordx4 %s, v%d, %s, %s offen' % (v(RED, 4), vX, srd(SRD_B), s(sOFF2)))
    A('%s:' % join)
    next_tile(A, tag, pending(A) if t2 else lambda: None)
    A('%s:' % slow)
    their_lines(A, sT, sRT, *src)
    wait_ge(A, bail, SRD_WS, vFL, s(sT), 8 if t2 else 7, s(sNEED), first=pending(A) if t2 else None)
    A('s_branch %s' % go)


def nsplit(A, bail, tag):
    NP = 2 if tag == 't5' else 1
    W = 512 - 160 * NP
    X, P, T, MS, MC, HS, ACC, G, E = 16, 56, 8, 80, 120, 160, 80 if NP == 2 else 172, 100 if NP == 2 else 180, 120 if NP == 2 else 192
    vW, vR, vFL, vH = 6, 7, 76, 77
    SH = 80
    name, stride = {'t3': ('w1', 1280), 't4': ('w2', 1280), 't5': ('w3', 3456)}[tag]
    A('%s:' % tag)
    build_srd(A, SRD_A, name)
    A('s_mov_b32 %s, %s' % (s(sRT), s(sCOPY)))
    if tag == 't4':
        A('s_min_u32 %s, %s, 3' % (s(sCOPY), s(sCOPY)))
    for p in range(NP):
        A('s_lshl_b32 %s, %s, %d' % (s(sT3), s(sSLICE), 7 + NP))
        A('s_add_u32 %s, %s, %d' % (s(sT3), s(sT3), 256 * p))
        stage_wide(A, SRD_A, stride, sT3, False)
        read_wide(A, sWAVE, lambda c, b: W + ((c * NP + p) * 2 + b) * 4)
        A('s_barrier')
    A('v_and_b32 v%d, 7, v%d' % (vFL, vL))
    A('v_lshlrev_b32 v%d, 7, v%d' % (vFL, vFL))
    if tag == 't3':
        A('s_mul_i32 %s, %s, 640' % (s(sT), s(sWAVE)))
        A('v_add_u32 v%d, %s, v%d' % (vFL, s(sT), vFL))
    my_line(A, *{'t3': (F_T, 5), 't4': (F_X1, 5), 't5': (F_U, 7)}[tag])
    A('s_mul_i32 %s, %s, 5120' % (s(sLDS), s(sWAVE)))
    A('s_add_u32 %s, %s, 1024' % (s(sT), s(sLDS)))
    A('v_add_u32 v%d, %s, v%d' % (vH, s(sT), vLIN))
    A('s_lshl_b32 %s, %s, %d' % (s(sOFF), s(sSLICE), 1 + NP))
    A('s_add_u32 %s, %s, %s' % (s(sOFF), s(sOFF), s(sWAVE)))
    if NP == 2:
        A('s_add_u32 %s, %s, 4' % (s(sM + 2), s(sOFF)))
        A('s_cmp_lt_u32 %s, 54' % s(sM + 2))
        A('s_cselect_b32 %s, %s, 0x%x' % (s(sM + 2), s(sM + 2), OOB >> 10))
        A('s_lshl_b32 %s, %s, 10' % (s(sM + 2), s(sM + 2)))
    A('s_lshl_b32 %s, %s, 10' % (s(sOFF), s(sOFF)))
    if tag == 't4':
        A('v_and_b32 v2, 7, v%d' % vL)
        A('v_cmp_gt_u32 %s, 5, v2' % s(sM + 2, 2))
        A('s_and_b32 %s, %s, 0xffffff' % (s(sM + 2), s(sM + 2)))
        A('s_and_b32 %s, %s, 1' % (s(sT), s(sWAVE)))
        A('s_lshl_b32 %s, %s, 1' % (s(sT), s(sT)))
        A('s_sub_u32 %s, %s, 1' % (s(sT), s(sT)))
        A('s_lshr_b32 %s, %s, 1' % (s(sT2), s(sWAVE)))
        A('s_lshl_b32 %s, %s, %s' % (s(sT), s(sT), s(sT2)))
        A('v_and_b32 v2, 15, v%d' % vL)
        A('v_add_u32 v%d, %s, v2' % (SH, s(sT)))
    else:
        ln_addresses(A, vW, vR)
    if tag == 't3':
        load_mod80(A, bail, MS, MC, 3, 4)

    mark(A, 6, sWIDX)
    A('%s_loop:' % tag)
    A('s_mul_i32 %s, %s, 20480' % (s(sOFF2), s(sRT)))
    if tag == 't4':
        top, ok = A.label('wait'), A.label('ready')
        for j in range(3):
            A('s_add_u32 %s, %s, %d' % (s(sT2), s(sRT), j - 1))
            A('s_cmp_lt_u32 %s, 128' % s(sT2))
            A('s_cselect_b32 %s, %s, -1' % (s(sT2), s(sT2)))
            A('s_add_u32 %s, %s, 1' % (s(sNEED), s(sT2)))
            A('s_max_i32 %s, %s, 0' % (s(sT2), s(sT2)))
            their_lines(A, sT, sT2, F_T, COPIES['t3'], 5)
            if j:
                A('s_mov_b32 exec_lo, 0x%x' % (0xffffffff << (8 * j) & 0xffffffff))
            A('v_add_u32 v%d, %s, v%d' % (SH + 1, s(sT), vFL))
            A('v_mov_b32 v%d, %s' % (SH + 2, s(sNEED)))
        A('s_mov_b64 exec, -1')
        test = A.label('test')
        A('buffer_load_dword v2, v%d, %s, 0 offen sc1' % (SH + 1, WS))
        A('s_waitcnt vmcnt(0)')
        pending(A, True)()
        A('s_branch %s' % test)
        A('%s:' % top)
        A('buffer_load_dword v2, v%d, %s, 0 offen sc1' % (SH + 1, WS))
        A('s_waitcnt vmcnt(0)')
        A('%s:' % test)
        A('v_cmp_gt_u32 vcc, v%d, v2' % (SH + 2))
        A('s_and_b32 %s, vcc_lo, %s' % (s(sT2), s(sM + 2)))
        A('s_cbranch_scc0 %s' % ok)
        A('s_sleep 1')
        spin_guard(A, sSP, top, bail)
        A('%s:' % ok)
        mark(A, 8, sWIDX)
        A('s_lshl_b32 %s, %s, 4' % (s(sT), s(sRT)))
        A('v_add_u32 v2, %s, v%d' % (s(sT), SH))
        A('v_lshrrev_b32 v3, 4, v2')
        A('v_mul_u32_u24 v3, 20480, v3')
        A('v_and_b32 v4, 15, v2')
        A('v_and_b32 v5, 48, v%d' % vL)
        A('v_add_u32 v4, v4, v5')
        A('v_lshl_add_u32 v3, v4, 4, v3')
        A('v_cmp_gt_u32 vcc, %d, v2' % S)
        A('v_mov_b32 v4, 0x%x' % OOB)
        A('v_cndmask_b32 v3, v4, v3, vcc')
        A('s_add_u32 %s, %s, 0x%x' % (s(sT), s(sLDS), WS_T))
        A('s_add_u32 m0, %s, 1024' % s(sLDS))
        for k in range(5):
            if k == 4:
                A('s_add_u32 %s, %s, 4096' % (s(sT), s(sT)))
                A('s_add_u32 m0, %s, 5120' % s(sLDS))
            A('buffer_load_dwordx4 v3, %s, %s offen offset:%d sc1 lds' % (WS, s(sT), (k % 4) * 1024))
        A('s_add_u32 %s, %s, %s' % (s(sT), s(sOFF), s(sOFF2)))
        A('s_add_u32 %s, %s, 0x%x' % (s(sT), s(sT), WS_H2))
        A('buffer_load_dwordx4 %s, v%d, %s, %s offen sc1' % (v(E, 4), vLIN, WS, s(sT)))
        A('s_waitcnt vmcnt(0)')
    else:
        t3 = tag == 't3'
        their_lines(A, sT, sRT, F_XA if t3 else F_X1, 3, 20 if t3 else 5)
        if not t3:
            A('s_cmp_eq_u32 %s, %d' % (s(sRT), HELPED['t4']))
            A('s_cselect_b32 %s, %d, %s' % (s(sT), WS_FLAG + (F_X1 + 15) * 128, s(sT)))
        A('s_add_u32 %s, %s, 1' % (s(sNEED), s(sRT)))
        wait_ge(A, bail, SRD_WS, vFL, s(sT), 5, s(sNEED), first=pending(A, True))
        mark(A, 8, sWIDX)
        A('s_add_u32 %s, %s, %s' % (s(sOFF3), s(sLDS), s(sOFF2)))
        A('s_add_u32 %s, %s, 0x%x' % (s(sT), s(sOFF3), WS_XA if t3 else WS_X1))
        A('s_add_u32 %s, %s, 4096' % (s(sT2), s(sT)))
        for k in range(5):
            A('buffer_load_dwordx4 %s, v%d, %s, %s offen offset:%d sc1'
              % (v(P + 4 * k, 4), vLIN, WS, s(sT if k < 4 else sT2), (k % 4) * 1024))
        A('s_waitcnt vmcnt(0)')
        mark(A, 11, sWIDX)
        unpack(A, X, P, 20)
        if t3:
            layernorm(A, X, T, vW, vR, 0)
            modulate(A, X, MS, MC, P)
            A('s_add_u32 %s, %s, 0x%x' % (s(sT), s(sOFF3), WS_H2))
            A('s_cmp_eq_u32 %s, 0' % s(sSLICE))
            A('s_cselect_b32 %s, %s, 0x%x' % (s(sT), s(sT), OOB))
            A('s_add_u32 %s, %s, 4096' % (s(sT2), s(sT)))
            for k in range(5):
                A('buffer_store_dwordx4 %s, v%d, %s, %s offen offset:%d sc1'
                  % (v(P + 4 * k, 4), vLIN, WS, s(sT if k < 4 else sT2), (k % 4) * 1024))
            unpack(A, X, P, 20)
        layernorm(A, X, T, vW, vR, 0, pack_to=P)
        for k in range(5):
            A('ds_write_b128 v%d, %s offset:%d' % (vH, v(P + 4 * k, 4), k * 1024))
        A('s_waitcnt lgkmcnt(0)')
    A('s_barrier')

    mark(A, 9, sWIDX)

    def rd(c):
        return 'ds_read_b128 %s, v%d offset:%d' % (v(HS + 4 * (c % 3), 4), vLIN, 1024 + c * 1024)
    A(rd(0))
    A(rd(1))
    for c in range(20):
        A('s_waitcnt lgkmcnt(%d)' % (1 if c < 19 else 0))
        for k in range(2 * NP):
            A(mfma(ACC + 4 * k, W + (c * 2 * NP + k) * 4, HS + 4 * (c % 3), c == 0))
            if k == 0 and c + 2 < 20:
                A(rd(c + 2))
    if tag == 't4':
        unpack(A, G, E, 4)
        for r in range(8):
            A(rnd(ACC + r, ACC + r))
        for r in range(0, 8, 2):
            A('v_pk_add_f32 %s, %s, %s' % (v(ACC + r, 2), v(ACC + r, 2), v(G + r, 2)))
    else:
        gelu(A, ACC, 8 * NP, G)
    for k in range(4 * NP):
        A('v_cvt_pk_bf16_f32 v%d, v%d, v%d' % (E + k, ACC + 2 * k, ACC + 2 * k + 1))
    if tag == 't5':
        A('s_mul_i32 %s, %s, %d' % (s(sOFF2), s(sRT), 54 * 1024))
    A('s_add_u32 %s, %s, 0x%x' % (s(sOFF2), s(sOFF2), {'t3': WS_T, 't4': WS_X1, 't5': WS_U}[tag]))
    for p in range(NP):
        A('s_add_u32 %s, %s, %s' % (s(sT), s(sM + 2 if p else sOFF), s(sOFF2)))
        A('buffer_store_dwordx4 %s, v%d, %s, %s offen sc1' % (v(E + 4 * p, 4), vLIN, WS, s(sT)))
    mark(A, 10, sWIDX)
    A('s_add_u32 %s, %s, 1' % (s(sPEND), s(sRT)))
    next_tile(A, tag, pending(A, True))


ROLES = [(20, 't2', 0), (5, 't3', 0), (7, 't5', 0),
         (20, 't2', 1), (5, 't3', 1), (7, 't5', 1),
         (20, 't2', 2), (5, 't3', 2), (7, 't5', 2),
         (10, 't6', 0), (5, 't3', 3), (5, 't4', 0), (7, 't5', 3), (5, 'att', 0),
         (10, 't6', 1), (5, 't3', 4), (5, 't4', 1), (5, 't4', 2), (7, 'att', 5),
         (20, 'att', 12), (7, 't5', 4), (5, 't3', 5)]


def dispatch(A, enabled):
    start = 0
    for i, (n, role, arg) in enumerate(ROLES):
        nxt = A.label('role')
        A('s_cmp_ge_u32 %s, %d' % (s(sWIDX), start + n))
        A('s_cbranch_scc1 %s' % nxt)
        if role in enabled:
            if role == 'att':
                A('s_sub_u32 %s, %s, %d' % (s(sSLICE), s(sWIDX), start - arg))
            else:
                A('s_sub_u32 %s, %s, %d' % (s(sSLICE), s(sWIDX), start))
                A('s_mov_b32 %s, %d' % (s(sCOPY), arg))
                A('s_mov_b32 %s, %d' % (s(sSTEP_RT), COPIES[role]))
            A('s_branch %s' % role)
        else:
            A('s_endpgm')
        A('%s:' % nxt)
        start += n
    A('s_endpgm')


def emit_trailing(A, bail, enabled):
    dispatch(A, enabled)
    if 'att' in enabled:
        attention(A, bail)
    for tag in ('t2', 't6'):
        if tag in enabled:
            ksplit(A, bail, tag)
    for tag in ('t3', 't4', 't5'):
        if tag in enabled:
            nsplit(A, bail, tag)
```

```python
import sys
from common import *
import rec, roles, wk, wk2

NAME = 'adaLN_cond__memory_aug_recurrent_mem_tr__mixer_s_mlp__prompt_kernel'


class Hooks:
    t = rec.AST

    def ready(self, A, bail, need):
        t, a_, b_ = self.t, rec.sOWN, rec.sLATE
        top, ok = A.label('kv'), A.label('kvok')
        A('s_cmp_ge_u32 %s, %s' % (s(rec.sKVOK), s(need)))
        A('s_cbranch_scc1 %s' % ok)
        A('v_and_b32 v%d, 0x70, v%d' % (t + 1, rec.vLIN))
        A('v_lshlrev_b32 v%d, 3, v%d' % (t + 1, t + 1))
        A('%s:' % top)
        A('buffer_load_dword v%d, v%d, %s, %s offen sc1' % (t, t + 1, srd(SRD_WS), s(rec.sFLG)))
        A('s_waitcnt vmcnt(0)')
        A('v_readlane_b32 %s, v%d, 2' % (s(a_), t))
        A('v_readlane_b32 %s, v%d, 4' % (s(b_), t))
        A('s_min_u32 %s, %s, %s' % (s(rec.sKVOK), s(a_), s(b_)))
        A('v_readlane_b32 %s, v%d, 3' % (s(a_), t))
        A('v_readlane_b32 %s, v%d, 5' % (s(b_), t))
        A('s_min_u32 %s, %s, %s' % (s(a_), s(a_), s(b_)))
        A('s_lshl_b32 %s, %s, 1' % (s(rec.sKVOK), s(rec.sKVOK)))
        A('s_lshl_b32 %s, %s, 1' % (s(a_), s(a_)))
        A('s_add_u32 %s, %s, 1' % (s(a_), s(a_)))
        A('s_min_u32 %s, %s, %s' % (s(rec.sKVOK), s(rec.sKVOK), s(a_)))
        A('s_cmp_ge_u32 %s, %s' % (s(rec.sKVOK), s(need)))
        A('s_cbranch_scc1 %s' % ok)
        spin_guard(A, rec.sSPIN, top, bail)
        A('%s:' % ok)

    def rec_wait_start(self, A, bail):
        t = self.t
        roles.confirm(A, bail, t, rec.sSPIN, (rec.sOWN, rec.sLATE))
        A('v_lshrrev_b32 v%d, 4, v%d' % (t + 1, rec.vLIN))
        A('v_and_b32 v%d, 7, v%d' % (t + 1, t + 1))
        A('v_lshlrev_b32 v%d, 5, v%d' % (t + 1, t + 1))
        wk.wait_ge(A, bail, SRD_DBG, t + 1, str(wk.DBG_INIT), 8, '24', t, sleep=6, sp=rec.sSPIN)
        A('s_lshl_b32 %s, %s, 10' % (s(rec.sFLG), s(sHEAD)))
        A('s_add_u32 %s, %s, %d' % (s(rec.sFLG), s(rec.sFLG), WS_FLAG + wk.F_QKV * 128))
        A('s_mov_b32 %s, 0' % s(rec.sKVOK))
        A('s_mov_b32 %s, 1' % s(rec.sT))
        self.ready(A, bail, rec.sT)
        A('s_lshl_b32 %s, %s, 1' % (s(5), s(sHEAD)))
        A('s_add_u32 %s, %s, %s' % (s(5), s(5), s(sTEAM)))
        A('s_lshl_b32 %s, %s, 7' % (s(5), s(5)))
        A('s_add_u32 %s, %s, %d' % (s(5), s(5), WS_FLAG + wk.F_KM * 128))
        A('s_cmp_eq_u32 %s, 3' % s(sWAVE))
        A('s_cselect_b32 %s, %s, 0x%x' % (s(7), s(5), wk.OOB))

    def rec_progress(self, cls):
        if cls == 0:
            return []
        return ['v_mov_b32 v%d, %s' % (rec.vSEL, s(rec.sSTEP)),
                'buffer_store_dword v%d, off, %s, %s sc1' % (rec.vSEL, srd(SRD_WS), s(7))]

    def rec_chores(self, A, bail):
        def fn():
            A('s_add_u32 %s, %s, %d' % (s(rec.sT), s(rec.sSTEP), 3 if rec.OPT.get('parklate', 1) else 4))
            A('s_lshr_b32 %s, %s, 1' % (s(rec.sT), s(rec.sT)))
            A('s_min_u32 %s, %s, 32' % (s(rec.sT), s(rec.sT)))
            self.ready(A, bail, rec.sT)
        wk.on_wave0(A, fn)

    def rec_done(self, A):
        A('s_branch rec_helper')

    def rec_signal_last(self, A):
        A('s_barrier')
        wk.on_wave0(A, lambda: wk.signal(A, SRD_WS, s(5), '64', self.t))
        A('s_waitcnt vmcnt(0)')


def generate(path, enabled=('att', 't2', 't3', 't4', 't5', 't6'), stamps=False, name=NAME, force_slow=False):
    A = Asm()
    bail = name + '_exit'
    kernel_entry(A, name, 256)
    mark(A, 0, 2, 256)
    roles.take_ticket(A, 'rec_jump')
    roles.assign_roles(A, bail, 'rec_jump', 'worker')
    A('rec_jump:')
    A('s_branch rec_role')
    A('reassign:')
    A('s_barrier')
    A('v_mbcnt_lo_u32_b32 v0, -1, 0')
    A('v_mbcnt_hi_u32_b32 v0, -1, v0')
    A('s_lshl_b32 s72, %s, 6' % s(sWAVE))
    A('v_add_u32 v0, s72, v0')
    A('s_branch assign')
    kernel_exit(A, name)
    A('worker:')
    A('v_and_b32 v0, 63, v0')
    A('v_lshlrev_b32 v1, 4, v0')
    A('s_mov_b32 %s, 0' % s(wk.sSP))
    mark(A, 0, sWIDX)
    wk.init_workspace(A)
    A('s_mul_i32 %s, %s, 171' % (s(wk.sPRE), s(sWIDX)))
    A('s_lshr_b32 %s, %s, 9' % (s(wk.sPRE), s(wk.sPRE)))
    A('s_mul_i32 %s, %s, 3' % (s(wk.sT), s(wk.sPRE)))
    A('s_sub_u32 %s, %s, %s' % (s(wk.sT), s(sWIDX), s(wk.sT)))
    A('s_cmp_lt_u32 %s, 2' % s(wk.sT))
    A('s_cbranch_scc1 h_worker')
    A('s_mul_i32 %s, %s, 21' % (s(wk.sPRE), s(wk.sPRE)))
    A('s_and_b32 %s, %s, 63' % (s(wk.sPRE), s(wk.sPRE)))
    wk.mod_request(A)
    wk.init_done(A, 23)
    mark(A, 1, sWIDX)
    wk.mod_finish(A, bail)
    mark(A, 2, sWIDX)
    A('s_mov_b32 %s, 128' % s(wk.sPRE))
    A('s_branch do_qkv')
    A('h_worker:')
    A('s_lshl_b32 %s, %s, 1' % (s(wk.sPRE), s(wk.sPRE)))
    A('s_add_u32 %s, %s, %s' % (s(wk.sPRE), s(wk.sPRE), s(wk.sT)))
    wk.h_request(A)
    wk.init_done(A, 5)
    mark(A, 1, sWIDX)
    A('do_qkv:')
    wk.qkv_stage(A, bail)
    A('s_barrier')
    mark(A, 5, sWIDX)
    wk2.emit_trailing(A, 'bail2', enabled)
    A('rec_helper:')
    A('s_cmp_lg_u32 %s, 0' % s(sTEAM))
    A('s_cbranch_scc1 bail2')
    A('s_cmp_ge_u32 %s, 15' % s(sHEAD))
    A('s_cbranch_scc1 bail2')
    A('v_mbcnt_lo_u32_b32 v0, -1, 0')
    A('v_mbcnt_hi_u32_b32 v0, -1, v0')
    A('v_lshlrev_b32 v1, 4, v0')
    A('s_mov_b32 %s, 0' % s(wk.sSP))
    A('s_mov_b32 %s, %s' % (s(wk.sSLICE), s(sHEAD)))
    A('s_mov_b32 %s, 125' % s(wk.sCOPY))
    A('s_mov_b32 %s, 128' % s(wk2.sSTEP_RT))
    if DIAG['on']:
        A('s_add_u32 %s, %s, 192' % (s(sWIDX), s(sHEAD)))
    A('s_barrier')
    if 't6' in enabled:
        A('s_cmp_lt_u32 %s, 10' % s(sHEAD))
        A('s_cbranch_scc1 t6')
        A('s_sub_u32 %s, %s, 10' % (s(wk.sSLICE), s(sHEAD)))
        A('s_mov_b32 %s, 124' % s(wk.sCOPY))
        A('s_branch t4')
    A('bail2:')
    A('s_endpgm')
    A('rec_role:')
    if DIAG['on']:
        A('s_lshl_b32 %s, %s, 5' % (s(sWIDX), s(sTEAM)))
        A('s_add_u32 %s, %s, %s' % (s(sWIDX), s(sWIDX), s(sHEAD)))
        mark(A, 0, sWIDX, 192)
    if force_slow == 1:
        A('s_mov_b32 %s, 0' % s(sFAST))
    rec.emit_rec(A, Hooks(), 'bail2', stamps)
    n = A.pad_hazards()
    pr = A.check_waits([name])
    print('nops added', n, 'wait problems', len(pr), 'instructions', len(A.ins))
    for p in pr[:20]:
        print(p)
    head = open('adaLN_cond__memory_aug_recurrent_mem_tr__mixer_s_mlp__prompt.s.ref').read()
    head = head[:head.index('; Override launch geometry')]
    head += '; @launch grid=(256,1,1) block=(256,1,1) lds=163840\n'
    head += '.amdgcn_target "amdgcn-amd-amdhsa--gfx950"\n.text\n.globl %s\n.type %s,@function\n' % (name, name)
    text = head + A.text() + '.section .rodata,"a"\n.p2align 6\n' + descriptor(name)
    open(path, 'w').write(text)
    print(path, len(text), 'bytes')


if __name__ == '__main__':
    rec.OPT.update(smask=0, latec=7)
    wk.OPT.update(modnt=1)
    kw = {}
    for kv in sys.argv[2:]:
        k_, v_ = kv.split('=')
        if k_ == 'enabled':
            kw['enabled'] = tuple(v_.split(','))
        elif k_ == 'diag':
            DIAG['on'] = int(v_)
        elif k_ in ('stamps', 'force_slow'):
            kw[k_] = bool(int(v_))
        else:
            rec.OPT[k_] = wk.OPT[k_] = int(v_)
    generate(sys.argv[1], **kw)
```

```python
from asmlib import Asm, v, a, s, u

S, D, H, DH, M, SEG, NSEG, F = 2048, 640, 32, 128, 8, 32, 64, 1728

WS_BYTES = 268435456
ACT = S * D * 2
WS_FLAG = 0x0
FLAG_BYTES = 0x20000
WS_MOD = 0x20000
WS_STAMP = 0x28000
WS_PART = 0x40000
WS_MEMO = 0x100000
WS_MEMX = 0x1A0000
WS_KM = 0x240000
WS_VM = 0x640000
WS_H = 0xA40000
WS_XA = WS_H + ACT
WS_H2 = WS_XA + ACT
WS_HN = WS_H2 + ACT
WS_T = WS_HN + ACT
WS_X1 = WS_T + ACT
WS_U = 0x1A00000
WS_Q = 0x2200000
WS_K = 0x3200000
WS_V = 0x4200000
WS_O = 0x5200000
assert WS_X1 + ACT <= WS_U and WS_U + S * F * 2 <= WS_Q

PTR = {n: 32 + 2 * i for i, n in enumerate(
    ['x', 'mem0', 'wq', 'wk', 'wv', 'wo', 'seglen', 'bx', 'w1', 'w2', 'w3', 'w4', 'c', 'wmod', 'out', 'dbg', 'ws'])}
NBYTES = {'x': ACT, 'mem0': M * D * 2, 'wq': D * 4096 * 2, 'wk': D * 4096 * 2, 'wv': D * 4096 * 2,
          'wo': D * 4096 * 2, 'w1': D * D * 2, 'w2': D * D * 2, 'w3': D * F * 2, 'w4': D * F * 2,
          'c': D * 2, 'wmod': D * 6 * D * 2, 'out': ACT, 'dbg': 256, 'ws': WS_BYTES}
SRD_WS, SRD_A, SRD_B, SRD_C, SRD_D, SRD_DBG = 8, 12, 16, 20, 24, 28
sWAVE, sTEAM, sHEAD, sFAST, sWIDX = 66, 67, 68, 69, 70
SPIN_LIMIT = 1 << 18
WS_TRACE = 0x6200000
WS_TL = 0x30000
DIAG = {'on': False}


def srd(n):
    return s(n, 4)


def build_srd(A, dst, name):
    p = PTR[name]
    A('s_mov_b32 %s, %s' % (s(dst), s(p)))
    A('s_and_b32 %s, %s, 0xffff' % (s(dst + 1), s(p + 1)))
    A('s_mov_b32 %s, 0x%x' % (s(dst + 2), NBYTES[name]))
    A('s_mov_b32 %s, 0x20000' % s(dst + 3))


def kernel_entry(A, name, nwg):
    A('.p2align 8')
    A('%s:' % name)
    A('s_cmp_ge_u32 s2, %d' % nwg)
    A('s_cbranch_scc1 %s_exit' % name)
    A('s_load_dwordx16 s[32:47], s[0:1], 0')
    A('s_load_dwordx16 s[48:63], s[0:1], 64')
    A('s_load_dwordx2 s[64:65], s[0:1], 128')
    A('v_lshrrev_b32 v1, 6, v0')
    A('s_nop 0')
    A('v_readfirstlane_b32 %s, v1' % s(sWAVE))
    A('s_waitcnt lgkmcnt(0)')
    build_srd(A, SRD_WS, 'ws')
    build_srd(A, SRD_DBG, 'dbg')
    for r in (SRD_A, SRD_B, SRD_C, SRD_D):
        build_srd(A, r, 'ws')


def kernel_exit(A, name):
    A('%s_exit:' % name)
    A('s_endpgm')


def descriptor(name, vgpr=512, accum=256):
    return '\n'.join([
        '.amdhsa_kernel %s' % name,
        '  .amdhsa_next_free_vgpr %d' % vgpr,
        '  .amdhsa_next_free_sgpr 102',
        '  .amdhsa_accum_offset %d' % accum,
        '  .amdhsa_group_segment_fixed_size 0',
        '  .amdhsa_kernarg_size 136',
        '  .amdhsa_user_sgpr_count 2',
        '  .amdhsa_user_sgpr_kernarg_segment_ptr 1',
        '  .amdhsa_system_sgpr_workgroup_id_x 1',
        '  .amdhsa_float_denorm_mode_32 3',
        '.end_amdhsa_kernel', ''])


def spin_guard(A, cnt, back, bail):
    A('s_add_u32 %s, %s, 1' % (s(cnt), s(cnt)))
    A('s_cmp_lt_u32 %s, 0x%x' % (s(cnt), SPIN_LIMIT))
    A('s_cbranch_scc1 %s' % back)
    A('s_branch %s' % bail)


def f2u(x):
    import struct
    return struct.unpack('<I', struct.pack('<f', x))[0]


def mark(A, k, idx_sreg, base=0):
    if DIAG['on'] == 3:
        return dbg_mark(A, k, idx_sreg, base)
    if not DIAG['on'] or (DIAG['on'] == 2 and not (k == 7 or base == 256)):
        return
    skip = A.label('nomark')
    A('s_cmp_lg_u32 %s, 0' % s(sWAVE))
    A('s_cbranch_scc1 %s' % skip)
    A('s_memrealtime s[46:47]')
    A('s_waitcnt lgkmcnt(0)')
    A('v_mov_b32 v2, s46')
    A('s_lshl_b32 s46, %s, 6' % s(idx_sreg))
    A('s_add_u32 s46, s46, %d' % (WS_TL + base * 64 + 4 * k))
    A('v_mov_b32 v3, 0')
    A('s_mov_b64 exec, 1')
    A('buffer_store_dword v2, v3, %s, s46 offen' % srd(SRD_WS))
    A('s_mov_b64 exec, -1')
    A('%s:' % skip)


def dbg_mark(A, k, idx_sreg, base):
    word = {(0, 256): 2, (4, 0): 3, (5, 0): 4, (7, 0): 5, (1, 192): 6, (2, 192): 7, (3, 192): 10, (0, 0): 11,
            (2, 0): 12, (12, 0): 13, (6, 0): 14}.get((k, base))
    if word is None:
        return
    skip = A.label('nomark')
    A('s_cmp_lg_u32 %s, 0' % s(sWAVE))
    A('s_cbranch_scc1 %s' % skip)
    A('s_memrealtime s[46:47]')
    A('s_waitcnt lgkmcnt(0)')
    if word == 2:
        A('s_not_b32 s46, s46')
    A('s_and_b32 s46, s46, 0xffffff')
    A('v_mov_b32 v%d, s46' % (79 if base == 192 else 2))
    A('s_mov_b64 exec, 1')
    A('buffer_atomic_umax v%d, off, %s, 0 offset:%d' % (79 if base == 192 else 2, srd(SRD_DBG), 4 * word))
    A('s_mov_b64 exec, -1')
    A('%s:' % skip)
```

```python
import math
from common import *
from asmlib import interleave

L_MEMT = 0
L_OX = 0
L_QT = 10240
L_KT = L_QT + 2304
L_TCH = L_KT + 2304
L_KX = 16384
L_WL = L_KX + 16384
L_END = L_WL + 131072
assert L_TCH + 512 <= L_KX and L_END <= 163840

vKXR, vIDX, vAR, vBL, vQW, vQR, vLIN, vOXW, vSEL, vPST, vTCH, vMST, vML4, vML2, vVX, vPUB = range(16)
VX, VXN = 16, 24
ACCV, ACCQ, ACCK = 32, 36, 40
AST = 44
BST = 56
T0 = 72
WREG = 80

sSTEP, sTAG, sSPIN, sMO, sMX, sMOW, sMXW, sKVK, sPUB, sT, sPT0, sPT1, sPT2, sPL, sRED, sOWN, sLATE, sFLG = range(72, 90)
sEXM = 90
sST = 92
sSTAMP = 32
sKVOK, sKXM, sPUBV, sPLP, sKVV, sTOF = 96, 97, 100, 101, 3, 4
sSCL = 98

OPT = {}
SCL = 128 ** -0.5 * math.log2(math.e)


def smf(acc, areg, breg):
    return 'v_smfmac_f32_16x16x64_bf16 %s, %s, %s, %s' % (v(acc, 4), v(areg, 4), u(breg, 8), v(vIDX))


class Rec:
    def __init__(self, A, cls, fast, hooks, stamps=False):
        self.A, self.cls, self.fast, self.hooks, self.stamps = A, cls, fast, hooks, stamps
        self.ntile = 3 if cls == 0 else 2
        klds = (3, 7) if cls == 0 else ()
        self.a_ops = []
        for c in range(10):
            if c in klds:
                self.a_ops.append(('k', c))
            self.a_ops.append(('v', c))
        self.d_ops = [(0, 0), (0, 1), (0, 2), (1, 3)] + ([(2, 0), (2, 1)] if cls == 0 else [])
        self.lds_ops = self.a_ops + self.d_ops
        self.nlds = len(self.lds_ops)
        self.slots = [BST, BST + 8, T0] if cls == 0 else [BST, BST + 8]
        self.d_slots = [VX, AST, T0]
        r = WREG
        self.w, self.wo = {}, {}
        for m in 'qkv':
            for c in range(20):
                if (m, c) not in self.lds_ops:
                    self.w[m, c] = r
                    r += 8
        for t in range(self.ntile):
            for c in range(4):
                if (t, c) not in self.lds_ops:
                    self.wo[t, c] = r
                    r += 8
        assert r == 512
        self.tag = 'rec%d%s' % (cls, 'f' if fast else 's')

    def stamp(self, k, step=40):
        if not self.stamps or not (OPT.get('smask', 0xffff) >> k) & 1:
            return
        A = self.A
        skip = A.label('nostamp')
        A('s_cmp_lg_u32 %s, %d' % (s(sSTEP), step))
        A('s_cbranch_scc1 %s' % skip)
        A('s_memtime %s' % s(sST, 2))
        A('s_waitcnt lgkmcnt(0)')
        A('s_mov_b32 %s, %s' % (s(sSTAMP + k), s(sST)))
        A('%s:' % skip)

    def trace(self, reg):
        if not OPT.get('trace', 0):
            return
        A = self.A
        A('s_memrealtime %s' % s(sST, 2))
        A('s_waitcnt lgkmcnt(0)')
        A('s_mov_b32 m0, %s' % s(sSTEP))
        A('s_nop 0')
        A('v_writelane_b32 v%d, %s, m0' % (reg, s(sST)))

    def load_weights(self):
        A = self.A
        vW, vWo, vSW, vSR, vSO = T0, T0 + 1, T0 + 2, T0 + 3, T0 + 4
        t0, t1 = T0 + 5, T0 + 6
        A('s_lshl_b32 %s, %s, 3' % (s(sT), s(sWAVE)))
        A('v_lshrrev_b32 v%d, 4, v0' % t0)
        A('v_add_u32 v%d, %s, v%d' % (t0, s(sT), t0))
        A('v_and_b32 v%d, 15, v0' % t1)
        A('v_lshlrev_b32 v%d, 13, v%d' % (vW, t0))
        A('v_lshl_add_u32 v%d, v%d, 4, v%d' % (vW, t1, vW))
        A('v_lshrrev_b32 v%d, 2, v0' % t0)
        A('v_and_b32 v%d, 3, v0' % t1)
        A('v_mul_u32_u24 v%d, 1280, v%d' % (vWo, t0))
        A('v_lshl_add_u32 v%d, v%d, 4, v%d' % (vWo, t1, vWo))
        A('s_lshl_b32 %s, %s, 11' % (s(sT), s(sWAVE)))
        A('s_add_u32 %s, %s, %d' % (s(sT), s(sT), L_KX))
        A('v_add_u32 v%d, %s, v%d' % (vSW, s(sT), vLIN))
        A('v_and_b32 v%d, 15, v0' % t0)
        A('v_lshl_add_u32 v%d, v%d, 2, %s' % (t0, t0, s(sT)))
        A('v_and_b32 v%d, 15, v0' % vSR)
        A('s_lshl_b32 %s, %s, 6' % (s(sT), s(sWAVE)))
        A('s_add_u32 %s, %s, %d' % (s(sT), s(sT), L_KX))
        A('v_lshl_add_u32 v%d, v%d, 2, %s' % (vSR, vSR, s(sT)))
        A('v_bfe_u32 v%d, v0, 4, 1' % t1)
        A('v_lshl_add_u32 v%d, v%d, 9, v%d' % (vSR, t1, vSR))
        A('v_lshrrev_b32 v%d, 5, v0' % t1)
        A('v_lshl_add_u32 v%d, v%d, 8, v%d' % (vSR, t1, vSR))
        A('v_lshrrev_b32 v%d, 4, v0' % t1)
        A('v_lshl_add_u32 v%d, v%d, 8, v%d' % (vSO, t1, t0))
        A('s_lshl_b32 %s, %s, 8' % (s(sT), s(sHEAD)))
        A('s_mul_i32 %s, %s, %d' % (s(sOWN), s(sTEAM), 320 * 8192))
        A('s_sub_u32 %s, %d, %s' % (s(sLATE), 320 * 8192, s(sOWN)))
        A('s_add_u32 %s, %s, %s' % (s(sOWN), s(sOWN), s(sT)))
        A('s_add_u32 %s, %s, %s' % (s(sLATE), s(sLATE), s(sT)))

        if self.cls == 0:
            A('s_mul_i32 %s, %s, 3' % (s(sPT0), s(sWAVE)))
        else:
            A('s_lshl_b32 %s, %s, 1' % (s(sPT0), s(sWAVE)))
            A('s_add_u32 %s, %s, 2' % (s(sPT0), s(sPT0)))
        A('s_mul_i32 %s, %s, %d' % (s(sPT1), s(sHEAD), 128 * 1280))
        A('s_mul_i32 %s, %s, 640' % (s(sT), s(sTEAM)))
        A('s_add_u32 %s, %s, %s' % (s(sPT1), s(sPT1), s(sT)))
        A('s_lshl_b32 %s, %s, 6' % (s(sT), s(sPT0)))
        A('s_add_u32 %s, %s, %s' % (s(sPT1), s(sPT1), s(sT)))

        nt = ' nt' if OPT.get('nt', 0) else ''

        def request(op, dst):
            for h in range(2):
                if op[0] in ('q', 'k', 'v'):
                    c = op[1]
                    A('s_add_u32 %s, %s, 0x%x' % (s(sT), s(sOWN if c < 10 else sLATE), (32 * (c % 10) + 4 * h) * 8192))
                    A('buffer_load_dwordx4 %s, v%d, %s, %s offen%s'
                      % (u(dst + 4 * h, 4), vW, srd({'q': SRD_A, 'k': SRD_B, 'v': SRD_C}[op[0]]), s(sT), nt))
                else:
                    A('s_add_u32 %s, %s, %d' % (s(sT), s(sPT1), (32 * op[1] + 16 * h) * 1280 + 64 * op[0]))
                    A('buffer_load_dwordx4 %s, v%d, %s, %s offen%s' % (u(dst + 4 * h, 4), vWo, srd(SRD_D), s(sT), nt))

        def arrange(i, op, dst):
            shared = op[0] in ('q', 'k', 'v')
            base = (i % 2) * 8192 if shared else 0
            for h in range(2):
                A('ds_write_b128 v%d, %s offset:%d' % (vSW, u(dst + 4 * h, 4), base + h * 1024))
            if shared:
                A('s_waitcnt lgkmcnt(0)')
                A('s_barrier')
            for k in range(4):
                if shared:
                    o = base // 256 + 8 * k
                    A('ds_read2st64_b32 %s, v%d offset0:%d offset1:%d' % (u(dst + 2 * k, 2), vSR, o, o + 4))
                else:
                    A('ds_read2_b32 %s, v%d offset0:%d offset1:%d'
                      % (u(dst + 2 * k, 2), vSO if k < 2 else t0, 32 * (k & 1), 32 * (k & 1) + 16))
        A('v_add_u32 v%d, 1024, v%d' % (t0, vSO))
        first = [('v', c) for c in range(10)] + [('k', 3), ('k', 7)]
        rest = [(m, c) for c in range(20) for m in 'qkv' if (m, c) not in first]
        todo = [(op, self.w.get(op, self.w[rest[-12 + i]])) for i, op in enumerate(first)]
        todo += [(op, self.w[op]) for op in rest]
        todo += [(op, VX + 8 * i) for i, op in enumerate(self.d_ops)] + list(self.wo.items())
        issued, DEPTH = 0, 28
        for i, (op, r) in enumerate(todo):
            while issued < min(len(todo), i + DEPTH):
                request(*todo[issued])
                issued += 1
            A('s_waitcnt vmcnt(%d)' % (2 * (issued - i - 1)))
            if i == 60:
                A('s_waitcnt lgkmcnt(0)')
                A('s_barrier')
            arrange(i, op, r)
            if op in self.lds_ops:
                k = self.lds_ops.index(op)
                A('s_waitcnt lgkmcnt(0)')
                A('ds_write_b128 v%d, %s offset:%d' % (vBL, u(r, 4), k * 2048))
                A('ds_write_b128 v%d, %s offset:%d' % (vBL, u(r + 4, 4), k * 2048 + 1024))
            elif i >= 60:
                A('s_waitcnt lgkmcnt(6)')
        A('s_waitcnt lgkmcnt(0)')
        A('s_barrier')
        A('v_add_u32 v%d, %d, v%d' % (vKXR, L_KX, vLIN))
        A('s_mul_i32 %s, %s, %d' % (s(sT), s(sTEAM), 40 * 4096))
        A('s_lshl_b32 %s, %s, 14' % (s(sPT0), s(sPT0)))
        A('s_add_u32 %s, %s, %s' % (s(sPT0), s(sPT0), s(sT)))
        A('s_lshl_b32 %s, %s, 7' % (s(sT), s(sHEAD)))
        A('s_add_u32 %s, %s, %s' % (s(sPT0), s(sPT0), s(sT)))
        A('s_add_u32 %s, %s, 0x%x' % (s(sPT0), s(sPT0), WS_PART))
        A('s_add_u32 %s, %s, 0x4000' % (s(sPT1), s(sPT0)))
        A('s_add_u32 %s, %s, 0x8000' % (s(sPT2), s(sPT0)))

    def a_read(self, c, r):
        return 'ds_read_b128 %s, v%d offset:%d' % (v(r, 4), vAR, L_MEMT + c * 512)

    def w_reads(self, i, r):
        return ['ds_read_b128 %s, v%d offset:%d' % (v(r, 4), vBL, i * 2048),
                'ds_read_b128 %s, v%d offset:%d' % (v(r + 4, 4), vBL, i * 2048 + 1024)]

    def b_reads(self, i):
        return self.w_reads(i, self.slots[i % len(self.slots)]) if i < len(self.a_ops) else []

    def d_reads(self, i):
        return self.w_reads(len(self.a_ops) + i, self.d_slots[i % 3]) if i < len(self.d_ops) else []

    def b_first(self):
        for i in range(len(self.slots)):
            for x in self.b_reads(i):
                self.A(x)

    def mem_issue(self, soff, R):
        A = self.A
        A('buffer_load_dwordx4 %s, v%d, %s, %s offen sc1' % (v(R[0], 4), vML4, srd(SRD_WS), s(soff)))
        A('buffer_load_dwordx4 %s, v%d, %s, %s offen offset:1024 sc1' % (v(R[1], 4), vML4, srd(SRD_WS), s(soff)))
        A('buffer_load_dwordx2 %s, v%d, %s, %s offen sc1' % (v(R[2], 2), vML2, srd(SRD_WS), s(soff)))

    def mem_check(self, R):
        A, t, w = self.A, VXN + 6, VXN + 7
        x = [R[0] + i for i in range(4)] + [R[1] + i for i in range(4)] + [R[2], R[2] + 1]
        A('v_max3_u32 v%d, v%d, v%d, v%d' % (t, x[0], x[1], x[2]))
        A('v_max3_u32 v%d, v%d, v%d, v%d' % (w, x[3], x[4], x[5]))
        A('v_max3_u32 v%d, v%d, v%d, v%d' % (t, t, x[6], x[7]))
        A('v_max3_u32 v%d, v%d, v%d, v%d' % (w, w, x[8], x[9]))
        A('v_max_u32 v%d, v%d, v%d' % (t, t, w))
        A('v_cmp_eq_u32 vcc, -1, v%d' % t)

    def mem_write(self, R, lds_off):
        A = self.A
        A('ds_write_b128 v%d, %s offset:%d' % (vML4, v(R[0], 4), lds_off))
        A('ds_write_b128 v%d, %s offset:%d' % (vML4, v(R[1], 4), lds_off + 1024))
        A('ds_write_b64 v%d, %s offset:%d' % (vML2, v(R[2], 2), lds_off))

    OWN = (AST, AST + 4, AST + 8)
    LATE = (T0, T0 + 4, VXN)

    def retry_loop(self, name, issue, nloads, check, finish, back):
        def body(bail):
            A = self.A
            loop = A.label(name + '_loop')
            depth = OPT.get('depth', 2)
            A('s_mov_b64 exec, vcc')
            for _ in range(depth - 1):
                issue()
            A('%s:' % loop)
            A('s_mov_b64 exec, vcc')
            issue()
            A('s_mov_b64 exec, -1')
            A('s_waitcnt vmcnt(%d) ; racy-ok' % (nloads * (depth - 1)))
            check()
            done = A.label(name + '_done')
            A('s_cbranch_vccz %s' % done)
            spin_guard(A, sSPIN, loop, bail)
            A('%s:' % done)
            finish()
            A('s_branch %s' % back)
        return body

    def warm(self, n):
        for _ in range(n):
            self.A('v_mov_b32 v%d, v%d' % (vIDX, vIDX))
            self.A('s_nop 1')

    def poll_own(self):
        A = self.A
        top, retry = A.label('own'), A.label('own_retry')
        self.warm(OPT.get('d_own', 0))
        self.mem_issue(sMO, self.OWN)
        self.warm(OPT.get('d_own2', 0))
        A('s_waitcnt vmcnt(0)')
        self.mem_check(self.OWN)
        A('s_cbranch_vccnz %s' % retry)
        self.mem_write(self.OWN, L_MEMT)
        A('%s:' % top)
        self.cold.append((retry, self.retry_loop(
            'own', lambda: self.mem_issue(sMO, self.OWN), 3, lambda: self.mem_check(self.OWN),
            lambda: (self.mem_write(self.OWN, L_MEMT), A('s_waitcnt vmcnt(0)')), top)))
        if OPT.get('latei', 0) == -1:
            self.mem_issue(sMX, self.LATE)
        A('s_waitcnt lgkmcnt(0)')

    def take_late(self):
        A = self.A
        top, retry = A.label('late'), A.label('late_retry')
        A('s_waitcnt vmcnt(0)')
        self.mem_check(self.LATE)
        A('s_cbranch_vccnz %s' % retry)
        self.mem_write(self.LATE, L_MEMT + 5120)
        A('%s:' % top)
        self.cold.append((retry, self.retry_loop(
            'late', lambda: self.mem_issue(sMX, self.LATE), 3, lambda: self.mem_check(self.LATE),
            lambda: (self.mem_write(self.LATE, L_MEMT + 5120), A('s_waitcnt vmcnt(0)')), top)))

    def phase_a1(self):
        A = self.A
        ns = len(self.slots)
        q = [('b', i) for i in range(ns) for _ in range(2)]

        def issue(x, tagc):
            A(x)
            q.append(tagc)

        def need(tagc):
            if tagc in q:
                k = max(i for i, x in enumerate(q) if x == tagc)
                A('s_waitcnt lgkmcnt(%d)' % (len(q) - 1 - k))
                del q[:k + 1]
        for c in range(2):
            issue(self.a_read(c, AST + 4 * c), ('a', c))
        later = []
        for c in range(10):
            ar = AST + 4 * (c % 3)
            need(('a', c))
            for m, acc in (('q', ACCQ), ('k', ACCK), ('v', ACCV)):
                reload = []
                if (m, c) in self.w:
                    A(smf(acc, ar, self.w[m, c]))
                else:
                    i = self.lds_ops.index((m, c))
                    need(('b', i))
                    A(smf(acc, ar, self.slots[i % ns]))
                    reload = [(x, ('b', i + ns)) for x in self.b_reads(i + ns)]
                if m == 'q' and c + 2 < 10:
                    later.insert(0, (self.a_read(c + 2, AST + 4 * ((c + 2) % 3)), ('a', c + 2)))
                for x in later[:2]:
                    issue(*x)
                later = later[2:] + reload
            if c == OPT.get('latei', 0) and self.cls == 1:
                self.mem_issue(sMX, self.LATE)
            if c == OPT.get('latec', 8) and self.cls == 1:
                self.stamp(3)
                self.take_late()
                q += [None] * 3

    def prefetch(self):
        ws = srd(SRD_WS)
        x = ['buffer_load_dwordx4 %s, v%d, %s, %s offen offset:%d sc1' % (v(VXN + 4 * i, 4), vVX, ws, s(sKVV), i * 1024)
             for i in range(2)]
        x.append('s_mov_b32 m0, %s' % s(sKXM))
        x += ['buffer_load_dwordx4 v%d, %s, %s offen offset:%d sc1 lds' % (vVX, ws, s(sKVK), i * 1024) for i in range(2)]
        if self.cls == 0:
            x.append('s_mov_b32 m0, %d' % L_TCH)
            x.append('buffer_load_dword v%d, %s, %s offen sc1 lds' % (vTCH, ws, s(sTOF)))
        return x + (self.hooks.rec_progress(self.cls) or [])

    def kx_read(self, c):
        kx = BST + 8 * (c % 2)
        return ['ds_read_b128 %s, v%d offset:%d' % (v(kx, 4), vKXR, c * 1024),
                'ds_read_b128 %s, v%d offset:%d' % (v(kx + 4, 4), vKXR, (4 + c) * 1024)]

    def phase_a2(self):
        A = self.A
        ar = {10 + i: r for i, r in enumerate(list(range(AST, BST + 16, 4)) + [T0, T0 + 4])}
        ar[19] = ar[10]
        for c in range(10, 13):
            A(self.a_read(c, ar[c]))
        fill = [self.a_read(c, ar[c]) for c in range(13, 20)] + self.prefetch()
        waits = {10: 2, 11: 2, 12: 2, 13: 2, 14: 2, 15: 1, 17: 0}
        for c in range(10, 20):
            if c in waits:
                A('s_waitcnt lgkmcnt(%d)' % waits[c])
            elif fill:
                A(fill.pop(0))
            if c == 10:
                A(smf(ACCV, ar[c], self.w['v', c]))
                A(fill.pop(0))
            A(smf(ACCQ, ar[c], self.w['q', c]))
            if fill:
                A(fill.pop(0))
            A(smf(ACCK, ar[c], self.w['k', c]))
        for x in fill:
            A(x)
        vs = [smf(ACCV, ar[c], self.w['v', c]) for c in (13, 14, 15, 16, 11, 12, 17, 18, 19)]
        for x in vs[:3]:
            A(x)
        for acc, off in ((ACCQ, 0), (ACCK, 2304)):
            A('v_cvt_pk_bf16_f32 v%d, v%d, v%d' % (acc, acc, acc + 1))
            A('v_cvt_pk_bf16_f32 v%d, v%d, v%d' % (acc + 1, acc + 2, acc + 3))
            A('ds_write_b64 v%d, %s offset:%d' % (vQW, v(acc, 2), off))
        fill = [None, None] + self.kx_read(0) + self.kx_read(1)
        for x, y in zip(vs[3:], fill):
            A(x)
            if y:
                A(y)
        A('s_waitcnt lgkmcnt(4)')
        A('s_barrier')

    def publish(self, reg, soff):
        self.A('buffer_store_dwordx2 %s, v%d, %s, %s offen sc1' % (v(reg, 2), vPUB, srd(SRD_WS), s(soff)))

    def phase_s(self):
        A = self.A
        SX0, SX1, SM = ACCQ, ACCK, T0
        qk = [(AST, AST + 4), (AST + 8, T0 + 4)]

        def rd(c):
            q, k = qk[c % 2]
            return ['ds_read_b64_tr_b16 %s, v%d offset:%d' % (v(q, 2), vQR, c * 576),
                    'ds_read_b64_tr_b16 %s, v%d offset:%d' % (v(q + 2, 2), vQR, c * 576 + 32),
                    'ds_read_b64_tr_b16 %s, v%d offset:%d' % (v(k, 2), vQR, 2304 + c * 576),
                    'ds_read_b64_tr_b16 %s, v%d offset:%d' % (v(k + 2, 2), vQR, 2304 + c * 576 + 32)]
        for x in rd(0) + rd(1):
            A(x)
        self.publish(ACCK, sPUB)
        A('v_cvt_pk_bf16_f32 v%d, v%d, v%d' % (ACCV, ACCV, ACCV + 1))
        A('v_cvt_pk_bf16_f32 v%d, v%d, v%d' % (ACCV + 1, ACCV + 2, ACCV + 3))

        def mm(c, i):
            q, k = qk[c % 2]
            kx = BST + 8 * (c % 2)
            acc, areg = ((SX0, kx), (SX1, kx + 4), (SM, k))[i]
            A('v_mfma_f32_16x16x32_bf16 %s, %s, %s, %s' % (v(acc, 4), v(areg, 4), v(q, 4), v(acc, 4) if c else '0'))
        A('s_waitcnt lgkmcnt(4)')
        for i in range(3):
            mm(0, i)
        A('s_waitcnt lgkmcnt(0)')
        nxt = rd(2) + self.kx_read(2)
        for i in range(3):
            mm(1, i)
            A(nxt[2 * i])
            A(nxt[2 * i + 1])
        nxt = rd(3) + self.kx_read(3)
        for x in nxt[:2]:
            A(x)
        A('s_waitcnt lgkmcnt(2)')
        mm(2, 0)
        A(nxt[2])
        A(nxt[3])
        mm(2, 1)
        A(nxt[4])
        A(nxt[5])
        mm(2, 2)
        self.publish(ACCV, sPUBV)
        A('s_waitcnt lgkmcnt(0)')
        mm(3, 2)
        A('v_xor_b32 v%d, 0x%x, v%d' % (vKXR, L_KX ^ (L_KX + 8192), vKXR))
        mm(3, 0)
        mm(3, 1)

    def softmax_pv(self):
        A = self.A
        X, Y, SM = ACCQ, ACCK, T0
        t, w = T0 + 4, T0 + 5
        P, PL, PH = Y, SM + 2, T0 + 6
        O0, O1, L, ONE, VM = AST + 4, BST + 8, AST + 8, AST, ACCV
        idm = 'quad_perm:[0,1,2,3]'
        full = 'row_mask:0xf bank_mask:0xf'
        for r in range(4):
            A('v_mov_b32 v%d, 0x3f803f80' % (ONE + r))
        A('v_mov_b64 %s, 0' % v(PH, 2))
        for r in range(2):
            A('v_mov_b32_dpp v%d, v%d %s row_mask:0xf bank_mask:0xc' % (SM + r, SM + 2 + r, idm))
        for r in range(4):
            A('v_mov_b32_dpp v%d, v%d %s row_mask:0xf bank_mask:0xc' % (X + r, Y + r, idm))
        A('v_max3_f32 v%d, v%d, v%d, v%d' % (t, SM, SM + 1, X))
        A('v_max3_f32 v%d, v%d, v%d, v%d' % (w, X + 1, X + 2, X + 3))
        A('v_max_f32 v%d, v%d, v%d' % (t, t, w))
        A('v_mov_b64 %s, 0' % v(PL, 2))
        A('v_max_f32_dpp v%d, v%d, v%d row_ror:8 %s' % (t, t, t, full))
        for sw in ('v_permlane16_swap_b32', 'v_permlane32_swap_b32'):
            A('v_mov_b32 v%d, v%d' % (w, t))
            A('%s v%d, v%d' % (sw, t, w))
            A('v_max_f32 v%d, v%d, v%d' % (t, t, w))
        A('v_mul_f32 v%d, 0x%x, v%d' % (t, f2u(-SCL), t))
        for r in (X, X + 2, SM):
            A('v_pk_fma_f32 %s, %s, %s, %s op_sel_hi:[1,0,0]' % (v(r, 2), v(r, 2), s(sSCL, 2), v(t, 2)))
        for r in (X, X + 1, X + 2, X + 3, SM, SM + 1):
            A('v_exp_f32 v%d, v%d' % (r, r))
        A('v_cvt_pk_bf16_f32 v%d, v%d, v%d' % (P, X, X + 1))
        A('v_cvt_pk_bf16_f32 v%d, v%d, v%d' % (P + 1, X + 2, X + 3))
        A('v_cvt_pk_bf16_f32 v%d, v%d, v%d' % (t, SM, SM + 1))
        A('v_mov_b32_dpp v%d, v%d row_ror:8 %s' % (P + 2, P, full))
        A('v_mov_b32_dpp v%d, v%d row_ror:8 %s' % (P + 3, P + 1, full))
        A('v_mov_b32_dpp v%d, v%d %s row_mask:0x3 bank_mask:0xf' % (PL, t, idm))
        A('v_mov_b32_dpp v%d, v%d row_ror:8 row_mask:0x3 bank_mask:0xf' % (PL + 1, t))
        A('v_mfma_f32_16x16x32_bf16 %s, %s, %s, 0' % (v(L, 4), v(ONE, 4), v(P, 4)))
        A('v_mov_b32_dpp v%d, v%d %s row_mask:0xc bank_mask:0xf' % (PH, t, idm))
        A('v_mov_b32_dpp v%d, v%d row_ror:8 row_mask:0xc bank_mask:0xf' % (PH + 1, t))
        A('v_mfma_f32_16x16x32_bf16 %s, %s, %s, 0' % (v(O0, 4), v(VX, 4), v(P, 4)))
        A('v_mov_b64 %s, 0' % v(X, 2))
        A('v_mov_b64 %s, 0' % v(X + 2, 2))
        A('v_mfma_f32_16x16x32_bf16 %s, %s, %s, 0' % (v(O1, 4), v(VX + 4, 4), v(P, 4)))
        A('v_mfma_f32_16x16x16_bf16 %s, %s, %s, %s' % (v(L, 4), v(ONE, 2), v(PL, 2), v(L, 4)))
        if self.ntile == 3:
            A('v_mov_b64 %s, 0' % v(Y, 2))
            A('v_mov_b64 %s, 0' % v(Y + 2, 2))
        A('v_mfma_f32_16x16x16_bf16 %s, %s, %s, %s' % (v(O0, 4), v(VM, 2), v(PL, 2), v(O0, 4)))
        A('v_mfma_f32_16x16x16_bf16 %s, %s, %s, %s' % (v(O1, 4), v(VM, 2), v(PH, 2), v(O1, 4)))
        A('v_mov_b64 %s, 0' % v(ACCV, 2))
        A('v_mov_b64 %s, 0' % v(ACCV + 2, 2))
        A('v_rcp_f32 v%d, v%d' % (t, L))
        for r in (O0, O0 + 2, O1, O1 + 2):
            A('v_pk_mul_f32 %s, %s, %s op_sel_hi:[1,0]' % (v(r, 2), v(r, 2), v(t, 2)))
        for r in range(4):
            A('v_cvt_pk_bf16_f32 v%d, v%d, v%d' % (T0 + r, O0 + r, O1 + r))
        A('ds_write_b128 v%d, %s' % (vOXW, v(T0, 4)))
        for i in range(3):
            for x in self.d_reads(i):
                A(x)
        A('s_waitcnt lgkmcnt(6)')
        A('s_barrier')

    def phase_d(self):
        A = self.A
        for c in range(4):
            A('ds_read_b128 %s, v%d offset:%d' % (v(BST + 4 * c, 4), vAR, L_OX + c * 512))
        flav = '' if self.fast else ' sc1'

        def put(t):
            r = ACCV + 4 * t
            A('v_cvt_pk_bf16_f32 v%d, v%d, v%d' % (r, r, r + 1))
            A('v_cvt_pk_bf16_f32 v%d, v%d, v%d' % (r + 1, r + 2, r + 3))
            A('buffer_store_dwordx2 %s, v%d, %s, %s offen%s' % (v(r, 2), vPST, srd(SRD_WS), s(sPT0 + t), flav))
        q, later = ['a0', 'a1', 'a2', 'a3'], []

        def need(x):
            if x in q:
                k = max(i for i, y in enumerate(q) if y == x)
                A('s_waitcnt lgkmcnt(%d)' % (len(q) - 1 - k))
                del q[:k + 1]
        for t in range(self.ntile):
            for c in range(4):
                need('a%d' % c)
                reload = []
                if (t, c) in self.wo:
                    A(smf(ACCV + 4 * t, BST + 4 * c, self.wo[t, c]))
                else:
                    i = self.d_ops.index((t, c))
                    need(i)
                    A(smf(ACCV + 4 * t, BST + 4 * c, self.d_slots[i % 3]))
                    reload = [(x, i + 3) for x in self.d_reads(i + 3)]
                for x, tg in later[:1]:
                    A(x)
                    q.append(tg)
                later = later[1:] + reload
            if t == 2:
                put(0)
        for t in range(1 if self.ntile == 3 else 0, self.ntile):
            put(t)

    def reduce(self):
        A = self.A
        top, retry = A.label('red'), A.label('red_retry')
        R, SEL, Z, t = BST, AST, AST + 4, AST + 8
        A('v_mov_b64 %s, 0' % v(SEL, 2))
        A('v_mov_b64 %s, 0' % v(SEL + 2, 2))
        for r in range(4):
            A('v_mov_b32_dpp v%d, v%d quad_perm:[0,1,2,3] row_mask:0xf bank_mask:0x%x' % (SEL + r, vSEL, 1 << r))
        def issue():
            for i in range(4):
                A('buffer_load_dwordx4 %s, v%d, %s, %s offen offset:%d sc1'
                  % (v(R + 4 * i, 4), vLIN, srd(SRD_WS), s(sPL), i * 1024))

        def prod(i):
            A('v_mfma_f32_16x16x32_bf16 %s, %s, %s, %s' % (v(Z, 4), v(R + 4 * i, 4), v(SEL, 4), v(Z, 4) if i else '0'))

        def scan(i):
            x = R + 4 * i
            if i == 0:
                A('v_max3_u32 v%d, v%d, v%d, v%d' % (t, x, x + 1, x + 2))
                A('v_max_u32 v%d, v%d, v%d' % (t, t, x + 3))
            else:
                A('v_max3_u32 v%d, v%d, v%d, v%d' % (t, t, x, x + 1))
                A('v_max3_u32 v%d, v%d, v%d, v%d' % (t, t, x + 2, x + 3))
            if i == 3:
                A('v_cmp_eq_u32 vcc, -1, v%d' % t)
        self.warm(OPT.get('d_red', 0))
        if OPT.get('redwait', 0) >= 0:
            A('s_waitcnt vmcnt(%d)' % OPT.get('redwait', 0))
        issue()
        self.warm(OPT.get('d_red2', 0))
        for i in range(4):
            A('s_waitcnt vmcnt(%d)' % (3 - i))
            prod(i)
            scan(i)
        A('s_cbranch_vccnz %s' % retry)
        A('%s:' % top)
        self.cold.append((retry, self.retry_loop(
            'red', issue, 4, lambda: [scan(i) for i in range(4)], lambda: [prod(i) for i in range(4)], top)))
        A('v_permlane32_swap_b32 v%d, v%d' % (Z, Z + 2))
        A('v_permlane32_swap_b32 v%d, v%d' % (Z + 1, Z + 3))
        A('v_pk_add_f32 %s, %s, %s' % (v(Z, 2), v(Z, 2), v(Z + 2, 2)))
        A('v_cvt_pk_bf16_f32 v%d, v%d, v%d' % (t, Z, Z + 1))
        A('s_mov_b64 exec, %s' % s(sEXM, 2))
        own = 'buffer_store_dword v%d, v%d, %s, %s offen%s' % (t, vMST, srd(SRD_WS), s(sMOW), '' if self.fast else ' sc1')
        other = 'buffer_store_dword v%d, v%d, %s, %s offen sc1' % (t, vMST, srd(SRD_WS), s(sMXW))
        for x in ((own, other) if OPT.get('ownfirst', 0) else (other, own)):
            A(x)
        A('s_mov_b64 exec, -1')
        if OPT.get('ownwait', 0):
            A('s_waitcnt vmcnt(1)')

    def repoison(self):
        A = self.A
        A('v_mov_b64 %s, -1' % v(T0, 2))
        A('v_mov_b64 %s, -1' % v(T0 + 2, 2))
        for i in range(4):
            A('buffer_store_dwordx4 %s, v%d, %s, %s offen offset:%d%s'
              % (v(T0, 4), vLIN, srd(SRD_WS), s(sPLP), i * 1024, '' if self.fast else ' sc1'))

    def advance(self, first=False):
        A = self.A
        for r in range(0, 8, 2):
            A('v_mov_b64 %s, %s' % (v(VX + r, 2), v(VXN + r, 2)))
        for r in range(0, 12, 2):
            A('v_mov_b64 %s, 0' % v(ACCV + r, 2))
        A('s_xor_b32 %s, %s, 0x%x' % (s(sKXM), s(sKXM), 8192))
        for r in (sKVK, sKVV):
            A('s_add_u32 %s, %s, 0x%x' % (s(r), s(r), 32 * 8192))
        if not first:
            A('s_add_u32 %s, %s, 1' % (s(sSTEP), s(sSTEP)))
            A('s_mov_b32 %s, %s' % (s(sPLP), s(sPL)))
            for r in (sPT0, sPT1, sPT2, sPL):
                A('s_add_u32 %s, %s, %s' % (s(r), s(r), s(sTAG)))
            A('s_sub_u32 %s, 0, %s' % (s(sTAG), s(sTAG)))
            for r in (sMO, sMX, sMOW, sMXW):
                A('s_add_u32 %s, %s, 5120' % (s(r), s(r)))
            A('s_add_u32 %s, %s, 0x%x' % (s(sPUB), s(sPUB), 32 * 2048))
            A('s_add_u32 %s, %s, 0x%x' % (s(sPUBV), s(sPUBV), 32 * 2048))
        A('s_add_u32 %s, %s, 5120' % (s(sTOF), s(sMOW)))

    def prologue(self, bail):
        A = self.A
        A('rec_load%d:' % self.cls)
        self.load_weights()
        if DIAG['on'] == 3:
            mark(A, 1, sHEAD, 192)
        if DIAG['on']:
            A('s_waitcnt vmcnt(0)')
            A('s_memrealtime %s' % s(sST, 2))
            A('s_waitcnt lgkmcnt(0)')
        self.hooks.rec_wait_start(A, bail)
        if DIAG['on']:
            A('s_mov_b32 %s, %s' % (s(sSTAMP + 14), s(sST)))
        for x in self.prefetch()[:5]:
            A(x)
        A('s_waitcnt vmcnt(0)')
        self.advance(first=True)
        A('s_barrier')
        if self.cls == 1:
            R = self.LATE
            A('ds_read_b128 %s, v%d offset:%d' % (v(R[0], 4), vML4, L_MEMT + 5120))
            A('ds_read_b128 %s, v%d offset:%d' % (v(R[1], 4), vML4, L_MEMT + 6144))
            A('ds_read_b64 %s, v%d offset:%d' % (v(R[2], 2), vML2, L_MEMT + 5120))
            A('s_waitcnt lgkmcnt(0)')
            for r in list(range(R[0], R[0] + 8)) + [R[2], R[2] + 1]:
                A('v_min_u32 v%d, -2, v%d' % (r, r))
            A('buffer_store_dwordx4 %s, v%d, %s, %s offen sc1' % (v(R[0], 4), vML4, srd(SRD_WS), s(sMX)))
            A('buffer_store_dwordx4 %s, v%d, %s, %s offen offset:1024 sc1' % (v(R[1], 4), vML4, srd(SRD_WS), s(sMX)))
            A('buffer_store_dwordx2 %s, v%d, %s, %s offen sc1' % (v(R[2], 2), vML2, srd(SRD_WS), s(sMX)))
            A('s_waitcnt vmcnt(0)')
        if self.stamps:
            A('s_memrealtime %s' % s(sST, 2))
            A('s_memtime %s' % s(sST + 2, 2))
            A('s_waitcnt lgkmcnt(0)')
            A('s_mov_b32 %s, %s' % (s(sSTAMP + 10), s(sST)))
            A('s_mov_b32 %s, %s' % (s(sSTAMP + 11), s(sST + 2)))
            A('s_mov_b32 %s, 0' % s(sSTAMP + 15))
        if DIAG['on'] == 3 and self.cls == 0:
            mark(A, 2, sHEAD, 192)
            A('s_waitcnt vmcnt(0)')
        self.b_first()
        A('s_cmp_lg_u32 %s, 0' % s(sFAST))
        A('s_cbranch_scc1 rec%df_a1' % self.cls)
        A('s_branch rec%ds_a1' % self.cls)

    def emit(self, bail):
        A = self.A
        self.cold = []
        tag = self.tag
        A('%s_step:' % tag)
        if self.cls == 0:
            self.advance()
            A('s_waitcnt vmcnt(2)')
            self.b_first()
            if OPT.get('parklate', 1):
                A('s_barrier')
                self.hooks.rec_chores(A, bail)
        else:
            A('s_barrier')
            if OPT.get('advlate', 1):
                self.advance()
                self.b_first()
            if OPT.get('sigearly', 4):
                usual = A.label('usual')
                A('s_cmp_lt_u32 %s, %d' % (s(sSTEP), NSEG - OPT.get('sigearly', 4)))
                A('s_cbranch_scc1 %s' % usual)
                for x in self.hooks.rec_progress(1) or []:
                    A(x)
                A('%s:' % usual)
            self.stamp(8, 41)
        if self.cls == 1:
            self.poll_own()
        if self.cls == 1:
            self.trace(vMST)
        self.stamp(0, 41)
        A('s_barrier')
        self.stamp(14, 41)
        A('%s_a1:' % tag)
        self.stamp(1)
        self.phase_a1()
        if self.cls == 0:
            self.stamp(3)
            if not OPT.get('rp1', 0):
                self.repoison()
        A('s_waitcnt lgkmcnt(0)')
        if self.cls == 1:
            self.trace(vTCH)
        A('s_barrier')
        self.stamp(2)
        self.phase_a2()
        self.stamp(4)
        self.phase_s()
        A('s_cmp_eq_u32 %s, %d' % (s(sSTEP), NSEG - 1))
        A('s_cbranch_scc1 %s_last' % tag)
        self.stamp(5)
        self.softmax_pv()
        self.stamp(6)
        self.phase_d()
        self.trace(vML4 if self.cls == 0 else vSEL)
        self.stamp(7)
        if self.cls == 1:
            A('s_waitcnt vmcnt(2)')
            if not OPT.get('advlate', 1):
                self.advance()
                self.b_first()
            A('s_branch %s_step' % tag)
        else:
            idle = A.label('idle')
            A('s_cmp_ge_u32 %s, 40' % s(sRED))
            A('s_cbranch_scc1 %s' % idle)
            self.reduce()
            self.trace(vML2)
            self.stamp(8)
            if not OPT.get('parklate', 1):
                A('s_barrier')
                self.hooks.rec_chores(A, bail)
            A('s_branch %s_step' % tag)
            A('%s:' % idle)
            A('s_waitcnt vmcnt(2)')
            if not OPT.get('parklate', 1):
                A('s_barrier')
            A('s_branch %s_step' % tag)

        A('%s_last:' % tag)
        A('s_waitcnt vmcnt(0)')
        self.hooks.rec_signal_last(A)
        if self.stamps:
            A('s_memrealtime %s' % s(sST, 2))
            A('s_memtime %s' % s(sST + 2, 2))
            A('s_waitcnt lgkmcnt(0)')
            A('s_mov_b32 %s, %s' % (s(sSTAMP + 12), s(sST)))
            A('s_mov_b32 %s, %s' % (s(sSTAMP + 13), s(sST + 2)))
            A('s_mov_b32 %s, %s' % (s(sSTAMP + 9), s(sSPIN)))
            for k in range(16):
                A('v_writelane_b32 v%d, %s, %d' % (T0 + 1, s(sSTAMP + k), k))
            A('s_lshl_b32 %s, %s, 5' % (s(sT), s(sTEAM)))
            A('s_add_u32 %s, %s, %s' % (s(sT), s(sT), s(sHEAD)))
            A('s_lshl_b32 %s, %s, 2' % (s(sT), s(sT)))
            A('s_add_u32 %s, %s, %s' % (s(sT), s(sT), s(sWAVE)))
            A('s_lshl_b32 %s, %s, 7' % (s(sT), s(sT)))
            A('s_add_u32 %s, %s, 0x%x' % (s(sT), s(sT), WS_STAMP))
            A('v_lshrrev_b32 v%d, 2, v%d' % (T0, vLIN))
            if OPT.get('trace', 0):
                A('s_sub_u32 %s, %s, 0x%x' % (s(sOWN), s(sT), WS_STAMP))
                A('s_lshl_b32 %s, %s, 3' % (s(sOWN), s(sOWN)))
                A('s_add_u32 %s, %s, 0x%x' % (s(sOWN), s(sOWN), WS_TRACE))
                for k, r in enumerate((vML4, vML2, vML2) if self.cls == 0 else (vMST, vTCH, vSEL)):
                    A('buffer_store_dword v%d, v%d, %s, %s offen offset:%d' % (r, T0, srd(SRD_WS), s(sOWN), k * 256))
            A('s_mov_b32 exec_hi, 0')
            A('buffer_store_dword v%d, v%d, %s, %s offen' % (T0 + 1, T0, srd(SRD_WS), s(sT)))
            A('s_waitcnt vmcnt(0)')
            A('s_mov_b64 exec, -1')
        if DIAG['on'] == 3:
            mark(A, 3, sHEAD, 192)
        self.hooks.rec_done(A)
        A('s_endpgm')
        for name, body in self.cold:
            A('%s:' % name)
            body(bail)


def rec_setup(A):
    build_srd(A, SRD_A, 'mem0')
    t0, t1, t2, t3 = T0, T0 + 1, T0 + 2, T0 + 3
    A('v_and_b32 v%d, 7, v0' % t0)
    A('v_lshrrev_b32 v%d, 3, v0' % t1)
    A('v_lshrrev_b32 v%d, 3, v%d' % (t2, t1))
    A('v_lshl_add_u32 v%d, v%d, 3, v%d' % (t2, t2, t0))
    A('v_and_b32 v1, 7, v%d' % t1)
    A('v_lshlrev_b32 v%d, 4, v%d' % (t2, t2))
    A('v_lshl_add_u32 v%d, v1, 1, v%d' % (t2, t2))
    A('v_and_b32 v%d, 16, v%d' % (t3, t1))
    A('v_and_b32 v1, 3, v%d' % t1)
    A('v_lshl_add_u32 v%d, v1, 2, v%d' % (t3, t3))
    A('v_bfe_u32 v1, v%d, 2, 1' % t1)
    A('v_lshl_add_u32 v%d, v1, 1, v%d' % (t3, t3))
    A('v_bfe_u32 v1, v%d, 3, 1' % t1)
    A('v_add_u32 v%d, v1, v%d' % (t3, t3))
    A('v_mul_u32_u24 v%d, 640, v%d' % (t0, t0))
    A('v_add_lshl_u32 v%d, v%d, v%d, 1' % (t0, t0, t3))
    A('s_mul_i32 %s, %s, 640' % (s(sOWN), s(sTEAM)))
    A('s_sub_u32 %s, 640, %s' % (s(sLATE), s(sOWN)))
    for T in range(20):
        A('buffer_load_ushort v%d, v%d, %s, %s offen offset:%d'
          % (32 + T, t0, srd(SRD_A), s(sOWN if T < 10 else sLATE), (T % 10) * 64))
    for T in range(20):
        A('s_waitcnt vmcnt(%d)' % (19 - T))
        A('ds_write_b16 v%d, v%d offset:%d' % (t2, 32 + T, L_MEMT + T * 512))
    for r, n in ((SRD_A, 'wq'), (SRD_B, 'wk'), (SRD_C, 'wv'), (SRD_D, 'wo')):
        build_srd(A, r, n)
    A('v_and_b32 v0, 63, v0')
    n, g, tt, aa = T0, T0 + 1, T0 + 2, T0 + 3
    w = s(sWAVE)
    A('v_and_b32 v%d, 15, v0' % n)
    A('v_lshrrev_b32 v%d, 4, v0' % g)
    A('v_bfe_u32 v%d, v0, 2, 2' % tt)
    A('v_and_b32 v%d, 1, v0' % aa)
    A('v_bfe_u32 v%d, v0, 3, 1' % vIDX)
    A('v_mul_u32_u24 v%d, 0x5555, v%d' % (vIDX, vIDX))
    A('v_add_u32 v%d, 0x8888, v%d' % (vIDX, vIDX))
    A('v_lshlrev_b32 v%d, 4, v0' % vLIN)
    A('v_and_b32 v%d, 7, v0' % vAR)
    A('v_lshl_add_u32 v%d, v%d, 3, v%d' % (vAR, g, vAR))
    A('v_lshlrev_b32 v%d, 4, v%d' % (vAR, vAR))
    A('s_mul_i32 %s, %s, %d' % (s(sT), w, 18 * 2048))
    A('s_mul_i32 %s, %s, %d' % (s(sOWN), w, 14 * 2048))
    A('s_add_u32 %s, %s, %d' % (s(sOWN), s(sOWN), 8 * 2048))
    A('s_cmp_lt_u32 %s, 2' % w)
    A('s_cselect_b32 %s, %s, %s' % (s(sT), s(sT), s(sOWN)))
    A('s_add_u32 %s, %s, %d' % (s(sT), s(sT), L_WL))
    A('v_add_u32 v%d, %s, v%d' % (vBL, s(sT), vLIN))
    A('v_lshrrev_b32 v%d, 1, v%d' % (vQW, g))
    A('v_mul_u32_u24 v%d, 288, v%d' % (vQW, vQW))
    A('v_lshl_add_u32 v%d, v%d, 4, v%d' % (vQW, n, vQW))
    A('v_and_b32 v%d, 1, v%d' % (T0 + 4, g))
    A('v_lshl_add_u32 v%d, v%d, 3, v%d' % (vQW, T0 + 4, vQW))
    A('s_mul_i32 %s, %s, 576' % (s(sT), w))
    A('s_add_u32 %s, %s, %d' % (s(sT), s(sT), L_QT))
    A('v_add_u32 v%d, %s, v%d' % (vQW, s(sT), vQW))
    A('v_and_b32 v%d, 1, v%d' % (vQR, tt))
    A('v_mul_u32_u24 v%d, 288, v%d' % (vQR, vQR))
    A('v_lshrrev_b32 v%d, 1, v%d' % (T0 + 5, tt))
    A('v_lshl_add_u32 v%d, v%d, 2, v%d' % (T0 + 5, g, T0 + 5))
    A('v_lshl_add_u32 v%d, v%d, 4, v%d' % (vQR, T0 + 5, vQR))
    A('v_lshl_add_u32 v%d, v%d, 3, v%d' % (vQR, aa, vQR))
    A('v_add_u32 v%d, %d, v%d' % (vQR, L_QT, vQR))
    A('s_lshl_b32 %s, %s, 9' % (s(sT), w))
    A('s_add_u32 %s, %s, %d' % (s(sT), s(sT), L_OX))
    A('v_bfe_u32 v%d, v0, 3, 1' % vOXW)
    A('v_lshl_add_u32 v%d, v%d, 11, v%d' % (vOXW, vOXW, vAR))
    A('v_add_u32 v%d, %s, v%d' % (vOXW, s(sT), vOXW))
    A('v_lshlrev_b32 v%d, 4, v%d' % (vSEL, aa))
    A('v_mov_b32 v%d, 0x3f80' % (T0 + 5))
    A('v_lshlrev_b32 v%d, v%d, v%d' % (vSEL, vSEL, T0 + 5))
    A('v_lshrrev_b32 v%d, 3, v%d' % (vPST, n))
    A('v_lshrrev_b32 v%d, 1, v%d' % (T0 + 5, g))
    A('v_lshl_add_u32 v%d, v%d, 1, v%d' % (vPST, vPST, T0 + 5))
    A('v_lshlrev_b32 v%d, 12, v%d' % (vPST, vPST))
    A('v_lshl_add_u32 v%d, v%d, 6, v%d' % (vPST, T0 + 4, vPST))
    A('v_and_b32 v%d, 7, v0' % (T0 + 5))
    A('v_lshl_add_u32 v%d, v%d, 3, v%d' % (vPST, T0 + 5, vPST))
    A('v_min_u32 v%d, 39, v0' % vTCH)
    A('v_lshlrev_b32 v%d, 7, v%d' % (vTCH, vTCH))
    A('s_and_b32 %s, %s, 1' % (s(sRED), w))
    A('s_lshl_b32 %s, %s, 5' % (s(sRED), s(sRED)))
    A('s_add_u32 %s, %s, %s' % (s(sRED), s(sRED), s(sHEAD)))
    A('s_mul_i32 %s, %s, 40' % (s(sPL), s(sTEAM)))
    A('s_add_u32 %s, %s, %s' % (s(sPL), s(sPL), s(sRED)))
    A('s_lshl_b32 %s, %s, 12' % (s(sPL), s(sPL)))
    A('s_add_u32 %s, %s, 0x%x' % (s(sPL), s(sPL), WS_PART))
    A('s_cmp_lt_u32 %s, 40' % s(sRED))
    A('s_cselect_b32 %s, %s, 0x40000000' % (s(sPL), s(sPL)))
    A('s_mov_b32 %s, 0x40000000' % s(sPLP))
    A('v_bfe_u32 v%d, v0, 2, 1' % (T0 + 5))
    A('v_lshl_add_u32 v%d, v%d, 1, v%d' % (vMST, T0 + 4, T0 + 5))
    A('v_lshl_add_u32 v%d, v%d, 1, v%d' % (vMST, vMST, aa))
    A('v_bfe_u32 v%d, v0, 3, 1' % (T0 + 5))
    A('v_lshl_add_u32 v%d, v%d, 1, v%d' % (vMST, vMST, T0 + 5))
    A('v_lshrrev_b32 v%d, 5, v0' % (T0 + 5))
    A('v_lshl_add_u32 v%d, v%d, 1, v%d' % (vMST, vMST, T0 + 5))
    A('s_lshl_b32 %s, %s, 7' % (s(sT), s(sRED)))
    A('v_lshl_add_u32 v%d, v%d, 2, %s' % (vMST, vMST, s(sT)))
    A('s_mov_b32 %s, 0x33333333' % s(sEXM))
    A('s_mov_b32 %s, 0x33333333' % s(sEXM + 1))
    A('s_and_b32 %s, %s, 1' % (s(sT), w))
    A('s_mul_i32 %s, %s, 2560' % (s(sT), s(sT)))
    A('v_add_u32 v%d, %s, v%d' % (vML4, s(sT), vLIN))
    A('s_add_u32 %s, %s, 2048' % (s(sT), s(sT)))
    A('v_lshl_add_u32 v%d, v0, 3, %s' % (vML2, s(sT)))
    A('s_lshl_b32 %s, %s, 11' % (s(sT), w))
    A('v_add_u32 v%d, %s, v%d' % (vVX, s(sT), vLIN))
    A('s_add_u32 %s, %s, %d' % (s(sKXM), s(sT), L_KX))
    A('s_lshl_b32 %s, %s, 9' % (s(sT), w))
    A('v_lshl_add_u32 v%d, v0, 3, %s' % (vPUB, s(sT)))
    A('s_mov_b32 %s, 0x%x' % (s(sSCL), f2u(SCL)))
    A('s_mov_b32 %s, 0x%x' % (s(sSCL + 1), f2u(SCL)))
    A('s_mov_b32 %s, 0' % s(sSTEP))
    A('s_mov_b32 %s, %d' % (s(sTAG), 80 * 4096))
    A('s_mov_b32 %s, 0' % s(sSPIN))
    A('s_mul_i32 %s, %s, %d' % (s(sMO), s(sTEAM), 64 * 5120))
    A('s_sub_u32 %s, %d, %s' % (s(sMXW), WS_MEMX + 65 * 5120, s(sMO)))
    A('s_cmp_lt_u32 %s, 40' % s(sRED))
    A('s_cselect_b32 %s, %s, 0x40000000' % (s(sMXW), s(sMXW)))
    A('s_add_u32 %s, %s, 0x%x' % (s(sMX), s(sMO), WS_MEMX))
    A('s_add_u32 %s, %s, 0x%x' % (s(sMO), s(sMO), WS_MEMO))
    A('s_add_u32 %s, %s, 5120' % (s(sMOW), s(sMO)))
    A('s_lshl_b32 %s, %s, 13' % (s(sKVK), s(sHEAD)))
    A('s_add_u32 %s, %s, 0x%x' % (s(sKVV), s(sKVK), WS_V))
    A('s_add_u32 %s, %s, 0x%x' % (s(sKVK), s(sKVK), WS_K))
    A('s_lshl_b32 %s, %s, 11' % (s(sT), s(sHEAD)))
    A('s_add_u32 %s, %s, 0x%x' % (s(sPUB), s(sT), WS_KM))
    A('s_add_u32 %s, %s, 0x%x' % (s(sPUBV), s(sT), WS_VM))
    A('s_cmp_eq_u32 %s, 0' % s(sTEAM))
    A('s_cselect_b32 %s, %s, 0x40000000' % (s(sPUB), s(sPUB)))
    A('s_cselect_b32 %s, 0x40000000, %s' % (s(sPUBV), s(sPUBV)))
    A('s_waitcnt lgkmcnt(0)')


def emit_rec(A, hooks, bail, stamps=False):
    rec_setup(A)
    A('s_cmp_ge_u32 %s, 2' % s(sWAVE))
    A('s_cbranch_scc1 rec_load1')
    for cls in (0, 1):
        Rec(A, cls, True, hooks, stamps).prologue(bail)
        for fast in (True, False):
            Rec(A, cls, fast, hooks, stamps).emit(bail)
```

```python
from asmlib import Asm, v, a, s, u

S, D, H, DH, M, SEG, NSEG, F = 2048, 640, 32, 128, 8, 32, 64, 1728

WS_BYTES = 268435456
ACT = S * D * 2
WS_FLAG = 0x0
FLAG_BYTES = 0x20000
WS_MOD = 0x20000
WS_STAMP = 0x28000
WS_PART = 0x40000
WS_MEMO = 0x100000
WS_MEMX = 0x200000
WS_KM = 0x400000
WS_VM = 0x800000
WS_H = 0xC00000
WS_XA = WS_H + ACT
WS_H2 = WS_XA + ACT
WS_HN = WS_H2 + ACT
WS_T = WS_HN + ACT
WS_X1 = WS_T + ACT
WS_U = 0x1B00000
WS_Q = 0x2200000
WS_K = 0x3200000
WS_V = 0x4200000
WS_O = 0x5200000
assert WS_X1 + ACT <= WS_U and WS_U + S * F * 2 <= WS_Q

PTR = {n: 32 + 2 * i for i, n in enumerate(
    ['x', 'mem0', 'wq', 'wk', 'wv', 'wo', 'seglen', 'bx', 'w1', 'w2', 'w3', 'w4', 'c', 'wmod', 'out', 'dbg', 'ws'])}
NBYTES = {'x': ACT, 'mem0': M * D * 2, 'wq': D * 4096 * 2, 'wk': D * 4096 * 2, 'wv': D * 4096 * 2,
          'wo': D * 4096 * 2, 'w1': D * D * 2, 'w2': D * D * 2, 'w3': D * F * 2, 'w4': D * F * 2,
          'c': D * 2, 'wmod': D * 6 * D * 2, 'out': ACT, 'dbg': 256, 'ws': WS_BYTES}
SRD_WS, SRD_A, SRD_B, SRD_C, SRD_D, SRD_DBG = 8, 12, 16, 20, 24, 28
sWAVE, sTEAM, sHEAD, sFAST, sWIDX = 66, 67, 68, 69, 70
SPIN_LIMIT = 1 << 18
WS_TRACE = 0x6200000
WS_TL = 0x30000
DIAG = {'on': False}


def srd(n):
    return s(n, 4)


def build_srd(A, dst, name):
    p = PTR[name]
    A('s_mov_b32 %s, %s' % (s(dst), s(p)))
    A('s_and_b32 %s, %s, 0xffff' % (s(dst + 1), s(p + 1)))
    A('s_mov_b32 %s, 0x%x' % (s(dst + 2), NBYTES[name]))
    A('s_mov_b32 %s, 0x20000' % s(dst + 3))


def kernel_entry(A, name, nwg):
    A('.p2align 8')
    A('%s:' % name)
    A('s_cmp_ge_u32 s2, %d' % nwg)
    A('s_cbranch_scc1 %s_exit' % name)
    A('s_load_dwordx16 s[32:47], s[0:1], 0')
    A('s_load_dwordx16 s[48:63], s[0:1], 64')
    A('s_load_dwordx2 s[64:65], s[0:1], 128')
    A('v_lshrrev_b32 v1, 6, v0')
    A('s_nop 0')
    A('v_readfirstlane_b32 %s, v1' % s(sWAVE))
    A('s_waitcnt lgkmcnt(0)')
    build_srd(A, SRD_WS, 'ws')
    build_srd(A, SRD_DBG, 'dbg')
    for r in (SRD_A, SRD_B, SRD_C, SRD_D):
        build_srd(A, r, 'ws')


def kernel_exit(A, name):
    A('%s_exit:' % name)
    A('s_endpgm')


def descriptor(name, vgpr=512, accum=256):
    return '\n'.join([
        '.amdhsa_kernel %s' % name,
        '  .amdhsa_next_free_vgpr %d' % vgpr,
        '  .amdhsa_next_free_sgpr 102',
        '  .amdhsa_accum_offset %d' % accum,
        '  .amdhsa_group_segment_fixed_size 0',
        '  .amdhsa_kernarg_size 136',
        '  .amdhsa_user_sgpr_count 2',
        '  .amdhsa_user_sgpr_kernarg_segment_ptr 1',
        '  .amdhsa_system_sgpr_workgroup_id_x 1',
        '  .amdhsa_float_denorm_mode_32 3',
        '.end_amdhsa_kernel', ''])


def spin_guard(A, cnt, back, bail):
    A('s_add_u32 %s, %s, 1' % (s(cnt), s(cnt)))
    A('s_cmp_lt_u32 %s, 0x%x' % (s(cnt), SPIN_LIMIT))
    A('s_cbranch_scc1 %s' % back)
    A('s_branch %s' % bail)


def f2u(x):
    import struct
    return struct.unpack('<I', struct.pack('<f', x))[0]


def mark(A, k, idx_sreg, base=0):
    if DIAG['on'] == 3:
        return dbg_mark(A, k, idx_sreg, base)
    if not DIAG['on'] or (DIAG['on'] == 2 and not (k == 7 or base == 256)):
        return
    skip = A.label('nomark')
    A('s_cmp_lg_u32 %s, 0' % s(sWAVE))
    A('s_cbranch_scc1 %s' % skip)
    A('s_memrealtime s[46:47]')
    A('s_waitcnt lgkmcnt(0)')
    A('v_mov_b32 v2, s46')
    A('s_lshl_b32 s46, %s, 6' % s(idx_sreg))
    A('s_add_u32 s46, s46, %d' % (WS_TL + base * 64 + 4 * k))
    A('v_mov_b32 v3, 0')
    A('s_mov_b64 exec, 1')
    A('buffer_store_dword v2, v3, %s, s46 offen' % srd(SRD_WS))
    A('s_mov_b64 exec, -1')
    A('%s:' % skip)


def dbg_mark(A, k, idx_sreg, base):
    word = {(0, 256): 2, (4, 0): 3, (5, 0): 4, (7, 0): 5, (1, 192): 6, (2, 192): 7, (3, 192): 10, (0, 0): 11,
            (2, 0): 12, (12, 0): 13, (6, 0): 14}.get((k, base))
    if word is None:
        return
    skip = A.label('nomark')
    A('s_cmp_lg_u32 %s, 0' % s(sWAVE))
    A('s_cbranch_scc1 %s' % skip)
    A('s_memrealtime s[46:47]')
    A('s_waitcnt lgkmcnt(0)')
    if word == 2:
        A('s_not_b32 s46, s46')
    A('s_and_b32 s46, s46, 0xffffff')
    A('v_mov_b32 v%d, s46' % (79 if base == 192 else 2))
    A('s_mov_b64 exec, 1')
    A('buffer_atomic_umax v%d, off, %s, 0 offset:%d' % (79 if base == 192 else 2, srd(SRD_DBG), 4 * word))
    A('s_mov_b64 exec, -1')
    A('%s:' % skip)
```

```python
import math
from common import *
from asmlib import interleave

L_MEMT = 0
L_OX = 0
L_QT = 10240
L_KT = L_QT + 2304
L_TCH = L_KT + 2304
L_KX = 16384
L_WL = L_KX + 16384
L_END = L_WL + 131072
assert L_TCH + 512 <= L_KX and L_END <= 163840

vKXR, vIDX, vAR, vBL, vQW, vQR, vLIN, vOXW, vSEL, vPST, vTCH, vMST, vML4, vML2, vVX, vPUB = range(16)
VX, VXN = 16, 24
ACCV, ACCQ, ACCK = 32, 36, 40
AST = 44
BST = 56
T0 = 72
WREG = 80

sSTEP, sTAG, sSPIN, sMO, sMX, sMOW, sMXW, sKVK, sPUB, sT, sPT0, sPT1, sPT2, sPL, sRED, sOWN, sLATE, sFLG = range(72, 90)
sEXM = 90
sST = 92
sSTAMP = 32
sKVOK, sKXM, sPUBV, sPLP, sKVV, sTOF = 96, 97, 100, 101, 3, 4
sSCL = 98

OPT = {}
SCL = 128 ** -0.5 * math.log2(math.e)


def smf(acc, areg, breg):
    return 'v_smfmac_f32_16x16x64_bf16 %s, %s, %s, %s' % (v(acc, 4), v(areg, 4), u(breg, 8), v(vIDX))


class Rec:
    def __init__(self, A, cls, fast, hooks, stamps=False):
        self.A, self.cls, self.fast, self.hooks, self.stamps = A, cls, fast, hooks, stamps
        self.ntile = 3 if cls == 0 else 2
        klds = (3, 7) if cls == 0 else ()
        self.a_ops = []
        for c in range(10):
            if c in klds:
                self.a_ops.append(('k', c))
            self.a_ops.append(('v', c))
        self.d_ops = [(0, 0), (0, 1), (0, 2), (1, 3)] + ([(2, 0), (2, 1)] if cls == 0 else [])
        self.lds_ops = self.a_ops + self.d_ops
        self.nlds = len(self.lds_ops)
        self.slots = [BST, BST + 8, T0] if cls == 0 else [BST, BST + 8]
        self.d_slots = [VX, AST, T0]
        r = WREG
        self.w, self.wo = {}, {}
        for m in 'qkv':
            for c in range(20):
                if (m, c) not in self.lds_ops:
                    self.w[m, c] = r
                    r += 8
        for t in range(self.ntile):
            for c in range(4):
                if (t, c) not in self.lds_ops:
                    self.wo[t, c] = r
                    r += 8
        assert r == 512
        self.tag = 'rec%d%s' % (cls, 'f' if fast else 's')

    def stamp(self, k, step=40):
        if not self.stamps or not (OPT.get('smask', 0xffff) >> k) & 1:
            return
        A = self.A
        skip = A.label('nostamp')
        A('s_cmp_lg_u32 %s, %d' % (s(sSTEP), step))
        A('s_cbranch_scc1 %s' % skip)
        A('s_memtime %s' % s(sST, 2))
        A('s_waitcnt lgkmcnt(0)')
        A('s_mov_b32 %s, %s' % (s(sSTAMP + k), s(sST)))
        A('%s:' % skip)

    def trace(self, reg):
        if not OPT.get('trace', 0):
            return
        A = self.A
        A('s_memrealtime %s' % s(sST, 2))
        A('s_waitcnt lgkmcnt(0)')
        A('s_mov_b32 m0, %s' % s(sSTEP))
        A('s_nop 0')
        A('v_writelane_b32 v%d, %s, m0' % (reg, s(sST)))

    def load_weights(self, bail):
        A = self.A
        vW, vWo, vSW, vSR, vSO = T0, T0 + 1, T0 + 2, T0 + 3, T0 + 4
        t0, t1 = T0 + 5, T0 + 6
        A('s_lshl_b32 %s, %s, 3' % (s(sT), s(sWAVE)))
        A('v_lshrrev_b32 v%d, 4, v0' % t0)
        A('v_add_u32 v%d, %s, v%d' % (t0, s(sT), t0))
        A('v_and_b32 v%d, 15, v0' % t1)
        A('v_lshlrev_b32 v%d, 13, v%d' % (vW, t0))
        A('v_lshl_add_u32 v%d, v%d, 4, v%d' % (vW, t1, vW))
        A('v_lshrrev_b32 v%d, 2, v0' % t0)
        A('v_and_b32 v%d, 3, v0' % t1)
        A('v_mul_u32_u24 v%d, 1280, v%d' % (vWo, t0))
        A('v_lshl_add_u32 v%d, v%d, 4, v%d' % (vWo, t1, vWo))
        A('s_lshl_b32 %s, %s, 11' % (s(sT), s(sWAVE)))
        A('s_add_u32 %s, %s, %d' % (s(sT), s(sT), L_KX))
        A('v_add_u32 v%d, %s, v%d' % (vSW, s(sT), vLIN))
        A('v_and_b32 v%d, 15, v0' % t0)
        A('v_lshl_add_u32 v%d, v%d, 2, %s' % (t0, t0, s(sT)))
        A('v_and_b32 v%d, 15, v0' % vSR)
        A('s_lshl_b32 %s, %s, 6' % (s(sT), s(sWAVE)))
        A('s_add_u32 %s, %s, %d' % (s(sT), s(sT), L_KX))
        A('v_lshl_add_u32 v%d, v%d, 2, %s' % (vSR, vSR, s(sT)))
        A('v_bfe_u32 v%d, v0, 4, 1' % t1)
        A('v_lshl_add_u32 v%d, v%d, 9, v%d' % (vSR, t1, vSR))
        A('v_lshrrev_b32 v%d, 5, v0' % t1)
        A('v_lshl_add_u32 v%d, v%d, 8, v%d' % (vSR, t1, vSR))
        A('v_lshrrev_b32 v%d, 4, v0' % t1)
        A('v_lshl_add_u32 v%d, v%d, 8, v%d' % (vSO, t1, t0))
        A('s_lshl_b32 %s, %s, 8' % (s(sT), s(sHEAD)))
        A('s_mul_i32 %s, %s, %d' % (s(sOWN), s(sTEAM), 320 * 8192))
        A('s_sub_u32 %s, %d, %s' % (s(sLATE), 320 * 8192, s(sOWN)))
        A('s_add_u32 %s, %s, %s' % (s(sOWN), s(sOWN), s(sT)))
        A('s_add_u32 %s, %s, %s' % (s(sLATE), s(sLATE), s(sT)))

        if self.cls == 0:
            A('s_mul_i32 %s, %s, 3' % (s(sPT0), s(sWAVE)))
        else:
            A('s_lshl_b32 %s, %s, 1' % (s(sPT0), s(sWAVE)))
            A('s_add_u32 %s, %s, 2' % (s(sPT0), s(sPT0)))
        A('s_mul_i32 %s, %s, %d' % (s(sPT1), s(sHEAD), 128 * 1280))
        A('s_mul_i32 %s, %s, 640' % (s(sT), s(sTEAM)))
        A('s_add_u32 %s, %s, %s' % (s(sPT1), s(sPT1), s(sT)))
        A('s_lshl_b32 %s, %s, 6' % (s(sT), s(sPT0)))
        A('s_add_u32 %s, %s, %s' % (s(sPT1), s(sPT1), s(sT)))

        nt = ' nt' if OPT.get('nt', 0) else ''

        def request(op, dst):
            for h in range(2):
                if op[0] in ('q', 'k', 'v'):
                    c = op[1]
                    A('s_add_u32 %s, %s, 0x%x' % (s(sT), s(sOWN if c < 10 else sLATE), (32 * (c % 10) + 4 * h) * 8192))
                    A('buffer_load_dwordx4 %s, v%d, %s, %s offen%s'
                      % (u(dst + 4 * h, 4), vW, srd({'q': SRD_A, 'k': SRD_B, 'v': SRD_C}[op[0]]), s(sT), nt))
                else:
                    A('s_add_u32 %s, %s, %d' % (s(sT), s(sPT1), (32 * op[1] + 16 * h) * 1280 + 64 * op[0]))
                    A('buffer_load_dwordx4 %s, v%d, %s, %s offen%s' % (u(dst + 4 * h, 4), vWo, srd(SRD_D), s(sT), nt))

        def arrange(i, op, dst):
            shared = op[0] in ('q', 'k', 'v')
            base = (i % 2) * 8192 if shared else 0
            for h in range(2):
                A('ds_write_b128 v%d, %s offset:%d' % (vSW, u(dst + 4 * h, 4), base + h * 1024))
            if shared:
                A('s_waitcnt lgkmcnt(0)')
                A('s_barrier')
            for k in range(4):
                if shared:
                    o = base // 256 + 8 * k
                    A('ds_read2st64_b32 %s, v%d offset0:%d offset1:%d' % (u(dst + 2 * k, 2), vSR, o, o + 4))
                else:
                    A('ds_read2_b32 %s, v%d offset0:%d offset1:%d'
                      % (u(dst + 2 * k, 2), vSO if k < 2 else t0, 32 * (k & 1), 32 * (k & 1) + 16))
        A('v_add_u32 v%d, 1024, v%d' % (t0, vSO))
        first = [('v', c) for c in range(10)] + [('k', 3), ('k', 7)]
        rest = [(m, c) for c in range(20) for m in 'qkv' if (m, c) not in first]
        todo = [(op, self.w.get(op, self.w[rest[-12 + i]])) for i, op in enumerate(first)]
        todo += [(op, self.w[op]) for op in rest]
        todo += [(op, VX + 8 * i) for i, op in enumerate(self.d_ops)] + list(self.wo.items())
        issued, DEPTH, q = 0, OPT.get('wdepth', 8), []
        for i, (op, r) in enumerate(todo):
            while issued < min(len(todo), i + DEPTH):
                request(*todo[issued])
                q += [issued, issued]
                issued += 1
            if i == 30:
                q += ['x'] * (self.hooks.rec_early_request(A) or 0)
            k = len(q) - 1 - q[::-1].index(i)
            A('s_waitcnt vmcnt(%d)' % (len(q) - 1 - k))
            del q[:k + 1]
            if i == 31 + DEPTH:
                q += ['x'] * (self.hooks.rec_early_check(A, bail, self.cls) or 0)
            if i == 60:
                A('s_waitcnt lgkmcnt(0)')
                A('s_barrier')
            arrange(i, op, r)
            if op in self.lds_ops:
                k = self.lds_ops.index(op)
                A('s_waitcnt lgkmcnt(0)')
                A('ds_write_b128 v%d, %s offset:%d' % (vBL, u(r, 4), k * 2048))
                A('ds_write_b128 v%d, %s offset:%d' % (vBL, u(r + 4, 4), k * 2048 + 1024))
            elif i >= 60:
                A('s_waitcnt lgkmcnt(6)')
        A('s_waitcnt lgkmcnt(0)')
        A('s_barrier')
        A('v_add_u32 v%d, %d, v%d' % (vKXR, L_KX, vLIN))
        A('s_mul_i32 %s, %s, %d' % (s(sT), s(sTEAM), 40 * 4096))
        A('s_lshl_b32 %s, %s, 14' % (s(sPT0), s(sPT0)))
        A('s_add_u32 %s, %s, %s' % (s(sPT0), s(sPT0), s(sT)))
        A('s_lshl_b32 %s, %s, 7' % (s(sT), s(sHEAD)))
        A('s_add_u32 %s, %s, %s' % (s(sPT0), s(sPT0), s(sT)))
        A('s_add_u32 %s, %s, 0x%x' % (s(sPT0), s(sPT0), WS_PART))
        A('s_add_u32 %s, %s, 0x4000' % (s(sPT1), s(sPT0)))
        A('s_add_u32 %s, %s, 0x8000' % (s(sPT2), s(sPT0)))

    def seed_late(self):
        A, R = self.A, (ACCV, ACCV + 4, ACCV + 8)
        A('ds_read_b128 %s, v%d offset:%d' % (v(R[0], 4), vML4, L_MEMT + 5120))
        A('ds_read_b128 %s, v%d offset:%d' % (v(R[1], 4), vML4, L_MEMT + 6144))
        A('ds_read_b64 %s, v%d offset:%d' % (v(R[2], 2), vML2, L_MEMT + 5120))
        A('s_waitcnt lgkmcnt(0)')
        A('buffer_store_dwordx4 %s, v%d, %s, %s offen sc1' % (v(R[0], 4), vML4, srd(SRD_WS), s(sMX)))
        A('buffer_store_dwordx4 %s, v%d, %s, %s offen offset:1024 sc1' % (v(R[1], 4), vML4, srd(SRD_WS), s(sMX)))
        A('buffer_store_dwordx2 %s, v%d, %s, %s offen sc1' % (v(R[2], 2), vML2, srd(SRD_WS), s(sMX)))
        return 3

    def a_read(self, c, r):
        return 'ds_read_b128 %s, v%d offset:%d' % (v(r, 4), vAR, L_MEMT + c * 512)

    def w_reads(self, i, r):
        return ['ds_read_b128 %s, v%d offset:%d' % (v(r, 4), vBL, i * 2048),
                'ds_read_b128 %s, v%d offset:%d' % (v(r + 4, 4), vBL, i * 2048 + 1024)]

    def b_reads(self, i):
        return self.w_reads(i, self.slots[i % len(self.slots)]) if i < len(self.a_ops) else []

    def d_reads(self, i):
        return self.w_reads(len(self.a_ops) + i, self.d_slots[i % 3]) if i < len(self.d_ops) else []

    def b_first(self):
        for i in range(len(self.slots)):
            for x in self.b_reads(i):
                self.A(x)

    def mem_issue(self, soff, R):
        A = self.A
        A('buffer_load_dwordx4 %s, v%d, %s, %s offen sc1' % (v(R[0], 4), vML4, srd(SRD_WS), s(soff)))
        A('buffer_load_dwordx4 %s, v%d, %s, %s offen offset:1024 sc1' % (v(R[1], 4), vML4, srd(SRD_WS), s(soff)))
        A('buffer_load_dwordx2 %s, v%d, %s, %s offen sc1' % (v(R[2], 2), vML2, srd(SRD_WS), s(soff)))

    def mem_check(self, R):
        A, t, w = self.A, VXN + 6, VXN + 7
        x = [R[0] + i for i in range(4)] + [R[1] + i for i in range(4)] + [R[2], R[2] + 1]
        A('v_max3_u32 v%d, v%d, v%d, v%d' % (t, x[0], x[1], x[2]))
        A('v_max3_u32 v%d, v%d, v%d, v%d' % (w, x[3], x[4], x[5]))
        A('v_max3_u32 v%d, v%d, v%d, v%d' % (t, t, x[6], x[7]))
        A('v_max3_u32 v%d, v%d, v%d, v%d' % (w, w, x[8], x[9]))
        A('v_max_u32 v%d, v%d, v%d' % (t, t, w))
        A('v_cmp_eq_u32 vcc, -1, v%d' % t)

    def mem_write(self, R, lds_off):
        A = self.A
        A('ds_write_b128 v%d, %s offset:%d' % (vML4, v(R[0], 4), lds_off))
        A('ds_write_b128 v%d, %s offset:%d' % (vML4, v(R[1], 4), lds_off + 1024))
        A('ds_write_b64 v%d, %s offset:%d' % (vML2, v(R[2], 2), lds_off))

    OWN = (AST, AST + 4, AST + 8)
    LATE = (T0, T0 + 4, VXN)

    def retry_loop(self, name, issue, nloads, check, finish, back):
        def body(bail):
            A = self.A
            loop = A.label(name + '_loop')
            depth = OPT.get('depth', 2)
            A('s_mov_b64 exec, vcc')
            for _ in range(depth - 1):
                issue()
            A('%s:' % loop)
            A('s_mov_b64 exec, vcc')
            issue()
            A('s_mov_b64 exec, -1')
            A('s_waitcnt vmcnt(%d) ; racy-ok' % (nloads * (depth - 1)))
            check()
            done = A.label(name + '_done')
            A('s_cbranch_vccz %s' % done)
            spin_guard(A, sSPIN, loop, bail)
            A('%s:' % done)
            finish()
            A('s_branch %s' % back)
        return body

    def warm(self, n):
        for _ in range(n):
            self.A('v_mov_b32 v%d, v%d' % (vIDX, vIDX))
            self.A('s_nop 1')

    def poll_own(self):
        A = self.A
        top, retry = A.label('own'), A.label('own_retry')
        self.warm(OPT.get('d_own', 0))
        self.mem_issue(sMO, self.OWN)
        if OPT.get('latei', 0) == -2:
            self.mem_issue(sMX, self.LATE)
        if OPT.get('xlate', 0):
            A('s_barrier')
        self.warm(OPT.get('d_own2', 0))
        two = OPT.get('own2', 1)
        A('s_waitcnt vmcnt(3) ; racy-ok' if two else 's_waitcnt vmcnt(0)')
        self.mem_check(self.OWN)
        A('s_cbranch_vccnz %s' % retry)
        A('%s_got:' % top)
        self.mem_write(self.OWN, L_MEMT)
        if two:
            A('s_waitcnt vmcnt(0)')
        A('%s:' % top)
        loop = self.retry_loop('own', lambda: self.mem_issue(sMO, self.OWN), 3, lambda: self.mem_check(self.OWN),
                               lambda: (self.mem_write(self.OWN, L_MEMT), A('s_waitcnt vmcnt(0)')), top)

        def second(bail):
            if two:
                A('s_waitcnt vmcnt(0)')
                self.mem_check(self.OWN)
                A('s_cbranch_vccz %s_got' % top)
            loop(bail)
        self.cold.append((retry, second))
        if OPT.get('latei', 0) == -1:
            self.mem_issue(sMX, self.LATE)
        A('s_waitcnt lgkmcnt(0)')

    def take_late(self):
        A = self.A
        top, retry = A.label('late'), A.label('late_retry')
        A('s_waitcnt vmcnt(0)')
        self.mem_check(self.LATE)
        A('s_cbranch_vccnz %s' % retry)
        self.mem_write(self.LATE, L_MEMT + 5120)
        A('%s:' % top)
        self.cold.append((retry, self.retry_loop(
            'late', lambda: self.mem_issue(sMX, self.LATE), 3, lambda: self.mem_check(self.LATE),
            lambda: (self.mem_write(self.LATE, L_MEMT + 5120), A('s_waitcnt vmcnt(0)')), top)))

    def phase_a1(self):
        A = self.A
        ns = len(self.slots)
        q = [('b', i) for i in range(ns) for _ in range(2)]

        def issue(x, tagc):
            A(x)
            q.append(tagc)

        def need(tagc):
            if tagc in q:
                k = max(i for i, x in enumerate(q) if x == tagc)
                A('s_waitcnt lgkmcnt(%d)' % (len(q) - 1 - k))
                del q[:k + 1]
        for c in range(2):
            issue(self.a_read(c, AST + 4 * c), ('a', c))
        later = []
        for c in range(10):
            ar = AST + 4 * (c % 3)
            need(('a', c))
            for m, acc in (('q', ACCQ), ('k', ACCK), ('v', ACCV)):
                reload = []
                if (m, c) in self.w:
                    A(smf(acc, ar, self.w[m, c]))
                else:
                    i = self.lds_ops.index((m, c))
                    need(('b', i))
                    A(smf(acc, ar, self.slots[i % ns]))
                    reload = [(x, ('b', i + ns)) for x in self.b_reads(i + ns)]
                if m == 'q' and c + 2 < 10:
                    later.insert(0, (self.a_read(c + 2, AST + 4 * ((c + 2) % 3)), ('a', c + 2)))
                for x in later[:2]:
                    issue(*x)
                later = later[2:] + reload
            if c in (OPT.get('latei', 0), OPT.get('latej', -9)) and self.cls == 1:
                self.mem_issue(sMX, self.LATE)
            if c == OPT.get('latec', 8) and self.cls == 1:
                self.stamp(3)
                self.take_late()
                q += [None] * 3

    def prefetch(self):
        ws = srd(SRD_WS)
        x = ['buffer_load_dwordx4 %s, v%d, %s, %s offen offset:%d sc1' % (v(VXN + 4 * i, 4), vVX, ws, s(sKVV), i * 1024)
             for i in range(2)]
        x.append('s_mov_b32 m0, %s' % s(sKXM))
        x += ['buffer_load_dwordx4 v%d, %s, %s offen offset:%d sc1 lds' % (vVX, ws, s(sKVK), i * 1024) for i in range(2)]
        if self.cls == 0:
            x.append('s_mov_b32 m0, %d' % L_TCH)
            x.append('buffer_load_dword v%d, %s, %s offen sc1 lds' % (vTCH, ws, s(sTOF)))
        return x + (self.hooks.rec_progress(self.cls) or [])

    def kx_read(self, c):
        kx = BST + 8 * (c % 2)
        return ['ds_read_b128 %s, v%d offset:%d' % (v(kx, 4), vKXR, c * 1024),
                'ds_read_b128 %s, v%d offset:%d' % (v(kx + 4, 4), vKXR, (4 + c) * 1024)]

    def phase_a2(self):
        A = self.A
        ar = {10 + i: r for i, r in enumerate(list(range(AST, BST + 16, 4)) + [T0, T0 + 4])}
        ar[19] = ar[10]
        for c in range(10, 13):
            A(self.a_read(c, ar[c]))
        pre = self.prefetch()
        nsh = OPT.get('nsh', 5)
        for x in pre[:nsh]:
            A(x)
        self.rest = pre[5:] if OPT.get('restlate', 1) else []
        fill = [self.a_read(c, ar[c]) for c in range(13, 20)] + pre[nsh:5] + ([] if self.rest else pre[5:])
        waits = {10: 2, 11: 2, 12: 2, 13: 2, 14: 2, 15: 1, 17: 0}
        for c in range(10, 20):
            if c in waits:
                A('s_waitcnt lgkmcnt(%d)' % waits[c])
            elif fill:
                A(fill.pop(0))
            if c == 10:
                A(smf(ACCV, ar[c], self.w['v', c]))
                A(fill.pop(0))
            A(smf(ACCQ, ar[c], self.w['q', c]))
            if fill:
                A(fill.pop(0))
            A(smf(ACCK, ar[c], self.w['k', c]))
        for x in fill:
            A(x)
        vs = [smf(ACCV, ar[c], self.w['v', c]) for c in (13, 14, 15, 16, 11, 12, 17, 18, 19)]
        for x in vs[:3]:
            A(x)
        for acc, off in ((ACCQ, 0), (ACCK, 2304)):
            A('v_cvt_pk_bf16_f32 v%d, v%d, v%d' % (acc, acc, acc + 1))
            A('v_cvt_pk_bf16_f32 v%d, v%d, v%d' % (acc + 1, acc + 2, acc + 3))
            A('ds_write_b64 v%d, %s offset:%d' % (vQW, v(acc, 2), off))
        fill = [None, None] + self.kx_read(0) + self.kx_read(1)
        for x, y in zip(vs[3:], fill):
            A(x)
            if y:
                A(y)
        A('s_waitcnt lgkmcnt(4)')
        A('s_barrier')

    def publish(self, reg, soff):
        self.A('buffer_store_dwordx2 %s, v%d, %s, %s offen sc1' % (v(reg, 2), vPUB, srd(SRD_WS), s(soff)))

    def phase_s(self):
        A = self.A
        SX0, SX1, SM = ACCQ, ACCK, T0
        qk = [(AST, AST + 4), (AST + 8, T0 + 4)]

        def rd(c):
            q, k = qk[c % 2]
            return ['ds_read_b64_tr_b16 %s, v%d offset:%d' % (v(q, 2), vQR, c * 576),
                    'ds_read_b64_tr_b16 %s, v%d offset:%d' % (v(q + 2, 2), vQR, c * 576 + 32),
                    'ds_read_b64_tr_b16 %s, v%d offset:%d' % (v(k, 2), vQR, 2304 + c * 576),
                    'ds_read_b64_tr_b16 %s, v%d offset:%d' % (v(k + 2, 2), vQR, 2304 + c * 576 + 32)]
        def mm(acc, areg, q, first):
            A('v_mfma_f32_16x16x32_bf16 %s, %s, %s, %s' % (v(acc, 4), v(areg, 4), v(q, 4), '0' if first else v(acc, 4)))

        def tr(r, off):
            return ['ds_read_b64_tr_b16 %s, v%d offset:%d' % (v(r, 2), vQR, off),
                    'ds_read_b64_tr_b16 %s, v%d offset:%d' % (v(r + 2, 2), vQR, off + 32)]
        if not OPT.get('s2', 1):
            return self.phase_s_old(rd, qk)
        q = [AST, AST + 4, AST + 8, T0 + 4]
        for c in range(4):
            for x in tr(q[c], c * 576):
                A(x)
        self.publish(ACCK, sPUB)
        A('v_cvt_pk_bf16_f32 v%d, v%d, v%d' % (ACCV, ACCV, ACCV + 1))
        A('v_cvt_pk_bf16_f32 v%d, v%d, v%d' % (ACCV + 1, ACCV + 2, ACCV + 3))
        K = [BST, BST + 4, BST + 8, BST + 12]
        kx = lambda c, t, r: 'ds_read_b128 %s, v%d offset:%d' % (v(r, 4), vKXR, (4 * t + c) * 1024)
        A('s_waitcnt lgkmcnt(6)')
        mm(SX0, K[0], q[0], True)
        mm(SX1, K[1], q[0], True)
        A(kx(2, 0, K[0]))
        A('s_waitcnt lgkmcnt(5)')
        mm(SX0, K[2], q[1], False)
        A(kx(2, 1, K[1]))
        mm(SX1, K[3], q[1], False)
        A(kx(3, 0, K[2]))
        for x in self.rest:
            A(x)
        A(kx(3, 1, K[3]))
        self.publish(ACCV, sPUBV)
        A('v_xor_b32 v%d, 0x%x, v%d' % (vKXR, L_KX ^ (L_KX + 8192), vKXR))
        A('s_waitcnt lgkmcnt(2)')
        mm(SX0, K[0], q[2], False)
        mm(SX1, K[1], q[2], False)
        for x in tr(K[0], 2304):
            A(x)
        A('s_waitcnt lgkmcnt(2)')
        mm(SX0, K[2], q[3], False)
        for x in tr(K[1], 2304 + 576):
            A(x)
        mm(SX1, K[3], q[3], False)
        for x in tr(K[2], 2304 + 2 * 576) + tr(K[3], 2304 + 3 * 576):
            A(x)
        for r in range(4):
            A('v_mov_b32_dpp v%d, v%d quad_perm:[0,1,2,3] row_mask:0xf bank_mask:0xc' % (SX0 + r, SX1 + r))
        for c in range(4):
            A('s_waitcnt lgkmcnt(%d)' % (6 - 2 * c))
            mm(SM, K[c], q[c], c == 0)
            if c == 0:
                A('v_max3_f32 v%d, v%d, v%d, v%d' % (SX1, SX0, SX0 + 1, SX0 + 2))
            if c == 1:
                A('v_max_f32 v%d, v%d, v%d' % (SX1, SX1, SX0 + 3))

    def phase_s_old(self, rd, qk):
        A = self.A
        SX0, SX1, SM = ACCQ, ACCK, T0
        for x in rd(0) + rd(1):
            A(x)
        self.publish(ACCK, sPUB)
        A('v_cvt_pk_bf16_f32 v%d, v%d, v%d' % (ACCV, ACCV, ACCV + 1))
        A('v_cvt_pk_bf16_f32 v%d, v%d, v%d' % (ACCV + 1, ACCV + 2, ACCV + 3))

        def mm(c, i):
            q, k = qk[c % 2]
            kx = BST + 8 * (c % 2)
            acc, areg = ((SX0, kx), (SX1, kx + 4), (SM, k))[i]
            A('v_mfma_f32_16x16x32_bf16 %s, %s, %s, %s' % (v(acc, 4), v(areg, 4), v(q, 4), v(acc, 4) if c else '0'))
        A('s_waitcnt lgkmcnt(4)')
        for i in range(3):
            mm(0, i)
        A('s_waitcnt lgkmcnt(0)')
        nxt = rd(2) + self.kx_read(2)
        for i in range(3):
            mm(1, i)
            A(nxt[2 * i])
            A(nxt[2 * i + 1])
        nxt = rd(3) + self.kx_read(3)
        for x in nxt[:2]:
            A(x)
        for x in self.rest:
            A(x)
        A('s_waitcnt lgkmcnt(2)')
        mm(2, 0)
        A(nxt[2])
        A(nxt[3])
        mm(2, 1)
        A(nxt[4])
        A(nxt[5])
        mm(2, 2)
        self.publish(ACCV, sPUBV)
        A('s_waitcnt lgkmcnt(0)')
        mm(3, 2)
        A('v_xor_b32 v%d, 0x%x, v%d' % (vKXR, L_KX ^ (L_KX + 8192), vKXR))
        mm(3, 0)
        mm(3, 1)

    def softmax_pv(self):
        A = self.A
        X, Y, SM = ACCQ, ACCK, T0
        t, w = T0 + 4, T0 + 5
        P, PL, PH = Y, SM + 2, T0 + 6
        O0, O1, L, ONE, VM = AST + 4, BST + 8, AST + 8, AST, ACCV
        idm = 'quad_perm:[0,1,2,3]'
        full = 'row_mask:0xf bank_mask:0xf'
        for r in range(4):
            A('v_mov_b32 v%d, 0x3f803f80' % (ONE + r))
        A('v_mov_b64 %s, 0' % v(PH, 2))
        for r in range(2):
            A('v_mov_b32_dpp v%d, v%d %s row_mask:0xf bank_mask:0xc' % (SM + r, SM + 2 + r, idm))
        if OPT.get('s2', 1):
            A('v_max3_f32 v%d, v%d, v%d, v%d' % (t, SM, SM + 1, Y))
        else:
            for r in range(4):
                A('v_mov_b32_dpp v%d, v%d %s row_mask:0xf bank_mask:0xc' % (X + r, Y + r, idm))
            A('v_max3_f32 v%d, v%d, v%d, v%d' % (t, SM, SM + 1, X))
            A('v_max3_f32 v%d, v%d, v%d, v%d' % (w, X + 1, X + 2, X + 3))
            A('v_max_f32 v%d, v%d, v%d' % (t, t, w))
        A('v_mov_b64 %s, 0' % v(PL, 2))
        A('v_max_f32_dpp v%d, v%d, v%d row_ror:8 %s' % (t, t, t, full))
        for sw in ('v_permlane16_swap_b32', 'v_permlane32_swap_b32'):
            A('v_mov_b32 v%d, v%d' % (w, t))
            A('%s v%d, v%d' % (sw, t, w))
            A('v_max_f32 v%d, v%d, v%d' % (t, t, w))
        A('v_mul_f32 v%d, 0x%x, v%d' % (t, f2u(-SCL), t))
        for r in (X, X + 2, SM):
            A('v_pk_fma_f32 %s, %s, %s, %s op_sel_hi:[1,0,0]' % (v(r, 2), v(r, 2), s(sSCL, 2), v(t, 2)))
        for r in (X, X + 1, X + 2, X + 3, SM, SM + 1):
            A('v_exp_f32 v%d, v%d' % (r, r))
        A('v_cvt_pk_bf16_f32 v%d, v%d, v%d' % (P, X, X + 1))
        A('v_cvt_pk_bf16_f32 v%d, v%d, v%d' % (P + 1, X + 2, X + 3))
        A('v_cvt_pk_bf16_f32 v%d, v%d, v%d' % (t, SM, SM + 1))
        A('v_mov_b32_dpp v%d, v%d row_ror:8 %s' % (P + 2, P, full))
        A('v_mov_b32_dpp v%d, v%d row_ror:8 %s' % (P + 3, P + 1, full))
        A('v_mov_b32_dpp v%d, v%d %s row_mask:0x3 bank_mask:0xf' % (PL, t, idm))
        A('v_mov_b32_dpp v%d, v%d row_ror:8 row_mask:0x3 bank_mask:0xf' % (PL + 1, t))
        A('v_mfma_f32_16x16x32_bf16 %s, %s, %s, 0' % (v(L, 4), v(ONE, 4), v(P, 4)))
        A('v_mov_b32_dpp v%d, v%d %s row_mask:0xc bank_mask:0xf' % (PH, t, idm))
        A('v_mov_b32_dpp v%d, v%d row_ror:8 row_mask:0xc bank_mask:0xf' % (PH + 1, t))
        A('v_mfma_f32_16x16x32_bf16 %s, %s, %s, 0' % (v(O0, 4), v(VX, 4), v(P, 4)))
        A('v_mov_b64 %s, 0' % v(X, 2))
        A('v_mov_b64 %s, 0' % v(X + 2, 2))
        A('v_mfma_f32_16x16x32_bf16 %s, %s, %s, 0' % (v(O1, 4), v(VX + 4, 4), v(P, 4)))
        A('v_mfma_f32_16x16x16_bf16 %s, %s, %s, %s' % (v(L, 4), v(ONE, 2), v(PL, 2), v(L, 4)))
        if self.ntile == 3:
            A('v_mov_b64 %s, 0' % v(Y, 2))
            A('v_mov_b64 %s, 0' % v(Y + 2, 2))
        A('v_mfma_f32_16x16x16_bf16 %s, %s, %s, %s' % (v(O0, 4), v(VM, 2), v(PL, 2), v(O0, 4)))
        A('v_mfma_f32_16x16x16_bf16 %s, %s, %s, %s' % (v(O1, 4), v(VM, 2), v(PH, 2), v(O1, 4)))
        A('v_mov_b64 %s, 0' % v(ACCV, 2))
        A('v_mov_b64 %s, 0' % v(ACCV + 2, 2))
        A('v_rcp_f32 v%d, v%d' % (t, L))
        for r in (O0, O0 + 2, O1, O1 + 2):
            A('v_pk_mul_f32 %s, %s, %s op_sel_hi:[1,0]' % (v(r, 2), v(r, 2), v(t, 2)))
        for r in range(4):
            A('v_cvt_pk_bf16_f32 v%d, v%d, v%d' % (T0 + r, O0 + r, O1 + r))
        A('ds_write_b128 v%d, %s' % (vOXW, v(T0, 4)))
        for i in range(3):
            for x in self.d_reads(i):
                A(x)
        A('s_waitcnt lgkmcnt(6)')
        A('s_barrier')

    def phase_d(self):
        A = self.A
        for c in range(4):
            A('ds_read_b128 %s, v%d offset:%d' % (v(BST + 4 * c, 4), vAR, L_OX + c * 512))
        flav = '' if self.fast else ' sc1'

        def put(t):
            r = ACCV + 4 * t
            return ['v_cvt_pk_bf16_f32 v%d, v%d, v%d' % (r, r, r + 1),
                    'v_cvt_pk_bf16_f32 v%d, v%d, v%d' % (r + 1, r + 2, r + 3),
                    'buffer_store_dwordx2 %s, v%d, %s, %s offen%s' % (v(r, 2), vPST, srd(SRD_WS), s(sPT0 + t), flav)]
        out = []
        q, later = ['a0', 'a1', 'a2', 'a3'], []

        def need(x):
            if x in q:
                k = max(i for i, y in enumerate(q) if y == x)
                A('s_waitcnt lgkmcnt(%d)' % (len(q) - 1 - k))
                del q[:k + 1]
        for t in range(self.ntile):
            for c in range(4):
                need('a%d' % c)
                reload = []
                if (t, c) in self.wo:
                    A(smf(ACCV + 4 * t, BST + 4 * c, self.wo[t, c]))
                else:
                    i = self.d_ops.index((t, c))
                    need(i)
                    A(smf(ACCV + 4 * t, BST + 4 * c, self.d_slots[i % 3]))
                    reload = [(x, i + 3) for x in self.d_reads(i + 3)]
                for x, tg in later[:1]:
                    A(x)
                    q.append(tg)
                if not later and out and (t == 2 or c >= 2) and OPT.get('dint', 1):
                    A(out.pop(0))
                later = later[1:] + reload
            out += put(t)
        for x in out:
            A(x)

    def reduce(self):
        A = self.A
        top, retry = A.label('red'), A.label('red_retry')
        R, SEL, Z, t = BST, AST, AST + 4, AST + 8
        A('v_mov_b64 %s, 0' % v(SEL, 2))
        A('v_mov_b64 %s, 0' % v(SEL + 2, 2))
        for r in range(4):
            A('v_mov_b32_dpp v%d, v%d quad_perm:[0,1,2,3] row_mask:0xf bank_mask:0x%x' % (SEL + r, vSEL, 1 << r))
        def issue():
            for i in range(4):
                A('buffer_load_dwordx4 %s, v%d, %s, %s offen offset:%d sc1'
                  % (v(R + 4 * i, 4), vLIN, srd(SRD_WS), s(sPL), i * 1024))

        def prod(i, x=None):
            A('v_mfma_f32_16x16x32_bf16 %s, %s, %s, %s' % (v(Z, 4), v(x or R + 4 * i, 4), v(SEL, 4), v(Z, 4) if i else '0'))

        def scan(i, x=None):
            x = x or R + 4 * i
            if i == 0:
                A('v_max3_u32 v%d, v%d, v%d, v%d' % (t, x, x + 1, x + 2))
                A('v_max_u32 v%d, v%d, v%d' % (t, t, x + 3))
            else:
                A('v_max3_u32 v%d, v%d, v%d, v%d' % (t, t, x, x + 1))
                A('v_max3_u32 v%d, v%d, v%d, v%d' % (t, t, x + 2, x + 3))
            if i == 3:
                A('v_cmp_eq_u32 vcc, -1, v%d' % t)
        self.warm(OPT.get('d_red', 0))
        if OPT.get('redwait', 0) >= 0:
            A('s_waitcnt vmcnt(%d)' % OPT.get('redwait', 0))
        issue()
        two = OPT.get('red2', 1)
        R2 = [VX, VX + 4, T0, T0 + 4]
        for i in range(4):
            A('s_waitcnt vmcnt(%d)' % (3 if two else 3 - i))
            if two:
                A('buffer_load_dwordx4 %s, v%d, %s, %s offen offset:%d sc1'
                  % (v(R2[i], 4), vLIN, srd(SRD_WS), s(sPL), i * 1024))
            prod(i)
            scan(i)
        A('s_cbranch_vccnz %s' % retry)
        A('%s:' % top)
        loop = self.retry_loop('red', issue, 4, lambda: [scan(i) for i in range(4)],
                               lambda: [prod(i) for i in range(4)], top)

        def second(bail):
            if two:
                for i in range(4):
                    A('s_waitcnt vmcnt(%d)' % (3 - i))
                    prod(i, R2[i])
                    scan(i, R2[i])
                A('s_cbranch_vccz %s' % top)
                A('s_mov_b64 vcc, -1')
            loop(bail)
        self.cold.append((retry, second))
        A('v_permlane32_swap_b32 v%d, v%d' % (Z, Z + 2))
        A('v_permlane32_swap_b32 v%d, v%d' % (Z + 1, Z + 3))
        A('v_pk_add_f32 %s, %s, %s' % (v(Z, 2), v(Z, 2), v(Z + 2, 2)))
        A('v_cvt_pk_bf16_f32 v%d, v%d, v%d' % (t, Z, Z + 1))
        A('s_mov_b64 exec, %s' % s(sEXM, 2))
        own = 'buffer_store_dword v%d, v%d, %s, %s offen%s' % (t, vMST, srd(SRD_WS), s(sMOW), '' if self.fast else ' sc1')
        other = 'buffer_store_dword v%d, v%d, %s, %s offen sc1' % (t, vMST, srd(SRD_WS), s(sMXW))
        self.other = other.replace(s(sMXW), s(sT))
        for x in ((own,) if OPT.get('xlate', 0) else (own, other) if OPT.get('ownfirst', 0) else (other, own)):
            A(x)
        A('s_mov_b64 exec, -1')
        if OPT.get('ownwait', 0):
            A('s_waitcnt vmcnt(1)')

    def repoison(self):
        A = self.A
        A('v_mov_b64 %s, -1' % v(T0, 2))
        A('v_mov_b64 %s, -1' % v(T0 + 2, 2))
        for i in range(4):
            A('buffer_store_dwordx4 %s, v%d, %s, %s offen offset:%d%s'
              % (v(T0, 4), vLIN, srd(SRD_WS), s(sPLP), i * 1024, '' if self.fast else ' sc1'))

    def advance(self, first=False):
        A = self.A
        for r in range(0, 8, 2):
            A('v_mov_b64 %s, %s' % (v(VX + r, 2), v(VXN + r, 2)))
        for r in range(0, 12, 2):
            A('v_mov_b64 %s, 0' % v(ACCV + r, 2))
        A('s_xor_b32 %s, %s, 0x%x' % (s(sKXM), s(sKXM), 8192))
        for r in (sKVK, sKVV):
            A('s_add_u32 %s, %s, 0x%x' % (s(r), s(r), 32 * 8192))
        if not first:
            A('s_add_u32 %s, %s, 1' % (s(sSTEP), s(sSTEP)))
            A('s_mov_b32 %s, %s' % (s(sPLP), s(sPL)))
            for r in (sPT0, sPT1, sPT2, sPL):
                A('s_add_u32 %s, %s, %s' % (s(r), s(r), s(sTAG)))
            A('s_sub_u32 %s, 0, %s' % (s(sTAG), s(sTAG)))
            for r in (sMO, sMX, sMOW, sMXW):
                A('s_add_u32 %s, %s, %d' % (s(r), s(r), 5120 if r in (sMO, sMOW) else 16384))
            A('s_add_u32 %s, %s, 0x%x' % (s(sPUB), s(sPUB), 32 * 2048))
            A('s_add_u32 %s, %s, 0x%x' % (s(sPUBV), s(sPUBV), 32 * 2048))
        A('s_add_u32 %s, %s, 5120' % (s(sTOF), s(sMOW)))

    def prologue(self, bail):
        A = self.A
        A('rec_load%d:' % self.cls)
        if self.cls == 0:
            self.hooks.rec_probe(A)
        self.load_weights(bail)
        if DIAG['on'] == 3:
            mark(A, 1, sHEAD, 192)
        if DIAG['on']:
            A('s_waitcnt vmcnt(0)')
            A('s_memrealtime %s' % s(sST, 2))
            A('s_waitcnt lgkmcnt(0)')
        self.hooks.rec_wait_start(A, bail)
        if DIAG['on']:
            A('s_mov_b32 %s, %s' % (s(sSTAMP + 14), s(sST)))
        if self.cls == 1:
            self.seed_late()
        for x in self.prefetch()[:5]:
            A(x)
        A('s_waitcnt vmcnt(0)')
        self.advance(first=True)
        A('s_barrier')
        if self.stamps:
            A('s_memrealtime %s' % s(sST, 2))
            A('s_memtime %s' % s(sST + 2, 2))
            A('s_waitcnt lgkmcnt(0)')
            A('s_mov_b32 %s, %s' % (s(sSTAMP + 10), s(sST)))
            A('s_mov_b32 %s, %s' % (s(sSTAMP + 11), s(sST + 2)))
            A('s_mov_b32 %s, 0' % s(sSTAMP + 15))
        if DIAG['on'] == 3 and self.cls == 0:
            mark(A, 2, sHEAD, 192)
            A('s_waitcnt vmcnt(0)')
        self.b_first()
        A('s_cmp_lg_u32 %s, 0' % s(sFAST))
        A('s_cbranch_scc1 rec%df_a1' % self.cls)
        A('s_branch rec%ds_a1' % self.cls)

    def emit(self, bail):
        A = self.A
        self.cold = []
        tag = self.tag
        A('%s_step:' % tag)
        if self.cls == 0:
            if OPT.get('red2', 1):
                A('s_waitcnt vmcnt(2)')
            self.advance()
            A('s_waitcnt vmcnt(%d)' % (1 if OPT.get('xlate', 0) else 2))
            self.b_first()
            if OPT.get('parklate', 1):
                A('s_barrier')
                if OPT.get('xlate', 0):
                    A('s_sub_u32 %s, %s, 5120' % (s(sT), s(sMXW)))
                    A('s_mov_b64 exec, %s' % s(sEXM, 2))
                    A('s_barrier')
                    A('buffer_store_dword v%d, v%d, %s, %s offen sc1' % (AST + 8, vMST, srd(SRD_WS), s(sT)))
                    A('s_mov_b64 exec, -1')
                self.hooks.rec_chores(A, bail)
        else:
            A('s_barrier')
            if OPT.get('own2', 1):
                self.mem_issue(sMOW, self.OWN)
            if OPT.get('advlate', 1):
                self.advance()
                self.b_first()
            if OPT.get('sigearly', 4):
                usual = A.label('usual')
                A('s_cmp_lt_u32 %s, %d' % (s(sSTEP), NSEG - OPT.get('sigearly', 4)))
                A('s_cbranch_scc1 %s' % usual)
                for x in self.hooks.rec_progress(1) or []:
                    A(x)
                A('%s:' % usual)
            self.stamp(8, 41)
        if self.cls == 1:
            self.poll_own()
        if self.cls == 1:
            self.trace(vMST)
        self.stamp(0, 41)
        A('s_barrier')
        self.stamp(14, 41)
        A('%s_a1:' % tag)
        self.stamp(1)
        self.phase_a1()
        if self.cls == 0:
            self.stamp(3)
            if not OPT.get('rp1', 0):
                self.repoison()
        A('s_waitcnt lgkmcnt(0)')
        if self.cls == 1:
            self.trace(vTCH)
        A('s_barrier')
        self.stamp(2)
        self.phase_a2()
        self.stamp(4)
        self.phase_s()
        A('s_cmp_eq_u32 %s, %d' % (s(sSTEP), NSEG - 1))
        A('s_cbranch_scc1 %s_last' % tag)
        self.stamp(5)
        self.softmax_pv()
        self.stamp(6)
        self.phase_d()
        self.trace(vML4 if self.cls == 0 else vSEL)
        self.stamp(7)
        if self.cls == 1:
            A('s_waitcnt vmcnt(2)')
            if not OPT.get('advlate', 1):
                self.advance()
                self.b_first()
            A('s_branch %s_step' % tag)
        else:
            idle = A.label('idle')
            A('s_cmp_ge_u32 %s, 40' % s(sRED))
            A('s_cbranch_scc1 %s' % idle)
            self.reduce()
            self.trace(vML2)
            self.stamp(8)
            if not OPT.get('parklate', 1):
                A('s_barrier')
                self.hooks.rec_chores(A, bail)
            A('s_branch %s_step' % tag)
            A('%s:' % idle)
            A('s_waitcnt vmcnt(2)')
            if not OPT.get('parklate', 1):
                A('s_barrier')
            A('s_branch %s_step' % tag)

        A('%s_last:' % tag)
        A('s_waitcnt vmcnt(0)')
        self.hooks.rec_signal_last(A)
        if self.stamps:
            A('s_memrealtime %s' % s(sST, 2))
            A('s_memtime %s' % s(sST + 2, 2))
            A('s_waitcnt lgkmcnt(0)')
            A('s_mov_b32 %s, %s' % (s(sSTAMP + 12), s(sST)))
            A('s_mov_b32 %s, %s' % (s(sSTAMP + 13), s(sST + 2)))
            A('s_mov_b32 %s, %s' % (s(sSTAMP + 9), s(sSPIN)))
            for k in range(16):
                A('v_writelane_b32 v%d, %s, %d' % (T0 + 1, s(sSTAMP + k), k))
            A('s_lshl_b32 %s, %s, 5' % (s(sT), s(sTEAM)))
            A('s_add_u32 %s, %s, %s' % (s(sT), s(sT), s(sHEAD)))
            A('s_lshl_b32 %s, %s, 2' % (s(sT), s(sT)))
            A('s_add_u32 %s, %s, %s' % (s(sT), s(sT), s(sWAVE)))
            A('s_lshl_b32 %s, %s, 7' % (s(sT), s(sT)))
            A('s_add_u32 %s, %s, 0x%x' % (s(sT), s(sT), WS_STAMP))
            A('v_lshrrev_b32 v%d, 2, v%d' % (T0, vLIN))
            if OPT.get('trace', 0):
                A('s_sub_u32 %s, %s, 0x%x' % (s(sOWN), s(sT), WS_STAMP))
                A('s_lshl_b32 %s, %s, 3' % (s(sOWN), s(sOWN)))
                A('s_add_u32 %s, %s, 0x%x' % (s(sOWN), s(sOWN), WS_TRACE))
                for k, r in enumerate((vML4, vML2, vML2) if self.cls == 0 else (vMST, vTCH, vSEL)):
                    A('buffer_store_dword v%d, v%d, %s, %s offen offset:%d' % (r, T0, srd(SRD_WS), s(sOWN), k * 256))
            A('s_mov_b32 exec_hi, 0')
            A('buffer_store_dword v%d, v%d, %s, %s offen' % (T0 + 1, T0, srd(SRD_WS), s(sT)))
            A('s_waitcnt vmcnt(0)')
            A('s_mov_b64 exec, -1')
        if DIAG['on'] == 3:
            mark(A, 3, sHEAD, 192)
        self.hooks.rec_done(A)
        A('s_endpgm')
        for name, body in self.cold:
            A('%s:' % name)
            body(bail)


def rec_setup(A):
    build_srd(A, SRD_A, 'mem0')
    t0, t1, t2, t3 = T0, T0 + 1, T0 + 2, T0 + 3
    A('v_and_b32 v%d, 7, v0' % t0)
    A('v_lshrrev_b32 v%d, 3, v0' % t1)
    A('v_lshrrev_b32 v%d, 3, v%d' % (t2, t1))
    A('v_lshl_add_u32 v%d, v%d, 3, v%d' % (t2, t2, t0))
    A('v_and_b32 v1, 7, v%d' % t1)
    A('v_lshlrev_b32 v%d, 4, v%d' % (t2, t2))
    A('v_lshl_add_u32 v%d, v1, 1, v%d' % (t2, t2))
    A('v_and_b32 v%d, 16, v%d' % (t3, t1))
    A('v_and_b32 v1, 3, v%d' % t1)
    A('v_lshl_add_u32 v%d, v1, 2, v%d' % (t3, t3))
    A('v_bfe_u32 v1, v%d, 2, 1' % t1)
    A('v_lshl_add_u32 v%d, v1, 1, v%d' % (t3, t3))
    A('v_bfe_u32 v1, v%d, 3, 1' % t1)
    A('v_add_u32 v%d, v1, v%d' % (t3, t3))
    A('v_mul_u32_u24 v%d, 640, v%d' % (t0, t0))
    A('v_add_lshl_u32 v%d, v%d, v%d, 1' % (t0, t0, t3))
    A('s_mul_i32 %s, %s, 640' % (s(sOWN), s(sTEAM)))
    A('s_sub_u32 %s, 640, %s' % (s(sLATE), s(sOWN)))
    for T in range(20):
        A('buffer_load_ushort v%d, v%d, %s, %s offen offset:%d'
          % (32 + T, t0, srd(SRD_A), s(sOWN if T < 10 else sLATE), (T % 10) * 64))
    for T in range(20):
        A('s_waitcnt vmcnt(%d)' % (19 - T))
        A('ds_write_b16 v%d, v%d offset:%d' % (t2, 32 + T, L_MEMT + T * 512))
    for r, n in ((SRD_A, 'wq'), (SRD_B, 'wk'), (SRD_C, 'wv'), (SRD_D, 'wo')):
        build_srd(A, r, n)
    A('v_and_b32 v0, 63, v0')
    n, g, tt, aa = T0, T0 + 1, T0 + 2, T0 + 3
    w = s(sWAVE)
    A('v_and_b32 v%d, 15, v0' % n)
    A('v_lshrrev_b32 v%d, 4, v0' % g)
    A('v_bfe_u32 v%d, v0, 2, 2' % tt)
    A('v_and_b32 v%d, 1, v0' % aa)
    A('v_bfe_u32 v%d, v0, 3, 1' % vIDX)
    A('v_mul_u32_u24 v%d, 0x5555, v%d' % (vIDX, vIDX))
    A('v_add_u32 v%d, 0x8888, v%d' % (vIDX, vIDX))
    A('v_lshlrev_b32 v%d, 4, v0' % vLIN)
    A('v_and_b32 v%d, 7, v0' % vAR)
    A('v_lshl_add_u32 v%d, v%d, 3, v%d' % (vAR, g, vAR))
    A('v_lshlrev_b32 v%d, 4, v%d' % (vAR, vAR))
    A('s_mul_i32 %s, %s, %d' % (s(sT), w, 18 * 2048))
    A('s_mul_i32 %s, %s, %d' % (s(sOWN), w, 14 * 2048))
    A('s_add_u32 %s, %s, %d' % (s(sOWN), s(sOWN), 8 * 2048))
    A('s_cmp_lt_u32 %s, 2' % w)
    A('s_cselect_b32 %s, %s, %s' % (s(sT), s(sT), s(sOWN)))
    A('s_add_u32 %s, %s, %d' % (s(sT), s(sT), L_WL))
    A('v_add_u32 v%d, %s, v%d' % (vBL, s(sT), vLIN))
    A('v_lshrrev_b32 v%d, 1, v%d' % (vQW, g))
    A('v_mul_u32_u24 v%d, 288, v%d' % (vQW, vQW))
    A('v_lshl_add_u32 v%d, v%d, 4, v%d' % (vQW, n, vQW))
    A('v_and_b32 v%d, 1, v%d' % (T0 + 4, g))
    A('v_lshl_add_u32 v%d, v%d, 3, v%d' % (vQW, T0 + 4, vQW))
    A('s_mul_i32 %s, %s, 576' % (s(sT), w))
    A('s_add_u32 %s, %s, %d' % (s(sT), s(sT), L_QT))
    A('v_add_u32 v%d, %s, v%d' % (vQW, s(sT), vQW))
    A('v_and_b32 v%d, 1, v%d' % (vQR, tt))
    A('v_mul_u32_u24 v%d, 288, v%d' % (vQR, vQR))
    A('v_lshrrev_b32 v%d, 1, v%d' % (T0 + 5, tt))
    A('v_lshl_add_u32 v%d, v%d, 2, v%d' % (T0 + 5, g, T0 + 5))
    A('v_lshl_add_u32 v%d, v%d, 4, v%d' % (vQR, T0 + 5, vQR))
    A('v_lshl_add_u32 v%d, v%d, 3, v%d' % (vQR, aa, vQR))
    A('v_add_u32 v%d, %d, v%d' % (vQR, L_QT, vQR))
    A('s_lshl_b32 %s, %s, 9' % (s(sT), w))
    A('s_add_u32 %s, %s, %d' % (s(sT), s(sT), L_OX))
    A('v_bfe_u32 v%d, v0, 3, 1' % vOXW)
    A('v_lshl_add_u32 v%d, v%d, 11, v%d' % (vOXW, vOXW, vAR))
    A('v_add_u32 v%d, %s, v%d' % (vOXW, s(sT), vOXW))
    A('v_lshlrev_b32 v%d, 4, v%d' % (vSEL, aa))
    A('v_mov_b32 v%d, 0x3f80' % (T0 + 5))
    A('v_lshlrev_b32 v%d, v%d, v%d' % (vSEL, vSEL, T0 + 5))
    A('v_lshrrev_b32 v%d, 3, v%d' % (vPST, n))
    A('v_lshrrev_b32 v%d, 1, v%d' % (T0 + 5, g))
    A('v_lshl_add_u32 v%d, v%d, 1, v%d' % (vPST, vPST, T0 + 5))
    A('v_lshlrev_b32 v%d, 12, v%d' % (vPST, vPST))
    A('v_lshl_add_u32 v%d, v%d, 6, v%d' % (vPST, T0 + 4, vPST))
    A('v_and_b32 v%d, 7, v0' % (T0 + 5))
    A('v_lshl_add_u32 v%d, v%d, 3, v%d' % (vPST, T0 + 5, vPST))
    A('v_min_u32 v%d, 39, v0' % vTCH)
    A('v_lshlrev_b32 v%d, 7, v%d' % (vTCH, vTCH))
    A('s_and_b32 %s, %s, 1' % (s(sRED), w))
    A('s_lshl_b32 %s, %s, 5' % (s(sRED), s(sRED)))
    A('s_add_u32 %s, %s, %s' % (s(sRED), s(sRED), s(sHEAD)))
    A('s_mul_i32 %s, %s, 40' % (s(sPL), s(sTEAM)))
    A('s_add_u32 %s, %s, %s' % (s(sPL), s(sPL), s(sRED)))
    A('s_lshl_b32 %s, %s, 12' % (s(sPL), s(sPL)))
    A('s_add_u32 %s, %s, 0x%x' % (s(sPL), s(sPL), WS_PART))
    A('s_cmp_lt_u32 %s, 40' % s(sRED))
    A('s_cselect_b32 %s, %s, 0x40000000' % (s(sPL), s(sPL)))
    A('s_mov_b32 %s, 0x40000000' % s(sPLP))
    A('v_bfe_u32 v%d, v0, 2, 1' % (T0 + 5))
    A('v_lshl_add_u32 v%d, v%d, 1, v%d' % (vMST, T0 + 4, T0 + 5))
    A('v_lshl_add_u32 v%d, v%d, 1, v%d' % (vMST, vMST, aa))
    A('v_bfe_u32 v%d, v0, 3, 1' % (T0 + 5))
    A('v_lshl_add_u32 v%d, v%d, 1, v%d' % (vMST, vMST, T0 + 5))
    A('v_lshrrev_b32 v%d, 5, v0' % (T0 + 5))
    A('v_lshl_add_u32 v%d, v%d, 1, v%d' % (vMST, vMST, T0 + 5))
    A('s_lshl_b32 %s, %s, 7' % (s(sT), s(sRED)))
    A('v_lshl_add_u32 v%d, v%d, 2, %s' % (vMST, vMST, s(sT)))
    A('s_mov_b32 %s, 0x33333333' % s(sEXM))
    A('s_mov_b32 %s, 0x33333333' % s(sEXM + 1))
    A('s_and_b32 %s, %s, 1' % (s(sT), w))
    A('s_mul_i32 %s, %s, 2560' % (s(sT), s(sT)))
    A('v_add_u32 v%d, %s, v%d' % (vML4, s(sT), vLIN))
    A('s_add_u32 %s, %s, 2048' % (s(sT), s(sT)))
    A('v_lshl_add_u32 v%d, v0, 3, %s' % (vML2, s(sT)))
    A('s_lshl_b32 %s, %s, 11' % (s(sT), w))
    A('v_add_u32 v%d, %s, v%d' % (vVX, s(sT), vLIN))
    A('s_add_u32 %s, %s, %d' % (s(sKXM), s(sT), L_KX))
    A('s_lshl_b32 %s, %s, 9' % (s(sT), w))
    A('v_lshl_add_u32 v%d, v0, 3, %s' % (vPUB, s(sT)))
    A('s_mov_b32 %s, 0x%x' % (s(sSCL), f2u(SCL)))
    A('s_mov_b32 %s, 0x%x' % (s(sSCL + 1), f2u(SCL)))
    A('s_mov_b32 %s, 0' % s(sSTEP))
    A('s_mov_b32 %s, %d' % (s(sTAG), 80 * 4096))
    A('s_mov_b32 %s, 0' % s(sSPIN))
    A('s_mul_i32 %s, %s, %d' % (s(sMO), s(sTEAM), 64 * 5120))
    A('s_mul_i32 %s, %s, 0x%x' % (s(sMX), s(sTEAM), 0x100000))
    A('s_sub_u32 %s, 0x%x, %s' % (s(sMXW), WS_MEMX + 0x100000 + 16384, s(sMX)))
    A('s_add_u32 %s, %s, 0x%x' % (s(sMX), s(sMX), WS_MEMX))
    A('s_cmp_lt_u32 %s, 40' % s(sRED))
    A('s_cselect_b32 %s, %s, 0x40000000' % (s(sMXW), s(sMXW)))
    A('s_add_u32 %s, %s, 0x%x' % (s(sMO), s(sMO), WS_MEMO))
    A('s_add_u32 %s, %s, 5120' % (s(sMOW), s(sMO)))
    A('s_lshl_b32 %s, %s, 13' % (s(sKVK), s(sHEAD)))
    A('s_add_u32 %s, %s, 0x%x' % (s(sKVV), s(sKVK), WS_V))
    A('s_add_u32 %s, %s, 0x%x' % (s(sKVK), s(sKVK), WS_K))
    A('s_lshl_b32 %s, %s, 11' % (s(sT), s(sHEAD)))
    A('s_add_u32 %s, %s, 0x%x' % (s(sPUB), s(sT), WS_KM))
    A('s_add_u32 %s, %s, 0x%x' % (s(sPUBV), s(sT), WS_VM))
    A('s_cmp_eq_u32 %s, 0' % s(sTEAM))
    A('s_cselect_b32 %s, %s, 0x40000000' % (s(sPUB), s(sPUB)))
    A('s_cselect_b32 %s, 0x40000000, %s' % (s(sPUBV), s(sPUBV)))
    A('s_waitcnt lgkmcnt(0)')


def emit_rec(A, hooks, bail, stamps=False):
    rec_setup(A)
    A('s_cmp_ge_u32 %s, 2' % s(sWAVE))
    A('s_cbranch_scc1 rec_load1')
    for cls in (0, 1):
        Rec(A, cls, True, hooks, stamps).prologue(bail)
        for fast in (True, False):
            Rec(A, cls, fast, hooks, stamps).emit(bail)
```

```python
from common import *

sXCC, sRANK, sA, sB, sC, sX0, sX1, sSP = 72, 73, 74, 75, 76, 77, 78, 79
sCNT = 80


FAKE = [0]
sKEEP = 71


def census(A, bail, tmp, sp):
    top, go = A.label('census'), A.label('census_ok')
    A('v_mbcnt_lo_u32_b32 v%d, -1, 0' % (tmp + 1))
    A('v_and_b32 v%d, 7, v%d' % (tmp + 1, tmp + 1))
    A('v_lshlrev_b32 v%d, 5, v%d' % (tmp + 1, tmp + 1))
    others = A.label('census_wait')
    A('s_cmp_lg_u32 %s, 0' % s(sWAVE))
    A('s_cbranch_scc1 %s' % others)
    A('%s:' % top)
    A('s_sleep 8')
    A('buffer_load_dword v%d, v%d, %s, 0 offen sc1' % (tmp, tmp + 1, srd(SRD_DBG)))
    A('s_waitcnt vmcnt(0)')
    A('v_readlane_b32 %s, v%d, 0' % (s(sA), tmp))
    for i in range(1, 8):
        A('v_readlane_b32 %s, v%d, %d' % (s(sB), tmp, i))
        A('s_add_u32 %s, %s, %s' % (s(sA), s(sA), s(sB)))
    A('s_cmp_lt_u32 %s, 256' % s(sA))
    A('s_cbranch_scc0 %s' % go)
    spin_guard(A, sp, top, bail)
    A('%s:' % go)
    A('ds_write_b32 v%d, v%d' % (tmp + 1, tmp))
    A('s_waitcnt lgkmcnt(0)')
    A('%s:' % others)
    A('s_barrier')
    A('ds_read_b32 v%d, v%d' % (tmp, tmp + 1))
    A('s_waitcnt lgkmcnt(0)')
    for i in range(8):
        A('v_readlane_b32 %s, v%d, %d' % (s(sCNT + (i >> 2) + 2 * (i & 3)), tmp, i))
    A('s_barrier')


def take_ticket(A, guess_label):
    A('s_getreg_b32 %s, hwreg(HW_REG_XCC_ID, 0, 3)' % s(sXCC))
    if FAKE[0] == 1:
        A('s_mul_i32 %s, s2, 9363' % s(sA))
        A('s_lshr_b32 %s, %s, 16' % (s(sA), s(sA)))
        A('s_mul_i32 %s, %s, 7' % (s(sA), s(sA)))
        A('s_sub_u32 %s, s2, %s' % (s(sXCC), s(sA)))
        A('s_add_u32 %s, %s, 1' % (s(sXCC), s(sXCC)))
        A('s_cmp_lt_u32 s2, 20')
        A('s_cselect_b32 %s, 0, %s' % (s(sXCC), s(sXCC)))
    if FAKE[0] == 2:
        A('s_mul_i32 %s, s2, 2115' % s(sXCC))
        A('s_lshr_b32 %s, %s, 16' % (s(sXCC), s(sXCC)))
        A('s_min_u32 %s, %s, 7' % (s(sXCC), s(sXCC)))
    first = A.label('arrived')
    A('v_mov_b32 v2, 0')
    A('s_cmp_lg_u32 %s, 0' % s(sWAVE))
    A('s_cbranch_scc1 %s' % first)
    A('s_and_b32 %s, %s, 1' % (s(sA), s(sXCC)))
    A('s_lshl_b32 %s, %s, 7' % (s(sA), s(sA)))
    A('s_lshr_b32 %s, %s, 1' % (s(sB), s(sXCC)))
    A('s_lshl_b32 %s, %s, 5' % (s(sB), s(sB)))
    A('s_add_u32 %s, %s, %s' % (s(sA), s(sA), s(sB)))
    A('v_mov_b32 v1, 1')
    A('s_mov_b64 exec, 1')
    early = A.label('early')
    A('s_cmp_lt_u32 %s, 2' % s(sXCC))
    A('s_cbranch_scc1 %s' % early)
    A('buffer_load_dword v3, v2, %s, 0 offen sc1' % srd(SRD_DBG))
    A('s_waitcnt vmcnt(0)')
    A('%s:' % early)
    A('buffer_atomic_add v1, v2, %s, %s offen sc0' % (srd(SRD_DBG), s(sA)))
    A('s_waitcnt vmcnt(0)')
    A('ds_write_b32 v2, v1')
    A('s_waitcnt lgkmcnt(0)')
    A('s_mov_b64 exec, -1')
    A('%s:' % first)
    A('s_barrier')
    A('ds_read_b32 v1, v2')
    A('s_waitcnt lgkmcnt(0)')
    A('v_readfirstlane_b32 %s, v1' % s(sRANK))
    A('s_barrier')
    A('s_lshl_b32 %s, %s, 8' % (s(sKEEP), s(sXCC)))
    A('s_or_b32 %s, %s, %s' % (s(sKEEP), s(sKEEP), s(sRANK)))
    A('s_mov_b32 %s, %s' % (s(sTEAM), s(sXCC)))
    A('s_mov_b32 %s, %s' % (s(sHEAD), s(sRANK)))
    A('s_mov_b32 %s, 2' % s(sFAST))
    A('s_and_b32 %s, %s, 0xfee0' % (s(sA), s(sKEEP)))
    A('s_cbranch_scc0 %s' % guess_label)


def confirm(A, bail, tmp, sp, regs):
    top, test, ok = A.label('confirm'), A.label('confirm_test'), A.label('confirmed')
    a_, b_ = regs
    A('s_cmp_lg_u32 %s, 2' % s(sFAST))
    A('s_cbranch_scc1 %s' % ok)
    A('s_mov_b32 %s, 1' % s(sFAST))
    A('s_branch %s' % test)
    A('%s:' % top)
    A('buffer_load_dword v%d, v%d, %s, 0 offen sc1' % (tmp, tmp + 1, srd(SRD_DBG)))
    A('s_waitcnt vmcnt(0)')
    A('%s:' % test)
    A('v_readlane_b32 %s, v%d, 0' % (s(a_), tmp))
    A('v_readlane_b32 %s, v%d, 4' % (s(b_), tmp))
    A('s_min_u32 %s, %s, %s' % (s(a_), s(a_), s(b_)))
    A('s_cmp_ge_u32 %s, 32' % s(a_))
    A('s_cbranch_scc1 %s' % ok)
    A('v_readlane_b32 %s, v%d, 0' % (s(a_), tmp))
    for i in range(1, 8):
        A('v_readlane_b32 %s, v%d, %d' % (s(b_), tmp, i))
        A('s_add_u32 %s, %s, %s' % (s(a_), s(a_), s(b_)))
    A('s_cmp_ge_u32 %s, 256' % s(a_))
    A('s_cbranch_scc1 reassign')
    spin_guard(A, sp, top, bail)
    A('%s:' % ok)


def assign_roles(A, bail, rec_label, worker_label):
    A('assign:')
    A('s_lshr_b32 %s, %s, 8' % (s(sXCC), s(sKEEP)))
    A('s_and_b32 %s, %s, 0xff' % (s(sRANK), s(sKEEP)))
    A('s_mov_b32 %s, 0' % s(sSP))
    census(A, bail, 1, sSP)
    A('s_mov_b32 %s, 8' % s(sX0))
    A('s_mov_b32 %s, 8' % s(sX1))
    for i in range(7, -1, -1):
        A('s_cmp_ge_u32 %s, 32' % s(sCNT + i))
        A('s_cselect_b32 %s, %s, %s' % (s(sX1), s(sX0), s(sX1)))
        A('s_cselect_b32 %s, %d, %s' % (s(sX0), i, s(sX0)))
    A('s_mov_b32 %s, %s' % (s(sA), s(sRANK)))
    for i in range(7):
        A('s_cmp_gt_u32 %s, %d' % (s(sXCC), i))
        A('s_cselect_b32 %s, %s, 0' % (s(sB), s(sCNT + i)))
        A('s_add_u32 %s, %s, %s' % (s(sA), s(sA), s(sB)))
    slow, notteam = A.label('slowmap'), A.label('notteam')
    A('s_cmp_ge_u32 %s, 8' % s(sX1))
    A('s_cbranch_scc1 %s' % slow)
    A('s_mov_b32 %s, 1' % s(sFAST))
    A('s_mov_b32 %s, %s' % (s(sHEAD), s(sRANK)))
    A('s_cmp_ge_u32 %s, 32' % s(sRANK))
    A('s_cbranch_scc1 %s' % notteam)
    A('s_mov_b32 %s, 0' % s(sTEAM))
    A('s_cmp_eq_u32 %s, %s' % (s(sXCC), s(sX0)))
    A('s_cbranch_scc1 %s' % rec_label)
    A('s_mov_b32 %s, 1' % s(sTEAM))
    A('s_cmp_eq_u32 %s, %s' % (s(sXCC), s(sX1)))
    A('s_cbranch_scc1 %s' % rec_label)
    A('%s:' % notteam)
    A('s_cmp_ge_u32 %s, %s' % (s(sXCC), s(sX0)))
    A('s_cselect_b32 %s, 32, 0' % s(sB))
    A('s_sub_u32 %s, %s, %s' % (s(sA), s(sA), s(sB)))
    A('s_cmp_ge_u32 %s, %s' % (s(sXCC), s(sX1)))
    A('s_cselect_b32 %s, 32, 0' % s(sB))
    A('s_sub_u32 %s, %s, %s' % (s(sWIDX), s(sA), s(sB)))
    A('s_branch %s' % worker_label)
    A('%s:' % slow)
    A('s_mov_b32 %s, 0' % s(sFAST))
    A('s_and_b32 %s, %s, 31' % (s(sHEAD), s(sA)))
    A('s_lshr_b32 %s, %s, 5' % (s(sTEAM), s(sA)))
    A('s_cmp_lt_u32 %s, 64' % s(sA))
    A('s_cbranch_scc1 %s' % rec_label)
    A('s_sub_u32 %s, %s, 64' % (s(sWIDX), s(sA)))
    A('s_branch %s' % worker_label)
```

```python
import sys
from common import *
import rec, roles, wk, wk2

NAME = 'adaLN_cond__memory_aug_recurrent_mem_tr__mixer_s_mlp__prompt_kernel'


class Hooks:
    t = rec.AST

    def ready(self, A, bail, need):
        t, a_, b_ = self.t, rec.sOWN, rec.sLATE
        top, ok = A.label('kv'), A.label('kvok')
        A('s_cmp_ge_u32 %s, %s' % (s(rec.sKVOK), s(need)))
        A('s_cbranch_scc1 %s' % ok)
        A('v_and_b32 v%d, 0x70, v%d' % (t + 1, rec.vLIN))
        A('v_lshlrev_b32 v%d, 3, v%d' % (t + 1, t + 1))
        A('%s:' % top)
        A('buffer_load_dword v%d, v%d, %s, %s offen sc1' % (t, t + 1, srd(SRD_WS), s(rec.sFLG)))
        A('s_waitcnt vmcnt(0)')
        A('v_readlane_b32 %s, v%d, 2' % (s(a_), t))
        A('v_readlane_b32 %s, v%d, 4' % (s(b_), t))
        A('s_min_u32 %s, %s, %s' % (s(rec.sKVOK), s(a_), s(b_)))
        A('v_readlane_b32 %s, v%d, 3' % (s(a_), t))
        A('v_readlane_b32 %s, v%d, 5' % (s(b_), t))
        A('s_min_u32 %s, %s, %s' % (s(a_), s(a_), s(b_)))
        A('s_lshl_b32 %s, %s, 1' % (s(rec.sKVOK), s(rec.sKVOK)))
        A('s_lshl_b32 %s, %s, 1' % (s(a_), s(a_)))
        A('s_add_u32 %s, %s, 1' % (s(a_), s(a_)))
        A('s_min_u32 %s, %s, %s' % (s(rec.sKVOK), s(rec.sKVOK), s(a_)))
        A('s_cmp_ge_u32 %s, %s' % (s(rec.sKVOK), s(need)))
        A('s_cbranch_scc1 %s' % ok)
        spin_guard(A, rec.sSPIN, top, bail)
        A('%s:' % ok)

    def rec_probe(self, A):
        t, n = self.t, 5
        a_, b_, votes, base = 92, 93, rec.sKVOK, 94
        skip = A.label('noprobe')
        A('s_mov_b32 %s, 0x%x' % (s(7), wk.OOB))
        A('s_or_b32 %s, %s, %s' % (s(a_), s(sTEAM), s(sHEAD)))
        A('s_or_b32 %s, %s, %s' % (s(a_), s(a_), s(sWAVE)))
        A('s_cbranch_scc1 %s' % skip)
        A('v_lshlrev_b32 v%d, 9, v%d' % (t + 1, rec.vLIN))
        A('v_mov_b32 v%d, 1' % t)
        A('s_mov_b32 %s, 0x%x' % (s(a_), WS_MEMX + 6144))
        A('s_mov_b64 exec, 0x%x' % ((1 << 2 * n) - 1))
        A('buffer_store_dword v%d, v%d, %s, %s offen sc1' % (t, t + 1, srd(SRD_WS), s(a_)))
        A('s_mov_b64 exec, -1')
        A('s_add_u32 %s, %s, 0x%x' % (s(base), s(PTR['ws']), WS_MEMX + 6144))
        A('s_addc_u32 %s, %s, 0' % (s(base + 1), s(PTR['ws'] + 1)))
        A('s_mov_b32 %s, 0' % s(votes))
        A('s_waitcnt vmcnt(0)')
        for k in range(n):
            A('s_mov_b64 %s, 0' % s(a_, 2))
            for h in ((0, 1) if k & 1 else (1, 0)):
                A('s_load_dword %s, %s, 0x%x glc' % (s(a_ + h), s(base, 2), (2 * k + h) * 8192))
            A('s_waitcnt lgkmcnt(1) ; race')
            A('s_cmp_lg_u32 %s, 0 ; race' % s(b_))
            A('s_addc_u32 %s, %s, 0' % (s(votes), s(votes)))
            A('s_cmp_lg_u32 %s, 0 ; race' % s(a_))
            A('s_subb_u32 %s, %s, 0' % (s(votes), s(votes)))
            A('s_waitcnt lgkmcnt(0)')
        A('s_cmp_gt_i32 %s, 0' % s(votes))
        A('s_cselect_b32 %s, 2, 1' % s(6))
        if 'half' in rec.OPT:
            A('s_mov_b32 %s, %d' % (s(6), 1 + rec.OPT['half']))
        A('s_mov_b32 %s, %d' % (s(7), WS_FLAG + wk.F_NEAR * 128))
        A('%s:' % skip)

    def rec_early_request(self, A):
        t = self.t
        A('v_and_b32 v%d, 0x70, v%d' % (t + 1, rec.vLIN))
        A('v_lshlrev_b32 v%d, 1, v%d' % (t + 1, t + 1))
        A('buffer_load_dword v%d, v%d, %s, 0 offen sc1' % (t, t + 1, srd(SRD_DBG)))
        A('buffer_load_dword v%d, v%d, %s, %d offen sc1' % (t + 2, t + 1, srd(SRD_DBG), wk.DBG_INIT))
        return 2

    def rec_early_check(self, A, bail, cls):
        t = self.t
        roles.confirm(A, bail, t, rec.sSPIN, (rec.sKVOK, rec.sFLG))
        if self.force_slow:
            A('s_mov_b32 %s, 0' % s(sFAST))
        ok = A.label('initok')
        A('v_cmp_gt_u32 vcc, 24, v%d' % (t + 2))
        A('s_cbranch_vccz %s' % ok)
        wk.wait_ge(A, bail, SRD_DBG, t + 1, str(wk.DBG_INIT), 8, '24', t, sleep=6, sp=rec.sSPIN)
        A('%s:' % ok)
        if cls == 0:
            A('v_mov_b32 v%d, %s' % (t, s(6)))
            A('buffer_store_dword v%d, off, %s, %s sc1' % (t, srd(SRD_WS), s(7)))
            return 1

    def rec_wait_start(self, A, bail):
        t = self.t
        A('v_mov_b32 v%d, 0' % (t + 1))
        A('s_mov_b32 %s, %d' % (s(rec.sT), WS_FLAG + wk.F_NEAR * 128))
        wk.wait_ge(A, bail, SRD_WS, t + 1, s(rec.sT), 1, '1', t, sp=rec.sSPIN)
        A('v_readfirstlane_b32 %s, v%d' % (s(rec.sT), t))
        A('s_and_b32 %s, %s, 2' % (s(rec.sT), s(rec.sT)))
        A('s_lshl_b32 %s, %s, 12' % (s(rec.sT), s(rec.sT)))
        A('s_add_u32 %s, %s, %s' % (s(rec.sMX), s(rec.sMX), s(rec.sT)))
        A('s_add_u32 %s, %s, %s' % (s(rec.sMXW), s(rec.sMXW), s(rec.sT)))
        A('s_lshl_b32 %s, %s, 10' % (s(rec.sFLG), s(sHEAD)))
        A('s_add_u32 %s, %s, %d' % (s(rec.sFLG), s(rec.sFLG), WS_FLAG + wk.F_QKV * 128))
        A('s_mov_b32 %s, 0' % s(rec.sKVOK))
        A('s_mov_b32 %s, 1' % s(rec.sT))
        self.ready(A, bail, rec.sT)
        A('s_lshl_b32 %s, %s, 1' % (s(5), s(sHEAD)))
        A('s_add_u32 %s, %s, %s' % (s(5), s(5), s(sTEAM)))
        A('s_lshl_b32 %s, %s, 7' % (s(5), s(5)))
        A('s_add_u32 %s, %s, %d' % (s(5), s(5), WS_FLAG + wk.F_KM * 128))
        A('s_cmp_eq_u32 %s, 3' % s(sWAVE))
        A('s_cselect_b32 %s, %s, 0x%x' % (s(7), s(5), wk.OOB))

    def rec_progress(self, cls):
        if cls == 0:
            return []
        return ['v_mov_b32 v%d, %s' % (rec.vSEL, s(rec.sSTEP)),
                'buffer_store_dword v%d, off, %s, %s sc1' % (rec.vSEL, srd(SRD_WS), s(7))]

    def rec_chores(self, A, bail):
        def fn():
            A('s_add_u32 %s, %s, %d' % (s(rec.sT), s(rec.sSTEP), 3 if rec.OPT.get('parklate', 1) else 4))
            A('s_lshr_b32 %s, %s, 1' % (s(rec.sT), s(rec.sT)))
            A('s_min_u32 %s, %s, 32' % (s(rec.sT), s(rec.sT)))
            self.ready(A, bail, rec.sT)
        wk.on_wave0(A, fn)

    def rec_done(self, A):
        A('s_branch rec_helper')

    def rec_signal_last(self, A):
        A('s_barrier')
        wk.on_wave0(A, lambda: wk.signal(A, SRD_WS, s(5), '64', self.t))
        A('s_waitcnt vmcnt(0)')


def generate(path, enabled=('att', 't2', 't3', 't4', 't5', 't6'), stamps=False, name=NAME, force_slow=False):
    A = Asm()
    bail = name + '_exit'
    kernel_entry(A, name, 256)
    mark(A, 0, 2, 256)
    roles.take_ticket(A, 'rec_jump')
    roles.assign_roles(A, bail, 'rec_jump', 'worker')
    A('rec_jump:')
    A('s_branch rec_role')
    A('reassign:')
    A('s_waitcnt vmcnt(0) lgkmcnt(0)')
    A('s_barrier')
    A('v_mbcnt_lo_u32_b32 v0, -1, 0')
    A('v_mbcnt_hi_u32_b32 v0, -1, v0')
    A('s_lshl_b32 s72, %s, 6' % s(sWAVE))
    A('v_add_u32 v0, s72, v0')
    A('s_branch assign')
    kernel_exit(A, name)
    A('worker:')
    A('v_and_b32 v0, 63, v0')
    A('v_lshlrev_b32 v1, 4, v0')
    A('s_mov_b32 %s, 0' % s(wk.sSP))
    mark(A, 0, sWIDX)
    wk.init_workspace(A)
    A('s_mul_i32 %s, %s, 171' % (s(wk.sPRE), s(sWIDX)))
    A('s_lshr_b32 %s, %s, 9' % (s(wk.sPRE), s(wk.sPRE)))
    A('s_mul_i32 %s, %s, 3' % (s(wk.sT), s(wk.sPRE)))
    A('s_sub_u32 %s, %s, %s' % (s(wk.sT), s(sWIDX), s(wk.sT)))
    A('s_cmp_lt_u32 %s, 2' % s(wk.sT))
    A('s_cbranch_scc1 h_worker')
    A('s_mul_i32 %s, %s, 21' % (s(wk.sPRE), s(wk.sPRE)))
    A('s_and_b32 %s, %s, 63' % (s(wk.sPRE), s(wk.sPRE)))
    wk.mod_request(A)
    wk.init_done(A, 23)
    mark(A, 1, sWIDX)
    wk.mod_finish(A, bail)
    mark(A, 2, sWIDX)
    A('s_mov_b32 %s, 128' % s(wk.sPRE))
    A('s_branch do_qkv')
    A('h_worker:')
    A('s_lshl_b32 %s, %s, 1' % (s(wk.sPRE), s(wk.sPRE)))
    A('s_add_u32 %s, %s, %s' % (s(wk.sPRE), s(wk.sPRE), s(wk.sT)))
    wk.h_request(A)
    wk.init_done(A, 5)
    mark(A, 1, sWIDX)
    A('do_qkv:')
    wk.qkv_stage(A, bail)
    A('s_barrier')
    mark(A, 5, sWIDX)
    wk2.emit_trailing(A, 'bail2', enabled)
    A('rec_helper:')
    A('s_cmp_lg_u32 %s, 0' % s(sTEAM))
    A('s_cbranch_scc1 bail2')
    A('s_cmp_ge_u32 %s, 15' % s(sHEAD))
    A('s_cbranch_scc1 bail2')
    A('v_mbcnt_lo_u32_b32 v0, -1, 0')
    A('v_mbcnt_hi_u32_b32 v0, -1, v0')
    A('v_lshlrev_b32 v1, 4, v0')
    A('s_mov_b32 %s, 0' % s(wk.sSP))
    A('s_mov_b32 %s, %s' % (s(wk.sSLICE), s(sHEAD)))
    A('s_mov_b32 %s, 125' % s(wk.sCOPY))
    A('s_mov_b32 %s, 128' % s(wk2.sSTEP_RT))
    if DIAG['on']:
        A('s_add_u32 %s, %s, 192' % (s(sWIDX), s(sHEAD)))
    A('s_barrier')
    if 't6' in enabled:
        A('s_cmp_lt_u32 %s, 10' % s(sHEAD))
        A('s_cbranch_scc1 t6')
        A('s_sub_u32 %s, %s, 10' % (s(wk.sSLICE), s(sHEAD)))
        A('s_mov_b32 %s, 124' % s(wk.sCOPY))
        A('s_branch t4')
    A('bail2:')
    A('s_endpgm')
    A('rec_role:')
    if DIAG['on']:
        A('s_lshl_b32 %s, %s, 5' % (s(sWIDX), s(sTEAM)))
        A('s_add_u32 %s, %s, %s' % (s(sWIDX), s(sWIDX), s(sHEAD)))
        mark(A, 0, sWIDX, 192)
    if force_slow:
        A('s_and_b32 %s, %s, 2' % (s(sFAST), s(sFAST)))
    Hooks.force_slow = force_slow
    rec.emit_rec(A, Hooks(), 'bail2', stamps)
    n = A.pad_hazards()
    pr = A.check_waits([name])
    print('nops added', n, 'wait problems', len(pr), 'instructions', len(A.ins))
    for p in pr[:20]:
        print(p)
    head = open('adaLN_cond__memory_aug_recurrent_mem_tr__mixer_s_mlp__prompt.s.ref').read()
    head = head[:head.index('; Override launch geometry')]
    head += '; @launch grid=(256,1,1) block=(256,1,1) lds=163840\n'
    head += '.amdgcn_target "amdgcn-amd-amdhsa--gfx950"\n.text\n.globl %s\n.type %s,@function\n' % (name, name)
    text = head + A.text() + '.section .rodata,"a"\n.p2align 6\n' + descriptor(name)
    open(path, 'w').write(text)
    print(path, len(text), 'bytes')


if __name__ == '__main__':
    rec.OPT.update(smask=0, latec=7, nsh=3, restlate=0)
    wk.OPT.update(modnt=1)
    kw = {}
    for kv in sys.argv[2:]:
        k_, v_ = kv.split('=')
        if k_ == 'enabled':
            kw['enabled'] = tuple(v_.split(','))
        elif k_ == 'fake':
            roles.FAKE[0] = int(v_)
        elif k_ == 'diag':
            DIAG['on'] = int(v_)
        elif k_ in ('stamps', 'force_slow'):
            kw[k_] = bool(int(v_))
        else:
            rec.OPT[k_] = wk.OPT[k_] = int(v_)
    generate(sys.argv[1], **kw)
```
